```python
import torch

def _softmax(x, axis=-1):
    return torch.softmax(x, dim=axis)
def _gelu(x):
    return torch.nn.functional.gelu(x, approximate="tanh")
def _silu(x):
    return torch.nn.functional.silu(x)
def _sigmoid(x):
    return torch.sigmoid(x)
def _layernorm(x, axis=-1, eps=1e-5):
    m = x.mean(dim=axis, keepdim=True)
    v = x.var(dim=axis, keepdim=True, unbiased=False)
    return (x - m) / torch.sqrt(v + eps)
def _scatter_add(tgt, idx, src, axis=0):
    return tgt.clone().index_add_(axis, idx, src)
def _segment_sum(src, seg, n):
    out = torch.zeros((n,) + src.shape[1:], dtype=src.dtype)
    return out.index_add_(0, seg, src)
def _pad(x, pw):
    flat = tuple(v for pair in reversed(pw) for v in pair)
    return torch.nn.functional.pad(x, flat)

kernel_name = 'gated_mix__linear_kernel_hedgehog__glu_gated_geglu__prompt'

def setup_inputs():

    _w = (lambda a: (lambda t: t.to(torch.bfloat16) if t.is_floating_point() else t)(torch.as_tensor(a)))
    def _A_setup():
        B, S, D, H = 1, 2048, 512, 32
        Dh = D // H
        return {
            "x": _w((lambda *s: torch.randn(*s, dtype=torch.bfloat16) * 0.05)(B, S, D)),
            "wqkv": _w((lambda *s: torch.randn(*s, dtype=torch.bfloat16) * 0.8)(D, 3 * D)),
            "w_phi": _w((lambda *s: torch.randn(*s, dtype=torch.bfloat16) * 0.8)(H, Dh, Dh) * (Dh ** -0.5)),
            "wo": _w((lambda *s: torch.randn(*s, dtype=torch.bfloat16) * 0.05)(D, D)),
        }
    _A_in = _A_setup()

    def _B_setup():
        B, S, Dm, Df = 1, 2048, 512, 1376
        return {
            "x": _w((lambda *s: torch.randn(*s, dtype=torch.bfloat16) * 0.05)(B, S, Dm)),
            "w_gate": _w((lambda *s: torch.randn(*s, dtype=torch.bfloat16) * 1.6)(Dm, Df) * (Dm ** -0.5)),
            "w_up": _w((lambda *s: torch.randn(*s, dtype=torch.bfloat16) * 1.6)(Dm, Df) * (Dm ** -0.5)),
            "w_down": _w((lambda *s: torch.randn(*s, dtype=torch.bfloat16) * 1.6)(Df, Dm) * (Df ** -0.5)),
        }
    _B_in = _B_setup()

    return {
        "A_x": _A_in["x"],
        "A_wqkv": _A_in["wqkv"],
        "A_w_phi": _A_in["w_phi"],
        "A_wo": _A_in["wo"],
        "B_x": _B_in["x"],
        "B_w_gate": _B_in["w_gate"],
        "B_w_up": _B_in["w_up"],
        "B_w_down": _B_in["w_down"],
        "gate_w": _w((lambda *s: torch.randn(*s, dtype=torch.bfloat16) * 0.05)(512) * 16.0),
    }

def reference(A_x, A_wqkv, A_w_phi, A_wo, B_x, B_w_gate, B_w_up, B_w_down, gate_w):
    def _A_ref(x, wqkv, w_phi, wo):
        B, S, D = x.shape
        H = 32; Dh = D // H
        qkv = (lambda x, *d: x.permute(*d))((x @ wqkv).reshape(B, S, 3, H, Dh), 2, 0, 3, 1, 4)
        q, k, v = qkv[0], qkv[1], qkv[2]
        pq = torch.einsum("bhsd,hdf->bhsf", q, w_phi)
        pk = torch.einsum("bhsd,hdf->bhsf", k, w_phi)
        phi_q = torch.concatenate([_softmax(pq, axis=-1), _softmax(-pq, axis=-1)], axis=-1)
        phi_k = torch.concatenate([_softmax(pk, axis=-1), _softmax(-pk, axis=-1)], axis=-1)
        kv = torch.einsum("bhsf,bhsd->bhfd", phi_k, v)
        z  = torch.einsum("bhsf->bhf", phi_k)
        num = torch.einsum("bhqf,bhfd->bhqd", phi_q, kv)
        den = torch.einsum("bhqf,bhf->bhq", phi_q, z)[..., None] + 1e-6
        o = num / den
        return (lambda x, *d: x.permute(*d))(o, 0, 2, 1, 3).reshape(B, S, D) @ wo

    def _B_ref(x, w_gate, w_up, w_down):
        g = torch.einsum("bsd,df->bsf", x, w_gate)
        u = torch.einsum("bsd,df->bsf", x, w_up)
        h = _gelu(g) * u
        return torch.einsum("bsf,fd->bsd", h, w_down)

    x = A_x
    g = _sigmoid((x * gate_w).sum(-1, keepdims=True))
    a = _A_ref(x, A_wqkv, A_w_phi, A_wo)
    b = _B_ref(x, B_w_gate, B_w_up, B_w_down)
    return g * a + (1 - g) * b
```

```python
import re

TRANS = ("v_exp_f32", "v_rcp_f32", "v_log_f32", "v_rsq_f32", "v_sqrt_f32")
VOP3_ONLY = ("v_fma_f32", "v_max3_f32", "v_min3_f32", "v_pk_", "v_cvt_pk_bf16_f32", "v_mul_lo_u32", "v_mad_u32_u24",
             "v_lshl_add_u32", "v_add_lshl_u32", "v_and_or_b32", "v_bfe_u32", "v_add3_u32", "v_lshl_or_b32",
             "v_accvgpr_read", "v_accvgpr_write", "v_mfma", "v_or3_b32", "v_xad_u32", "v_med3", "v_readlane", "v_writelane", "v_perm_b32",
             "v_mbcnt", "v_mul_hi_u32", "v_dot2_f32_bf16", "v_bfi_b32", "v_alignbit")
INLINE_F = {"0.5", "-0.5", "1.0", "-1.0", "2.0", "-2.0", "4.0", "-4.0"}


def regs_of(tok):
    tok = tok.strip()
    tok = tok.lstrip("-")
    if tok.startswith("abs(") or tok.startswith("|"):
        tok = tok.replace("abs(", "").replace(")", "").replace("|", "")
    m = re.fullmatch(r"([vas])(\d+)", tok)
    if m:
        return [(m.group(1), int(m.group(2)))]
    m = re.fullmatch(r"([vas])\[(\d+):(\d+)\]", tok)
    if m:
        return [(m.group(1), i) for i in range(int(m.group(2)), int(m.group(3)) + 1)]
    if tok in ("vcc", "vcc_lo", "vcc_hi"):
        return [("s", "vcc")]
    if tok in ("exec", "exec_lo", "exec_hi"):
        return [("s", "exec")]
    if tok == "m0":
        return [("s", "m0")]
    return []


def is_literal(tok):
    tok = tok.strip()
    if regs_of(tok) or tok in INLINE_F or tok in ("off", "scc"):
        return False
    try:
        v = int(tok, 0)
        return not (-16 <= v <= 64)
    except ValueError:
        pass
    try:
        float(tok)
        return True
    except ValueError:
        return False


class Ins:
    __slots__ = ("text", "op", "kind", "rd", "wr", "size", "tag", "srcc", "promotable", "stdata", "count")

    def __init__(self, text, tag=None, count=True):
        self.text = text
        self.tag = tag
        self.count = count
        self.srcc = []
        self.stdata = []
        self.promotable = False
        t = text.split(";")[0].strip()
        if t.endswith(":") or t.startswith("."):
            self.op, self.kind, self.rd, self.wr, self.size = t, "label", [], [], 0
            return
        parts = t.split(None, 1)
        op = parts[0]
        self.op = op
        rest = parts[1] if len(parts) > 1 else ""
        ops, depth, cur = [], 0, ""
        for c in rest:
            if c in "[(":
                depth += 1
            if c in "])":
                depth -= 1
            if c == "," and depth == 0:
                ops.append(cur)
                cur = ""
            else:
                cur += c
        mods = ""
        if cur.strip():
            last = cur.strip().split(None, 1)
            ops.append(last[0])
            mods = last[1] if len(last) > 1 else ""
        ops = [o.strip() for o in ops]
        R = [regs_of(o) for o in ops]
        flat = lambda xs: [r for x in xs for r in x]
        lit = any(is_literal(o) for o in ops)
        EX = [("s", "exec")]
        if op.startswith("v_mfma"):
            self.kind, self.wr, self.rd, self.srcc, self.size = "mfma", R[0], flat(R[1:]), R[3], 8
        elif op.startswith("ds_read"):
            self.kind, self.wr, self.rd, self.size = "ds", R[0], flat(R[1:]), 8
        elif op.startswith("ds_write"):
            self.kind, self.wr, self.rd, self.size = "ds", [], flat(R), 8
            if "addtid" in op:
                self.rd = self.rd + [("s", "m0")]
        elif op.startswith("buffer_load") or op.startswith("global_load"):
            self.kind, self.size = "vmem", 8
            if re.search(r"\blds\b", mods):
                self.wr, self.rd = [], flat(R) + [("s", "m0")]
            else:
                self.wr, self.rd = R[0], flat(R[1:])
        elif op.startswith("buffer_store") or op.startswith("global_store") or "atomic" in op:
            self.kind, self.wr, self.rd, self.size = "vmem", [], flat(R), 8
            if op.endswith("x4") or op.endswith("x3"):
                self.stdata = R[0] if op.startswith("buffer") else R[1]
        elif op.startswith("s_load") or op in ("s_memtime", "s_memrealtime"):
            self.kind, self.wr, self.rd, self.size = "smem", R[0], flat(R[1:]), 8
        elif op in ("s_waitcnt", "s_nop", "s_barrier", "s_sleep", "s_setprio", "s_endpgm") or op.startswith("s_branch") or op.startswith("s_cbranch"):
            self.kind, self.wr, self.rd, self.size = "sopp", [], [], 4
        elif op.startswith("s_cmp") or op.startswith("s_bitcmp"):
            self.kind, self.wr, self.rd, self.size = "salu", [], flat(R), 8 if lit else 4
        elif op.startswith("s_"):
            self.kind, self.wr, self.rd = "salu", R[0], flat(R[1:])
            self.size = 4 if (op.endswith("k_i32") or op.startswith("s_getreg") or not lit) else 8
            if op.endswith("k_i32") and not op.startswith("s_movk"):
                self.rd = self.rd + R[0]
        elif op.startswith("v_"):
            base = op.replace("_e32", "").replace("_e64", "")
            self.kind = "trans" if base in TRANS else "valu"
            self.wr, self.rd = R[0], flat(R[1:])
            if base.startswith("v_permlane"):
                self.kind = "perm"
                self.wr = self.rd = flat(R)
            if base.startswith("v_fmac") or base.startswith("v_dot2c"):
                self.rd = self.rd + R[0]
            v3 = op.endswith("_e64") or any(base.startswith(p) for p in VOP3_ONLY)
            if not v3:
                if any(o.startswith("-v") or o.startswith("-s") or o.startswith("abs") or o.startswith("|") for o in ops):
                    v3 = True
                if base.startswith("v_cmp") and ops[0] != "vcc":
                    v3 = True
                if base == "v_cndmask_b32" and ops[3] != "vcc":
                    v3 = True
                if len(ops) >= 3 and not base.startswith("v_readfirstlane") and not ops[2].startswith("v"):
                    v3 = True
            self.size = 8 if (v3 or lit) else 4
            if self.size == 4 and not base.startswith("v_readfirstlane") and not op.endswith("_e32"):
                self.promotable = True
        else:
            raise ValueError("unknown instruction: " + text)


class Wait:
    def __init__(self, vm_tag=None, lgkm0=False, vm0=False):
        self.vm_tag, self.lgkm0, self.vm0 = vm_tag, lgkm0, vm0


class Stream:
    def __init__(self):
        self.items = []

    def __call__(self, text, tag=None, count=True):
        for line in text.split("\n"):
            line = line.strip()
            if line:
                self.items.append(Ins(line, tag, count))

    def wait(self, vm_tag=None, lgkm0=False, vm0=False):
        self.items.append(Wait(vm_tag, lgkm0, vm0))

    def extend(self, other):
        self.items.extend(other.items if isinstance(other, Stream) else other)


def insert_waits(items):
    out = []
    vm_n = 0
    vm_done = 0
    vm_reg = {}
    vm_tag = {}
    ds_n = ds_done = 0
    ds_reg = {}
    smem_pending = set()

    def emit(need_vm, need_ds, lg0=False):
        nonlocal vm_done, ds_done
        parts = []
        if need_vm is not None and need_vm >= vm_done:
            n = min(vm_n - need_vm - 1, 63)
            parts.append(f"vmcnt({n})")
            vm_done = vm_n - n
        if lg0 and (ds_done < ds_n or smem_pending):
            parts.append("lgkmcnt(0)")
            ds_done = ds_n
            smem_pending.clear()
        elif need_ds is not None and need_ds >= ds_done:
            n = min(ds_n - need_ds - 1, 15)
            if smem_pending:
                n = 0
                smem_pending.clear()
            parts.append(f"lgkmcnt({n})")
            ds_done = ds_n - n
        if parts:
            out.append(Ins("s_waitcnt " + " ".join(parts)))

    for it in items:
        if isinstance(it, Wait):
            need = None
            if it.vm0:
                need = vm_n - 1 if vm_n else None
            elif it.vm_tag is not None:
                tags = it.vm_tag if isinstance(it.vm_tag, (list, tuple)) else [it.vm_tag]
                need = max(vm_tag[t] for t in tags)
            emit(need, None, it.lgkm0)
            continue
        if it.kind == "label":
            out.append(it)
            continue
        if it.op == "s_waitcnt":
            m = re.search(r"vmcnt\((\d+)\)", it.text)
            if m:
                vm_done = max(vm_done, vm_n - int(m.group(1)))
            m = re.search(r"lgkmcnt\((\d+)\)", it.text)
            if m:
                if int(m.group(1)) == 0:
                    smem_pending.clear()
                if not smem_pending:
                    ds_done = max(ds_done, ds_n - int(m.group(1)))
            out.append(it)
            continue
        touched = list(it.rd) + list(it.wr)
        nv = max((vm_reg[r] for r in touched if r in vm_reg), default=None)
        nd = max((ds_reg[r] for r in touched if r in ds_reg), default=None)
        lg0 = any(r in smem_pending for r in touched)
        emit(nv, nd, lg0)
        out.append(it)
        if it.kind == "vmem":
            if it.count:
                for r in it.wr:
                    vm_reg[r] = vm_n
                if it.tag is not None:
                    vm_tag[it.tag] = vm_n
                vm_n += 1
            else:
                assert not it.wr
        elif it.kind == "ds":
            for r in it.wr:
                ds_reg[r] = ds_n
            ds_n += 1
        elif it.kind == "smem":
            smem_pending.update(it.wr)
    return out


def states_of(i):
    if i.kind == "label":
        return 0
    if i.op == "s_nop":
        return int(i.text.split()[1]) + 1
    return 1


def need_states(p, c):
    n = 0
    pw, cr, cw = set(p.wr), set(c.rd), set(c.wr)
    pvalu = p.kind in ("valu", "trans", "perm")
    cvalu = c.kind in ("valu", "trans", "perm")
    if p.kind == "mfma":
        passes = 8 if "32x32x16" in p.op else 4
        big = {8: 12, 4: 8}[passes]
        if c.kind == "mfma":
            ab = cr - set(c.srcc) if c.srcc else cr
            srcab = set(c.rd[:8])
            if pw & srcab:
                n = max(n, big)
            if pw & set(c.srcc):
                if not (list(p.wr) == list(c.srcc) and p.op == c.op):
                    n = max(n, big - 2)
            elif pw & cw:
                n = max(n, big - 2)
        elif pw & (cr | cw):
            n = max(n, big)
        if cvalu and set(p.srcc) & cw:
            n = max(n, {8: 7, 4: 3}[passes])
    if pvalu:
        vw = {r for r in pw if r[0] in "va"}
        sw = {r for r in pw if r[0] == "s"}
        if c.kind == "mfma" and vw & cr:
            n = max(n, 2)
        if c.kind == "perm" and vw & cr:
            n = max(n, 2)
        if (c.op.startswith("v_readfirstlane") or c.op.startswith("v_readlane")) and vw & cr:
            n = max(n, 1)
        if p.kind == "trans" and vw & cr and (cvalu or c.kind in ("mfma",)):
            n = max(n, 1)
        if sw & cr:
            if c.kind == "vmem":
                n = max(n, 5)
            elif cvalu:
                n = max(n, 2)
            elif c.kind in ("salu", "smem"):
                n = max(n, 2)
        if ("s", "vcc") in sw and c.op.startswith("s_cbranch_vcc"):
            n = max(n, 2)
    if p.kind == "salu" and ("s", "m0") in pw and ("s", "m0") in cr and c.kind in ("vmem", "ds"):
        n = max(n, 1)
    if p.stdata and set(p.stdata) & cw:
        n = max(n, 2)
    return n


def insert_nops(items):
    out = []
    for c in items:
        if c.kind != "label":
            need = 0
            dist = 0
            for p in reversed(out):
                if dist >= 12:
                    break
                if p.kind != "label":
                    need = max(need, need_states(p, c) - dist)
                dist += states_of(p)
            if need > 0:
                out.append(Ins(f"s_nop {need - 1}"))
        out.append(c)
    return out


def align8(items, start=0):
    pos = start
    last_prom = None
    mis = tot = 0
    for idx, i in enumerate(items):
        if i.kind == "label":
            if i.op.startswith(".p2align"):
                pos = 0
                last_prom = None
            continue
        if i.size == 8:
            tot += 1
            if pos % 8 == 4 and last_prom is not None:
                j = items[last_prom]
                parts = j.text.split(None, 1)
                j.text = parts[0] + "_e64 " + parts[1]
                j.size = 8
                j.promotable = False
                pos += 4
            if pos % 8 == 4:
                mis += 1
            last_prom = None
        elif i.promotable and pos % 8 == 0:
            last_prom = idx
        elif i.promotable and last_prom is None:
            last_prom = idx
        pos += i.size
    return mis, tot, pos


def finalize(stream, name="", verbose=True):
    items = insert_waits(stream.items)
    items = insert_nops(items)
    mis, tot, size = align8(items)
    if verbose:
        from collections import Counter
        c = Counter(i.kind for i in items)
        nops = sum(states_of(i) for i in items if i.op == "s_nop")
        print(f"[{name}] {len(items)} instrs, ~{size} bytes, misaligned8 {mis}/{tot}, nop states {nops}, {dict(c)}")
    return "\n".join(i.text for i in items)
```

```python
import sys
import struct
from ab import Stream, Ins, finalize

KN = "gated_mix__linear_kernel_hedgehog__glu_gated_geglu__prompt_kernel"
OPT = dict(stamps=False, rot="none", stop=None, codepf=True, diag=None)

ACT = 0
KVP = 0x780000
ZP = 0x800000
GATE = 0x810000
FLG = 0x820000
KVF = FLG
BF = FLG + 4096
NFLG = 4096 + 16384
STAMP = 0x830000
WS_SIZE = 0x860000
OOB = 0x7ff00000

sX, sQKV, sG, sU, sWO, sWD, sWS, sOUT, sPHI, sGW, sDBG = [28 + 4 * i for i in range(11)]
s_tb, s_j, s_w, s_th, s_ch, s_tt, s_ct, s_rot = range(72, 80)
s_xb, s_qb, s_fb, s_kb = 80, 81, 82, 83
s_o0, s_o1, s_o2 = 84, 85, 86
s_m4, s_m8, s_m6 = 87, 88, 89
s_t0, s_t1, s_t2, s_t3 = 90, 91, 92, 93
s_act, s_us, s_spin = 94, 95, 96
s_mk0, s_mk1 = 98, 100
s_pb = 4
s_stamp = 16


def srd(r):
    return f"s[{r}:{r + 3}]"


def vr(a, n=1):
    return f"v{a}" if n == 1 else f"v[{a}:{a + n - 1}]"


def ar(a, n=1):
    return f"a{a}" if n == 1 else f"a[{a}:{a + n - 1}]"


def f32(x):
    return "0x%08x" % struct.unpack("<I", struct.pack("<f", x))[0]


def mfma(d, a, b, c):
    return f"v_mfma_f32_32x32x16_bf16 {vr(d, 16)}, {a}, {b}, {vr(d, 16) if c else 0}"


class LDS:
    def __init__(self):
        self.busy = [None] * 160

    def free(self, lo, hi):
        return all(self.busy[k] is None for k in range(lo // 1024, (hi + 1023) // 1024))

    def claim(self, lo, hi, tag):
        assert self.free(lo, hi), (lo, hi, tag, self.busy)
        for k in range(lo // 1024, (hi + 1023) // 1024):
            self.busy[k] = tag

    def release(self, lo, hi):
        for k in range(lo // 1024, (hi + 1023) // 1024):
            assert self.busy[k] is not None
            self.busy[k] = None


class LoadQ:
    def __init__(self, lds):
        self.q = []
        self.lds = lds

    def add(self, pre, ins, tag, claim=None):
        self.q.append((pre, ins, tag, claim))

    def take(self, n=1):
        out = []
        while n > 0 and self.q:
            pre, ins, tag, claim = self.q[0]
            if claim is not None:
                if not self.lds.free(*claim):
                    break
                self.lds.claim(claim[0], claim[1], tag)
            self.q.pop(0)
            out.append([Ins(p) for p in pre] + [Ins(ins, tag)])
            n -= 1
        return out

    def issued(self, tag):
        return all(t != tag for _, _, t, _ in self.q)


def weave(S, main, lq, every):
    acc = 0
    for it in main:
        S.items.append(it)
        if isinstance(it, Ins):
            acc += 8 if it.kind in ("trans", "perm", "mfma", "ds", "vmem") else 4
        if acc >= every:
            u = lq.take(1)
            if u:
                S.extend(u[0])
            acc = 0


DIAG_NAMES = {"Q": ["pro", "a0", "loop", "gelu", "sm", "pub", "b0", "b1", "end"],
              "KH": ["pro", "a0", "seg1", "kv", "loop", "pub", "b0", "b1", "end"],
              "KL": ["pro", "a0", "seg1", "kv", "loop", "pub", "b0", "b1", "end"]}


class Gen:
    def __init__(self, kind):
        self.kind = kind
        self.S = Stream()
        self.slow = []
        self.lds = LDS()
        self.lq = LoadQ(self.lds)
        self.nstamp = 0
        self.npoll = 0

    def stamp(self):
        if OPT["diag"]:
            a, b, mult, unit = OPT["diag"].split(":")
            ins = "s_memrealtime" if unit == "r" else "s_memtime"
            names = DIAG_NAMES[self.kind]
            nm = names[self.nstamp]
            self.nstamp += 1
            if nm == a:
                self.S(f"{ins} s[18:19]\ns_waitcnt lgkmcnt(0)")
            if nm == b:
                self.S(f"{ins} s[20:21]\ns_waitcnt lgkmcnt(0)")
        if OPT["stamps"]:
            S = self.S
            S(f"s_memtime s[{s_stamp}:{s_stamp + 1}]")
            S("s_waitcnt lgkmcnt(0)")
            S(f"v_writelane_b32 v{VST}, s{s_stamp}, {self.nstamp}")
            self.nstamp += 1

    def poll_issue(self, vdst, vaddr, srdr, soff):
        self.S(f"buffer_load_dword v{vdst}, v{vaddr}, {srd(srdr)}, {soff} offen sc1")

    def poll_check(self, vdst, vaddr, srdr, soff, mask):
        S = self.S
        k = f"{self.kind}{self.npoll}"
        self.npoll += 1
        S(f"v_cmp_eq_u32 vcc, 1, v{vdst}")
        S(f"s_andn2_b32 s{s_t0}, {mask}, vcc_lo")
        S(f"s_cbranch_scc1 L_slow_{k}")
        S(f"L_back_{k}:")
        self.slow.append(f"""L_slow_{k}:
s_mov_b32 s{s_spin}, 0
L_spin_{k}:
s_sleep 3
buffer_load_dword v{vdst}, v{vaddr}, {srd(srdr)}, {soff} offen sc1
s_add_u32 s{s_spin}, s{s_spin}, 1
s_cmp_ge_u32 s{s_spin}, 0x8000
s_cbranch_scc1 L_back_{k}
s_waitcnt vmcnt(0)
v_cmp_eq_u32 vcc, 1, v{vdst}
s_nop 1
s_andn2_b32 s{s_t0}, {mask}, vcc_lo
s_cbranch_scc1 L_spin_{k}
s_branch L_back_{k}""")


VL = 1
VX = 2
VQ = 6
VG = 10
VU = 13
VXA = 16
VWA = 20
VW2 = 32
VW2D = 36
VL16 = 38
VL16D = 39
VW2A = 40
VPB = 43
VPOLL = 44
VPD = 45
VFLAG = 46
VONE = 47
VC = 48
VID = 52
VONES = 60
VPHI = 64
VT = 68
VST = 79
VFR = 80
ACC = 128

MISC = 144 * 1024
LOG2E = 1.4426950408889634
GC = 0.7978845608028654


def head(g):
    S = g.S
    S(f"""s_cmp_ge_u32 s2, 256
s_cbranch_scc1 L_end
s_load_dwordx16 s[4:19], s[0:1], 0
s_load_dwordx8 s[20:27], s[0:1], 64
v_lshrrev_b32 v{VT}, 6, v0
v_and_b32 v{VL}, 63, v0
s_and_b32 s{s_t0}, s2, 7
s_lshr_b32 s{s_t1}, s2, 3
v_readfirstlane_b32 s{s_w}, v{VT}
s_and_b32 s{s_tb}, s{s_t0}, 1
s_lshl_b32 s{s_tb}, s{s_tb}, 3
s_and_b32 s{s_ct}, s{s_t1}, 7
s_add_u32 s{s_tb}, s{s_tb}, s{s_ct}
s_lshr_b32 s{s_t2}, s{s_t1}, 3
s_lshl_b32 s{s_tt}, s{s_t0}, 2
s_add_u32 s{s_tt}, s{s_tt}, s{s_t2}
s_and_b32 s{s_j}, s{s_t0}, 6
s_lshr_b32 s{s_t3}, s{s_t2}, 1
s_add_u32 s{s_j}, s{s_j}, s{s_t3}
s_and_b32 s{s_th}, s{s_w}, 1
s_lshr_b32 s{s_ch}, s{s_w}, 1
s_lshl_b32 s{s_m4}, s{s_w}, 12""")
    rot = OPT["rot"]
    if rot == "none":
        S(f"s_mov_b32 s{s_rot}, 0")
    elif rot == "xcd":
        S(f"s_mov_b32 s{s_rot}, s{s_t0}")
    elif rot == "full":
        S(f"s_lshl_b32 s{s_rot}, s{s_t2}, 1\ns_add_u32 s{s_rot}, s{s_rot}, s{s_ct}\ns_add_u32 s{s_rot}, s{s_rot}, s{s_t0}\ns_and_b32 s{s_rot}, s{s_rot}, 7")
    elif rot == "half":
        S(f"s_add_u32 s{s_rot}, s{s_t2}, s{s_ct}\ns_lshl_b32 s{s_rot}, s{s_rot}, 2\ns_add_u32 s{s_rot}, s{s_rot}, s{s_t0}\ns_and_b32 s{s_rot}, s{s_rot}, 7")
    S(f"""v_lshrrev_b32 v{VT}, 3, v0
v_lshrrev_b32 v{VT + 1}, 4, v{VL}
v_xor_b32 v{VT + 1}, v{VT + 1}, v{VL}
v_and_b32 v{VT + 1}, 7, v{VT + 1}
v_lshrrev_b32 v{VT + 2}, 3, v{VT}
v_and_b32 v{VT}, 7, v{VT}
v_lshl_add_u32 v{VT}, v{VT + 2}, 5, v{VT}
v_lshlrev_b32 v{VT}, 10, v{VT}
v_lshl_add_u32 v{VX}, v{VT + 1}, 4, v{VT}
v_xor_b32 v{VX + 1}, 64, v{VX}
v_add_u32 v{VX + 1}, 7168, v{VX + 1}
v_add_u32 v{VX + 2}, 14336, v{VX}
v_add_u32 v{VX + 3}, 14336, v{VX + 1}
v_lshlrev_b32 v{VL16}, 4, v{VL}
s_lshl_b32 s{s_xb}, s{s_tb}, 17
s_lshl_b32 s{s_qb}, s{s_j}, 7
s_bitcmp1_b32 s{s_t2}, 0
s_cbranch_scc1 L_Q
s_cmp_ge_u32 s{s_j}, 6
s_cbranch_scc1 L_KL
L_split:
.p2align 3""")


def mk_srds(g, which):
    S = g.S
    tab = {sX: (4, 2048 * 1024), sQKV: (6, 512 * 3072), sPHI: (8, 32 * 512), sWO: (10, 512 * 1024), sG: (14, 512 * 2752),
           sU: (16, 512 * 2752), sWD: (18, 1376 * 1024), sGW: (20, 1024), sOUT: (22, 2048 * 1024), sDBG: (24, 256), sWS: (26, WS_SIZE)}
    for r in which:
        p, n = tab[r]
        S(f"s_mov_b64 s[{r}:{r + 1}], s[{p}:{p + 1}]\ns_mov_b32 s{r + 2}, {n}\ns_mov_b32 s{r + 3}, 0x20000")


def quad_parts(g):
    g.S(f"""v_bfe_u32 v{VT}, v{VL}, 2, 2
v_and_b32 v{VT + 1}, 3, v{VL}
v_lshlrev_b32 v{VT + 1}, 4, v{VT + 1}
v_lshrrev_b32 v{VT + 2}, 4, v{VL}""")


def voff_n2(g, dst, n, stride, wave_rows):
    S = g.S
    S(f"""v_lshrrev_b32 v{VT + 3}, 5, v{VL}
v_lshl_add_u32 v{VT + 3}, v{VT + 3}, 2, v{VT}""")
    if wave_rows:
        S(f"s_lshl_b32 s{s_t0}, s{s_w}, 4\nv_add_u32 v{VT + 3}, s{s_t0}, v{VT + 3}")
    S(f"""v_mul_u32_u24 v{VT + 3}, {stride}, v{VT + 3}
v_and_b32 v{VT + 4}, 1, v{VT + 2}
v_lshl_add_u32 v{VT + 4}, v{VT + 4}, 6, v{VT + 1}
v_add_u32 v{dst}, v{VT + 3}, v{VT + 4}""")
    for i in range(1, n):
        S(f"v_add_u32 v{dst + i}, {i * (8 * stride - 1024)}, v{dst}")


def voff_ffn3(g):
    S = g.S
    S(f"s_lshl_b32 s{s_t0}, s{s_w}, 4\nv_add_u32 v{VT + 5}, s{s_t0}, v{VT}")
    for i in range(3):
        S(f"""v_add_u32 v{VT + 3}, {4 * i}, v{VT + 2}
v_mul_u32_u24 v{VT + 4}, 43, v{VT + 3}
v_lshrrev_b32 v{VT + 4}, 7, v{VT + 4}
v_mul_u32_u24 v{VT + 6}, 3, v{VT + 4}
v_sub_u32 v{VT + 3}, v{VT + 3}, v{VT + 6}
v_lshl_add_u32 v{VT + 4}, v{VT + 4}, 2, v{VT + 5}
v_mul_u32_u24 v{VT + 4}, 2752, v{VT + 4}
v_lshl_add_u32 v{VT + 3}, v{VT + 3}, 6, v{VT + 1}
v_add_u32 v{VG + i}, v{VT + 3}, v{VT + 4}""")
        if i:
            S(f"v_subrev_u32 v{VG + i}, {1024 * i}, v{VG + i}")
        S(f"v_xor_b32 v{VU + i}, 32, v{VG + i}")


def unit_start(S, dst, jreg, isq, tmp):
    S(f"s_lshr_b32 s{dst}, {jreg}, 1\ns_mul_i32 s{dst}, s{dst}, 22\ns_and_b32 s{tmp}, {jreg}, 1")
    if isq:
        S(f"s_mul_i32 s{tmp}, s{tmp}, 6\ns_add_u32 s{dst}, s{dst}, s{tmp}\ns_cmp_ge_u32 {jreg}, 6\ns_cselect_b32 s{tmp}, 8, 10\ns_add_u32 s{dst}, s{dst}, s{tmp}")
    else:
        S(f"s_mul_i32 s{tmp}, s{tmp}, 5\ns_add_u32 s{dst}, s{dst}, s{tmp}\ns_cmp_eq_u32 {jreg}, 7\ns_cselect_b32 s{tmp}, 1, 0\ns_sub_u32 s{dst}, s{dst}, s{tmp}")


def kb_pre(j):
    return [f"s_add_u32 s{s_kb}, s{s_rot}, {j}", f"s_and_b32 s{s_kb}, s{s_kb}, 7"]


def dma(v, r, so, imm):
    return f"buffer_load_dwordx4 v{v}, {srd(r)}, s{so} offen" + (f" offset:{imm}" if imm else "") + " lds"


def add_x(g, j, base):
    for i in range(4):
        pre = []
        if i == 0:
            pre = kb_pre(j) + [f"s_lshl_b32 s{s_o0}, s{s_kb}, 7", f"s_add_u32 m0, s{s_m4}, {base}", f"s_add_u32 s{s_o0}, s{s_o0}, s{s_xb}"]
        g.lq.add(pre, dma(VX + i, sX, s_o0, 1024 * i), f"A{j}", (base, base + 16384) if i == 0 else None)


def add_rows(g, tag, v0, n, r, stride, sbase, so, mreg, mbase, claim, newkb=None, newso=True):
    for i in range(n):
        pre = []
        if i == 0:
            if newkb is not None:
                pre += kb_pre(newkb)
            if newso:
                pre += [f"s_mul_i32 s{so}, s{s_kb}, {64 * stride}", f"s_add_u32 m0, s{mreg}, {mbase}", f"s_add_u32 s{so}, s{so}, s{sbase}"]
            else:
                pre += [f"s_add_u32 m0, s{mreg}, {mbase}"]
        g.lq.add(pre, dma(v0 + i, r, so, 1024 * i), tag, claim if i == 0 else None)


def misc_setup(g):
    S = g.S
    if OPT["stamps"]:
        S(f"v_mov_b32 v{VST}, 0")
    S(f"""v_bfe_u32 v{VT}, v{VL}, 2, 2
v_and_b32 v{VT + 1}, 3, v{VL}
v_lshlrev_b32 v{VT + 1}, 3, v{VT + 1}
v_lshl_add_u32 v{VPB}, v{VT}, 6, v{VT + 1}
v_lshrrev_b32 v{VT + 2}, 5, v{VL}
v_bfe_u32 v{VT + 3}, v{VL}, 4, 1
v_and_b32 v{VT + 4}, 31, v{VL}
v_bfe_u32 v{VT + 5}, v{VL}, 1, 3
v_xor_b32 v{VT + 5}, v{VT + 5}, v{VT + 2}
v_lshlrev_b32 v{VT + 5}, 4, v{VT + 5}
v_lshl_add_u32 v{VT + 5}, v{VT + 4}, 7, v{VT + 5}
s_lshl_b32 s{s_t0}, s{s_th}, 13
v_add_u32 v{VXA}, s{s_t0}, v{VT + 5}
v_xor_b32 v{VXA + 1}, 32, v{VXA}
v_xor_b32 v{VXA + 2}, 64, v{VXA}
v_xor_b32 v{VXA + 3}, 0x60, v{VXA}""")
    S(f"""v_lshl_add_u32 v{VT + 6}, v{VT + 3}, 5, v{VPB}
v_lshl_add_u32 v{VW2A}, v{VT + 2}, 9, v{VT + 6}
v_add_u32 v{VW2A}, s{s_m4}, v{VW2A}
v_add_u32 v{VW2A + 1}, 0x10000, v{VW2A}
v_add_u32 v{VW2A + 2}, 0x20000, v{VW2A}""")


def consts(g):
    S = g.S
    S(f"""v_mov_b32 v{VC}, {f32(-2 * LOG2E * GC * 0.044715)}
v_mov_b32 v{VC + 1}, {f32(-2 * LOG2E * GC)}
v_mov_b32 v{VC + 2}, {f32(LOG2E)}
v_mov_b32 v{VC + 3}, {f32(1e-6)}
v_mov_b32 v{VONE}, 1
v_mov_b32 v{VT}, {OOB}
v_lshlrev_b32 v{VT + 1}, 2, v{VL}
v_cmp_gt_u32 vcc, 16, v{VL}
v_cndmask_b32 v{VPOLL}, v{VT}, v{VT + 1}, vcc
v_cmp_eq_u32 vcc, 0, v{VL}
v_cndmask_b32 v{VFLAG}, v{VT}, v{VT + 1}, vcc
s_mov_b32 s{s_mk0}, 0xffff0000
s_mov_b32 s{s_mk0 + 1}, 0xffff0000
s_mov_b32 s{s_mk1}, 0
s_mov_b32 s{s_mk1 + 1}, -1""")
    for i in range(4):
        S(f"v_mov_b32 v{VONES + i}, 0x3f803f80")
    S(f"""v_lshrrev_b32 v{VT}, 5, v{VL}
v_and_b32 v{VT + 1}, 31, v{VL}
v_lshlrev_b32 v{VT}, 2, v{VT}
v_sub_u32 v{VT}, v{VT + 1}, v{VT}
v_mov_b32 v{VT + 2}, 0x3f80
v_mov_b32 v{VT + 3}, 0x3f800000""")
    for jj in range(2):
        for d in range(4):
            i = 2 * d
            row = 16 * jj + 8 * (i >> 2) + (i & 3)
            S(f"""v_cmp_eq_u32 vcc, {row}, v{VT}
v_cndmask_b32 v{VT + 4}, 0, v{VT + 2}, vcc
v_cmp_eq_u32 vcc, {row + 1}, v{VT}
v_cndmask_b32 v{VID + 4 * jj + d}, v{VT + 4}, v{VT + 3}, vcc""")


def phi_load(g):
    S = g.S
    S(f"""s_lshl_b32 s{s_t0}, s{s_j}, 1
s_add_u32 s{s_t0}, s{s_t0}, s{s_ch}
s_lshl_b32 s{s_t0}, s{s_t0}, 10
s_lshr_b32 s{s_t1}, s{s_m4}, 2
s_add_u32 m0, s{s_t1}, {MISC}""")
    S(dma(VL16, sPHI, s_t0, 0), tag="phi")


def phi_read(g):
    S = g.S
    S(f"""v_lshrrev_b32 v{VT}, 5, v{VL}
v_bfe_u32 v{VT + 1}, v{VL}, 2, 2
v_lshl_add_u32 v{VT}, v{VT}, 2, v{VT + 1}
v_lshlrev_b32 v{VT}, 5, v{VT}
v_and_b32 v{VT + 1}, 3, v{VL}
v_lshl_add_u32 v{VT}, v{VT + 1}, 3, v{VT}
v_bfe_u32 v{VT + 1}, v{VL}, 4, 1
v_lshl_add_u32 v{VT}, v{VT + 1}, 9, v{VT}
s_lshr_b32 s{s_t1}, s{s_m4}, 2
s_add_u32 s{s_t1}, s{s_t1}, {MISC}
v_add_u32 v{VT}, s{s_t1}, v{VT}""")
    S.wait(vm_tag="phi")
    S(f"ds_read_b64_tr_b16 {vr(VPHI, 2)}, v{VT}\nds_read_b64_tr_b16 {vr(VPHI + 2, 2)}, v{VT} offset:256")


def zero_flags(g):
    S = g.S
    S(f"""s_cmp_lg_u32 s2, 0
s_cbranch_scc1 L_nz_{g.kind}
v_mov_b32 v{VFR}, 0
v_mov_b32 v{VFR + 1}, 0
v_mov_b32 v{VFR + 2}, 0
v_mov_b32 v{VFR + 3}, 0
s_mul_i32 s{s_t0}, s{s_w}, 5120
s_add_u32 s{s_t0}, s{s_t0}, {FLG}
s_add_u32 s{s_t1}, s{s_t0}, 4096""")
    for i in range(4):
        S(f"buffer_store_dwordx4 {vr(VFR, 4)}, v{VL16}, {srd(sWS)}, s{s_t0} offen offset:{1024 * i} sc1", count=False)
    S(f"buffer_store_dwordx4 {vr(VFR, 4)}, v{VL16}, {srd(sWS)}, s{s_t1} offen sc1", count=False)
    S(f"L_nz_{g.kind}:")


def set_ready(g):
    S = g.S
    S(f"""s_or_b32 s{s_t0}, s2, s{s_w}
s_cmp_lg_u32 s{s_t0}, 0
s_cbranch_scc1 L_nr_{g.kind}""")
    S(f"buffer_store_dword v{VONE}, v{VFLAG}, {srd(sDBG)}, 0 offen sc1", count=False)
    S(f"L_nr_{g.kind}:")


def code_prefetch(g, nbytes):
    if not OPT["codepf"]:
        return
    S = g.S
    lines = (nbytes // 128 + 31) // 32
    S(f"""s_getpc_b64 s[{s_mk0}:{s_mk0 + 1}]
s_lshl_b32 s{s_t0}, s{s_ct}, 2
s_add_u32 s{s_t0}, s{s_t0}, s{s_w}
s_mul_i32 s{s_t0}, s{s_t0}, {lines * 128}
v_lshlrev_b32 v{VT}, 7, v{VL}
v_add_u32 v{VT}, s{s_t0}, v{VT}
s_mov_b64 exec, {(1 << lines) - 1}
global_load_dword v{VPD}, v{VT}, s[{s_mk0}:{s_mk0 + 1}]
s_mov_b64 exec, -1""")


def gelu_block(acc, T, Y, O):
    L = []
    P = range(4)
    p = lambda b, i: vr(b + 2 * i, 2)
    L += [f"v_pk_mul_f32 {p(T, i)}, {p(acc, i)}, {p(acc, i)}" for i in P]
    L += [f"v_pk_fma_f32 {p(T, i)}, {p(T, i)}, {vr(VC, 2)}, {vr(VC, 2)} op_sel:[0,0,1] op_sel_hi:[1,0,1]" for i in P]
    L += [f"v_pk_mul_f32 {p(T, i)}, {p(T, i)}, {p(acc, i)}" for i in P]
    for i in P:
        L += [f"v_exp_f32 v{T + 2 * i}, v{T + 2 * i}", f"v_exp_f32 v{T + 2 * i + 1}, v{T + 2 * i + 1}", f"v_pk_mul_f32 {p(Y, i)}, {p(acc, i)}, {p(acc + 8, i)}"]
    L += [f"v_pk_add_f32 {p(T, i)}, {p(T, i)}, 1.0 op_sel_hi:[1,0]" for i in P]
    L += [f"v_rcp_f32 v{T + i}, v{T + i}" for i in range(8)]
    L += [f"v_pk_mul_f32 {p(Y, i)}, {p(Y, i)}, {p(T, i)}" for i in P]
    L += [f"v_cvt_pk_bf16_f32 v{O + i}, v{Y + 2 * i}, v{Y + 2 * i + 1}" for i in P]
    return L


def softmax_inst(P, E, M, O):
    L = []
    p = lambda b, i: vr(b + 2 * i, 2)
    a, b = M, M + 1
    L += [f"v_max3_f32 v{a}, v{P}, v{P + 1}, v{P + 2}", f"v_max3_f32 v{b}, -v{P}, -v{P + 1}, -v{P + 2}",
          f"v_max3_f32 v{a}, v{a}, v{P + 3}, v{P + 4}", f"v_max3_f32 v{b}, v{b}, -v{P + 3}, -v{P + 4}",
          f"v_max3_f32 v{a}, v{a}, v{P + 5}, v{P + 6}", f"v_max3_f32 v{b}, v{b}, -v{P + 5}, -v{P + 6}",
          f"v_max_f32 v{a}, v{a}, v{P + 7}", f"v_max_f32 v{b}, v{b}, -v{P + 7}",
          f"v_permlane32_swap_b32 v{a}, v{b}",
          f"v_max_f32 v{a}, v{a}, v{b}",
          f"v_mul_f32 v{b}, -v{a}, v{VC + 2}",
          f"v_mul_f32 v{a}, -v{a}, v{VC + 2}",
          f"v_permlane32_swap_b32 v{a}, v{b}"]
    for i in range(4):
        L += [f"v_pk_fma_f32 {p(E, i)}, {p(P, i)}, {vr(VC + 2, 2)}, {vr(M, 2)} op_sel_hi:[1,0,0]"]
    for i in range(4):
        L += [f"v_pk_fma_f32 {p(E + 8, i)}, {p(P, i)}, {vr(VC + 2, 2)}, {vr(M, 2)} op_sel:[0,0,1] op_sel_hi:[1,0,1] neg_lo:[1,0,0] neg_hi:[1,0,0]"]
    L += [f"v_exp_f32 v{E + i}, v{E + i}" for i in range(16)]
    L += [f"v_pk_add_f32 {p(P, 0)}, {p(E, 0)}, {p(E, 1)}", f"v_pk_add_f32 {p(P, 1)}, {p(E, 2)}, {p(E, 3)}",
          f"v_pk_add_f32 {p(P, 2)}, {p(E + 8, 0)}, {p(E + 8, 1)}", f"v_pk_add_f32 {p(P, 3)}, {p(E + 8, 2)}, {p(E + 8, 3)}",
          f"v_pk_add_f32 {p(P, 0)}, {p(P, 0)}, {p(P, 1)}", f"v_pk_add_f32 {p(P, 2)}, {p(P, 2)}, {p(P, 3)}",
          f"v_add_f32 v{a}, v{P}, v{P + 1}", f"v_add_f32 v{b}, v{P + 4}, v{P + 5}",
          f"v_permlane32_swap_b32 v{a}, v{b}",
          f"v_add_f32 v{a}, v{a}, v{b}",
          f"v_rcp_f32 v{a}, v{a}",
          f"v_mov_b32 v{b}, v{a}",
          f"v_permlane32_swap_b32 v{a}, v{b}"]
    L += [f"v_pk_mul_f32 {p(E, i)}, {p(E, i)}, {vr(M, 2)} op_sel_hi:[1,0]" for i in range(4)]
    L += [f"v_pk_mul_f32 {p(E + 8, i)}, {p(E + 8, i)}, {vr(M, 2)} op_sel:[0,1] op_sel_hi:[1,1]" for i in range(4)]
    L += [f"v_cvt_pk_bf16_f32 v{O + i}, v{E + 2 * i}, v{E + 2 * i + 1}" for i in range(8)]
    return L


def zipl(*ls):
    out = []
    n = max(len(l) for l in ls)
    for i in range(n):
        for l in ls:
            if i < len(l):
                out.append(l[i])
    return out


def I(lines, tag=None):
    return [Ins(x, tag) if isinstance(x, str) else x for x in lines]


def kstep(g, mf, reads, nload, rd_per_gap=2, barrier=None, wait0=True):
    S = g.S
    reads = list(reads)
    if wait0 or barrier is not None:
        S.wait(lgkm0=True)
    n = len(mf)
    first_ld = min((len(reads) + rd_per_gap - 1) // rd_per_gap, n - 1)
    left = nload
    for i, m in enumerate(mf):
        S(m)
        if i == 0 and barrier is not None:
            tag, rel = barrier
            if tag is not None:
                assert g.lq.issued(tag), tag
                S.wait(vm_tag=tag)
            S("s_barrier")
            for lo, hi in rel:
                g.lds.release(lo, hi)
        k = rd_per_gap if i < n - 1 else len(reads)
        for r in reads[:k]:
            S(r)
        reads = reads[k:]
        if i >= first_ld and left > 0:
            gaps = n - i
            t = (left + gaps - 1) // gaps
            for u in g.lq.take(t):
                S.extend(u)
            left -= t


W2GRP = {}


def pb_setup(g):
    S = g.S
    S(f"s_add_u32 s{s_t1}, s{s_w}, 4")
    unit_start(S, 4, f"s{s_w}", True, s_t0)
    unit_start(S, 5, f"s{s_t1}", True, s_t0)
    unit_start(S, 6, f"s{s_w}", False, s_t0)
    unit_start(S, 7, f"s{s_t1}", False, s_t0)
    S(f"s_mul_i32 s{s_t0}, s{s_tt}, 118\ns_lshl_b32 s{s_t2}, s{s_ct}, 7")
    for i in range(4):
        S(f"s_add_u32 s{8 + i}, s{4 + i}, s{s_t0}\ns_lshl_b32 s{8 + i}, s{8 + i}, 11\ns_lshl_b32 s{4 + i}, s{4 + i}, 14\ns_add_u32 s{4 + i}, s{4 + i}, s{s_t2}")
    S(f"""s_lshl_b32 s{s_t1}, s{s_w}, 2
s_add_u32 s12, s{s_t1}, s{s_t0}
s_add_u32 s12, s12, 86
s_lshl_b32 s12, s12, 11
s_lshl_b32 s13, s{s_w}, 16
s_add_u32 s13, s13, s{s_t2}
s_lshl_b32 s14, s{s_tt}, 2
s_add_u32 s14, s14, s{s_w}
s_lshl_b32 s14, s14, 7
s_add_u32 s14, s14, {BF}""")
    quad_parts(g)
    voff_n2(g, VW2, 4, 1024, False)
    S(f"""s_cmp_ge_u32 s{s_w}, 2
s_cselect_b32 s{s_t0}, {OOB}, 0
v_add_u32 v{VW2D}, s{s_t0}, v{VW2 + 2}
v_add_u32 v{VW2D + 1}, s{s_t0}, v{VW2 + 3}
v_add_u32 v{VL16D}, s{s_t0}, v{VL16}""")


PB_K = [("QH", p, i) for p in range(2) for i in range(6)] + [("O", p, i) for p in range(2) for i in range(4)] + \
       [("KH", 0, 0), ("KH", 0, 1), ("KH", 0, 2), ("KH", 0, 3), ("KH", 0, 4), ("KH", 1, 4), ("KH", 1, 0), ("KH", 1, 1), ("KH", 1, 2), ("KH", 1, 3)]


def w2_src(k):
    part, p, i = PB_K[k]
    if part == "QH":
        return sWD, 4 + p, i * 16384
    if part == "KH":
        return sWD, 6 + p, i * 16384
    return sWO, 13, p * 262144 + i * 16384


def act_src(k):
    part, p, i = PB_K[k]
    if part == "QH":
        return 8 + p, i * 2048
    if part == "KH":
        return 10 + p, i * 2048
    return 12, p * 16 * 2048 + i * 2048


def add_w2(g, grp, base):
    k = 2 * grp
    r, sb, off = w2_src(k)
    tag = f"W{grp}"
    pre = [f"s_add_u32 m0, s{s_m4}, {base}", f"s_add_u32 s{s_o1}, s{sb}, {off}"]
    g.lq.add(pre, dma(VW2, r, s_o1, 0), tag, (base, base + 16384))
    g.lq.add([], dma(VW2 + 1, r, s_o1, 1024), tag)
    if PB_K[k + 1] == ("KH", 1, 4):
        r2, sb2, off2 = w2_src(k + 1)
        g.lq.add([f"s_add_u32 s{s_o1}, s{sb2}, {off2 - 16384}"], dma(VW2D, r2, s_o1, 2048), tag)
        g.lq.add([], dma(VW2D + 1, r2, s_o1, 3072), tag)
    else:
        g.lq.add([], dma(VW2 + 2, r, s_o1, 2048), tag)
        g.lq.add([], dma(VW2 + 3, r, s_o1, 3072), tag)


def areg(k, sub):
    return 8 * k + 4 * sub


def add_act(g, k0, k1):
    k = k0
    while k < k1:
        sb, off = act_src(k)
        two = k + 1 < k1 and act_src(k + 1) == (sb, off + 2048)
        va = VL16D if PB_K[k] == ("KH", 1, 4) else VL16
        n = 4 if two else 2
        for i in range(n):
            pre = [f"s_add_u32 s{s_o2}, s{sb}, {off}"] if i == 0 else []
            g.lq.add(pre, f"buffer_load_dwordx4 {ar(areg(k + i // 2, i % 2), 4)}, v{va}, {srd(sWS)}, s{s_o2} offen" +
                     (f" offset:{1024 * i}" if i else "") + " sc1", f"act{k + i // 2}")
        k += n // 2


def phase_b(g, grp_addr):
    S = g.S
    lq = g.lq
    addr = dict(enumerate(grp_addr))
    for i in range(6):
        addr[9 + i] = addr[i]
    AB, AA = ACC, ACC + 64
    VGT = VT

    def reads(k):
        a = addr[k // 2] + (k % 2) * 2048
        base, off = VW2A + a // 65536, a % 65536
        fb = VFR + 8 * (k % 2)
        return [f"ds_read_b64_tr_b16 {vr(fb + 4 * c + 2 * t, 2)}, v{base} offset:{off + 256 * c + 1024 * t}" for c in range(2) for t in range(2)]

    for u in lq.take(1000):
        S.extend(u)
    assert not lq.q
    g.poll_issue(VPD, VPOLL, sWS, "s14")
    S.wait(vm_tag="W0")
    for r in reads(0):
        S(r)
    g.stamp()
    started = set()
    for k in range(30):
        part = PB_K[k][0]
        acc = AA if part == "O" else AB
        first = acc not in started
        started.add(acc)
        fb = VFR + 8 * (k % 2)
        mf = [mfma(acc + 32 * s + 16 * c, vr(fb + 4 * c, 4), ar(areg(k, s), 4), not first) for s in range(2) for c in range(2)]
        if k == 2:
            g.poll_check(VPD, VPOLL, sWS, "s14", 0xf0)
            add_act(g, 12, 20)
        if k == 8:
            g.poll_issue(VPD, VPOLL, sWS, "s14")
        if k == 12:
            g.poll_check(VPD, VPOLL, sWS, "s14", 0x3f00)
            add_act(g, 20, 30)
            S(f"""s_lshl_b32 s{s_t0}, s{s_tt}, 8
s_add_u32 s{s_t0}, s{s_t0}, {GATE}
v_and_b32 v{VT + 2}, 31, v{VL}
v_lshlrev_b32 v{VT + 2}, 2, v{VT + 2}
buffer_load_dword v{VGT}, v{VT + 2}, {srd(sWS)}, s{s_t0} offen sc1
buffer_load_dword v{VGT + 1}, v{VT + 2}, {srd(sWS)}, s{s_t0} offen offset:128 sc1""")
        while not lq.issued(f"act{k}"):
            u = lq.take(1)
            assert u
            S.extend(u[0])
        S.wait(lgkm0=True)
        if k % 2 == 1 and k // 2 < 6:
            g.lds.release(addr[k // 2], addr[k // 2] + 16384)
            add_w2(g, 9 + k // 2, addr[k // 2])
        rd = []
        if k + 1 < 30:
            rd = reads(k + 1)
            if (k + 1) % 2 == 0:
                while not lq.issued(f"W{(k + 1) // 2}"):
                    u = lq.take(1)
                    assert u
                    S.extend(u[0])
        for i, m in enumerate(mf):
            S(m)
            if i == 0 and rd and (k + 1) % 2 == 0:
                S.wait(vm_tag=f"W{(k + 1) // 2}")
            if i < 2:
                for r in rd[2 * i:2 * i + 2]:
                    S(r)
            else:
                for u in lq.take(2 if i == 2 else 1):
                    S.extend(u)
    assert not lq.q
    g.stamp()
    S(f"""v_mul_f32 v{VGT}, -v{VGT}, v{VC + 2}
v_mul_f32 v{VGT + 1}, -v{VGT + 1}, v{VC + 2}
v_exp_f32 v{VGT}, v{VGT}
v_exp_f32 v{VGT + 1}, v{VGT + 1}
v_add_f32 v{VGT}, 1.0, v{VGT}
v_add_f32 v{VGT + 1}, 1.0, v{VGT + 1}
v_rcp_f32 v{VGT}, v{VGT}
v_rcp_f32 v{VGT + 1}, v{VGT + 1}
v_sub_f32 v{VGT + 2}, 1.0, v{VGT}
v_sub_f32 v{VGT + 3}, 1.0, v{VGT + 1}""")
    PITCH, WB = 272, 64 * 272
    S(f"""v_and_b32 v{VT + 4}, 31, v{VL}
v_mul_u32_u24 v{VT + 4}, {PITCH}, v{VT + 4}
v_lshrrev_b32 v{VT + 5}, 5, v{VL}
v_lshl_add_u32 v{VT + 4}, v{VT + 5}, 4, v{VT + 4}
s_mul_i32 s{s_t0}, s{s_w}, {WB}
v_add_u32 v{VT + 4}, s{s_t0}, v{VT + 4}""")
    for s in range(2):
        osel = "op_sel_hi:[1,0]" if s == 0 else "op_sel:[0,1] op_sel_hi:[1,1]"
        for i in range(16):
            S(f"v_pk_mul_f32 {vr(AA + 32 * s + 2 * i, 2)}, {vr(AA + 32 * s + 2 * i, 2)}, {vr(VGT, 2)} {osel}")
    S("s_barrier")
    for s in range(2):
        osel = "op_sel_hi:[1,0,1]" if s == 0 else "op_sel:[0,1,0] op_sel_hi:[1,1,1]"
        for c in range(2):
            for q in range(4):
                b = 32 * s + 16 * c + 4 * q
                for i in range(2):
                    S(f"v_pk_fma_f32 {vr(AB + b + 2 * i, 2)}, {vr(AB + b + 2 * i, 2)}, {vr(VGT + 2, 2)}, {vr(AA + b + 2 * i, 2)} {osel}")
                S(f"ds_write_b128 v{VT + 4}, {vr(AB + b, 4)} offset:{s * 32 * PITCH + c * 128 + q * 32}")
    S(f"""v_lshrrev_b32 v{VT + 5}, 3, v0
v_and_b32 v{VT + 6}, 7, v0
v_mul_u32_u24 v{VT + 7}, {PITCH}, v{VT + 5}
v_lshl_add_u32 v{VT + 7}, v{VT + 6}, 5, v{VT + 7}
v_lshlrev_b32 v{VT + 5}, 10, v{VT + 5}
v_lshl_add_u32 v{VT + 5}, v{VT + 6}, 4, v{VT + 5}
s_lshl_b32 s{s_t0}, s{s_tt}, 16
s_lshl_b32 s{s_t1}, s{s_ct}, 7
s_add_u32 s{s_t0}, s{s_t0}, s{s_t1}
s_add_u32 s{s_t1}, s{s_t0}, 32768""")
    S.wait(lgkm0=True)
    S("s_barrier")
    R = ACC
    for h in range(2):
        for wv in range(4):
            for q in range(2):
                S(f"ds_read_b128 {vr(R + 32 * h + 8 * wv + 4 * q, 4)}, v{VT + 7} offset:{wv * WB + h * 32 * PITCH + q * 16}")
    for h in range(2):
        b = R + 32 * h
        for i in range(4):
            S(f"v_pk_add_f32 {vr(b + 2 * i, 2)}, {vr(b + 2 * i, 2)}, {vr(b + 8 + 2 * i, 2)}")
        for i in range(4):
            S(f"v_pk_add_f32 {vr(b + 16 + 2 * i, 2)}, {vr(b + 16 + 2 * i, 2)}, {vr(b + 24 + 2 * i, 2)}")
        for i in range(4):
            S(f"v_pk_add_f32 {vr(b + 2 * i, 2)}, {vr(b + 2 * i, 2)}, {vr(b + 16 + 2 * i, 2)}")
        for i in range(4):
            S(f"v_cvt_pk_bf16_f32 v{b + 8 + i}, v{b + 2 * i}, v{b + 2 * i + 1}")
        S(f"buffer_store_dwordx4 {vr(b + 8, 4)}, v{VT + 5}, {srd(sOUT)}, s{s_t0 + h} offen")
    finish(g)


def finish(g):
    S = g.S
    if OPT["diag"]:
        a, b, mult, unit = OPT["diag"].split(":")
        S.wait(vm0=True)
        g.stamp()
        if a == "entry":
            S("s_mov_b32 s18, s3")
        S(f"s_sub_u32 s22, s20, s18\ns_mul_i32 s22, s22, {mult}")
        if unit == "c":
            S("s_lshr_b32 s22, s22, 4")
        S(f"""s_min_u32 s22, s22, 20000
s_memrealtime s[24:25]
s_waitcnt lgkmcnt(0)
L_dg_{g.kind}:
s_memrealtime s[26:27]
s_waitcnt lgkmcnt(0)
s_sub_u32 s26, s26, s24
s_cmp_lt_u32 s26, s22
s_cbranch_scc1 L_dg_{g.kind}""")
    if OPT["stamps"]:
        S.wait(vm0=True)
        g.stamp()
        S(f"""s_memrealtime s[{s_stamp}:{s_stamp + 1}]
s_waitcnt lgkmcnt(0)
v_writelane_b32 v{VST}, s{s_stamp}, 30
v_writelane_b32 v{VST}, s3, 31
s_lshl_b32 s{s_t0}, s2, 2
s_add_u32 s{s_t0}, s{s_t0}, s{s_w}
s_lshl_b32 s{s_t0}, s{s_t0}, 7
s_add_u32 s{s_t0}, s{s_t0}, {STAMP}
v_lshlrev_b32 v{VT}, 2, v{VL}
s_mov_b64 exec, 0xffffffff
buffer_store_dword v{VST}, v{VT}, {srd(sWS)}, s{s_t0} offen""")
    S("s_endpgm")


def flag_store(g, soff, vflag=VFLAG):
    g.S(f"buffer_store_dword v{VONE}, v{vflag}, {srd(sWS)}, s{soff} offen sc1")


def bf_addr(g, dst, stage):
    g.S(f"""s_lshl_b32 s{dst}, s{s_tb}, 1
s_add_u32 s{dst}, s{dst}, s{s_th}
s_lshl_b32 s{dst}, s{dst}, 2
s_and_b32 s{s_t0}, s{s_j}, 3
s_add_u32 s{dst}, s{dst}, s{s_t0}
s_lshl_b32 s{dst}, s{dst}, 5
s_lshr_b32 s{s_t0}, s{s_j}, 2
s_lshl_b32 s{s_t0}, s{s_t0}, 1
s_add_u32 s{dst}, s{dst}, s{s_t0}
s_add_u32 s{dst}, s{dst}, s{s_ch}
s_lshl_b32 s{dst}, s{dst}, 2
s_add_u32 s{dst}, s{dst}, {BF + 16 * stage}""")


def act_base(g):
    g.S(f"s_lshl_b32 s{s_act}, s{s_tb}, 1\ns_add_u32 s{s_act}, s{s_act}, s{s_th}\ns_mul_i32 s{s_act}, s{s_act}, {118 * 2048}")


def jct(g, dst):
    g.S(f"s_lshl_b32 s{dst}, s{s_j}, 1\ns_add_u32 s{dst}, s{dst}, s{s_ch}\ns_lshl_b32 s{dst}, s{dst}, 1\ns_add_u32 s{dst}, s{dst}, s{s_th}")


def ffn_addr(g, dst, idx_expr_sreg, n, base):
    up = n * 1024
    g.S(f"""s_lshr_b32 s{s_t1}, s{idx_expr_sreg}, 1
s_lshl_b32 s{s_t1}, s{s_t1}, 8
s_add_u32 s{s_t1}, s{s_t1}, {base}
s_and_b32 s{s_t2}, s{idx_expr_sreg}, 1
v_xor_b32 v{VT + 7}, s{s_t2}, v{VT + 3}
v_lshl_add_u32 v{VT + 7}, v{VT + 7}, 5, v{VPB}
v_mul_u32_u24 v{VT + 8}, {up}, v{VT + 3}
v_add3_u32 v{VT + 7}, v{VT + 7}, v{VT + 8}, s{s_t1}
v_mul_u32_u24 v{VT + 8}, {n * 512}, v{VT + 2}
v_add_u32 v{dst}, v{VT + 7}, v{VT + 8}""")


def gen_q():
    g = Gen("Q")
    S, lq = g.S, g.lq
    head(g)
    S("L_Q:")
    if OPT["stamps"]:
        S("s_memrealtime s[98:99]")
    if OPT["diag"]:
        S(("s_memrealtime" if OPT["diag"].endswith("r") else "s_memtime") + " s[98:99]")
    XR = [0, 16384, 32768]
    WR = [49152, 81920, 114688]
    quad_parts(g)
    voff_n2(g, VQ, 2, 3072, True)
    voff_ffn3(g)
    unit_start(S, s_us, f"s{s_j}", True, s_t0)
    S(f"s_lshl_b32 s{s_fb}, s{s_us}, 5\ns_lshl_b32 s{s_m8}, s{s_w}, 13")
    S("s_waitcnt lgkmcnt(0)")
    if OPT["stamps"] or OPT["diag"]:
        S("s_mov_b32 s3, s98")
    mk_srds(g, [sX, sQKV, sG, sU])
    for j in range(8):
        add_x(g, j, XR[j % 3])
        w = WR[j % 3]
        add_rows(g, f"A{j}", VQ, 2, sQKV, 3072, s_qb, s_o1, s_m8, w, (w, w + 32768))
        add_rows(g, f"A{j}", VG, 3, sG, 2752, s_fb, s_o2, s_m8, w + 2048, None)
        add_rows(g, f"A{j}", VU, 3, sU, 2752, s_fb, s_o2, s_m8, w + 5120, None, newso=False)
    for u in lq.take(12):
        S.extend(u)
    code_prefetch(g, CODE_SZ["Q"])
    mk_srds(g, [sWS, sPHI, sDBG, sWO, sWD, sOUT])
    misc_setup(g)
    S(f"""v_lshl_add_u32 v{VWA}, v{VT + 2}, 10, v{VT + 6}
s_lshl_b32 s{s_t0}, s{s_ch}, 8
s_add_u32 s{s_t0}, s{s_t0}, {WR[0]}
v_add_u32 v{VWA}, s{s_t0}, v{VWA}""")
    for b in range(3):
        S(f"s_mul_i32 s{s_t0}, s{s_ch}, 3\ns_add_u32 s{s_t0}, s{s_t0}, {b}")
        ffn_addr(g, VWA + 1 + b, s_t0, 3, WR[0] + 2048)
    for b in range(4):
        S(f"v_add_u32 v{VWA + 4 + b}, 0x10000, v{VWA + b}")
    phi_load(g)
    for u in lq.take(12):
        S.extend(u)
    consts(g)
    pb_setup(g)
    act_base(g)
    phi_read(g)
    g.stamp()
    S.wait(vm_tag="A0")
    S("s_barrier")
    g.stamp()

    def reads(ks):
        j, kk = ks // 4, ks % 4
        buf = ks % 2
        fx, fw = VFR + 8 * buf, VFR + 16 + 16 * buf
        o = WR[j % 3] - WR[0] + kk * 8192
        st = 4 if o >= 65536 else 0
        o %= 65536
        xr = [f"ds_read_b128 {vr(fx + 4 * s, 4)}, v{VXA + kk} offset:{XR[j % 3] + 4096 * s}" for s in range(2)]
        wr = [[f"ds_read_b64_tr_b16 {vr(fw + 4 * b + 2 * t, 2)}, v{VWA + st + b} offset:{o + t * (512 if b == 0 else 768)}" for t in range(2)] for b in range(4)]
        return [xr[0], xr[1]] + wr[0] + wr[1] + wr[2] + wr[3]

    for r in reads(0):
        S(r)
    grp = [XR[2], WR[2], WR[2] + 16384, XR[0], WR[0], WR[0] + 16384, XR[1], WR[1], WR[1] + 16384]
    for i, a in enumerate(grp):
        add_w2(g, i, a)
    for ks in range(32):
        j, kk = ks // 4, ks % 4
        buf = ks % 2
        fx, fw = VFR + 8 * buf, VFR + 16 + 16 * buf
        mf = [mfma(ACC + (2 * b + s) * 16, vr(fw + 4 * b, 4), vr(fx + 4 * s, 4), ks > 0) for b in range(4) for s in range(2)]
        bar = None
        if kk == 3:
            bar = (f"A{j + 1}" if j < 7 else None, [(XR[j % 3], XR[j % 3] + 16384), (WR[j % 3], WR[j % 3] + 32768)])
        nl = 4 if ks < 3 else 3
        if ks == 12:
            g.poll_issue(VPD, VFLAG, sDBG, "0")
        if ks == 20:
            g.poll_check(VPD, VFLAG, sDBG, "0", 1)
        kstep(g, mf, reads(ks + 1) if ks < 31 else [], nl, barrier=bar)
    g.stamp()
    S(f"""s_mul_i32 s{s_t0}, s{s_ch}, 3
s_add_u32 s{s_t0}, s{s_t0}, s{s_us}
s_lshl_b32 s{s_t0}, s{s_t0}, 11
s_add_u32 s{s_o0}, s{s_t0}, s{s_act}
s_add_u32 s{s_kb}, s{s_o0}, 4096""")
    jct(g, s_t3)
    S(f"s_lshl_b32 s15, s{s_t3}, 7\ns_add_u32 s15, s15, {KVF}")
    main = []
    for b in range(3):
        for s in range(2):
            n = 2 * b + s
            O = VFR + 16 + 4 * (n % 2)
            main += I(gelu_block(ACC + (2 * (b + 1) + s) * 16, VFR, VFR + 8, O))
            so, off = (s_o0, n * 1024) if n < 4 else (s_kb, (n - 4) * 1024)
            main += I([f"buffer_store_dwordx4 {vr(O, 4)}, v{VL16}, {srd(sWS)}, s{so} offen offset:{off} sc1"], "hst")
            if n == 3:
                main += I([f"buffer_load_dword v{VPD}, v{VPOLL}, {srd(sWS)}, s15 offen sc1"])
    weave(S, main, lq, 72)
    g.stamp()
    g.poll_check(VPD, VPOLL, sWS, "s15", 0xffff)
    PA = 192
    ZR = VFR + 24
    S(f"s_lshl_b32 s{s_o0}, s{s_t3}, 14\ns_add_u32 s{s_o0}, s{s_o0}, {KVP}\ns_lshl_b32 s{s_kb}, s{s_t3}, 11\ns_add_u32 s{s_kb}, s{s_kb}, {ZP}")
    pre_q = list(lq.q)
    lq.q = []
    for i in range(2):
        lq.add([], f"buffer_load_dwordx4 {vr(ZR + 4 * i, 4)}, v{VL16}, {srd(sWS)}, s{s_kb} offen offset:{1024 * i} sc1", "zl")
    for t in range(16):
        pre = [f"s_add_u32 s{s_o0}, s{s_o0}, 4096"] if (t % 4 == 0 and t) else []
        lq.add(pre, f"buffer_load_dwordx4 {ar(PA + 4 * t, 4)}, v{VL16}, {srd(sWS)}, s{s_o0} offen offset:{1024 * (t % 4)} sc1", "pl")
    assert not pre_q, "W2 groups should all be issued by now"
    QB = VFR
    PQ = ACC + 32
    E0, E1 = ACC + 96, ACC + 112
    PH = ACC
    M0, M1 = VT, VT + 2
    main = []
    for s in range(2):
        for h in range(2):
            for i in range(4):
                main.append(f"v_cvt_pk_bf16_f32 v{QB + 8 * s + 4 * h + i}, v{ACC + 16 * s + 8 * h + 2 * i}, v{ACC + 16 * s + 8 * h + 2 * i + 1}")
            main.append(mfma(PQ + 16 * (2 * s + h), vr(VPHI, 4), vr(QB + 8 * s + 4 * h, 4), False))
    weave(S, I(main), lq, 24)
    bf_addr(g, s_t2, 0)
    S.wait(vm_tag="hst")
    flag_store(g, s_t2)
    for s in range(2):
        a = softmax_inst(PQ + 16 * (2 * s), E0, M0, PH + 16 * s)
        b = softmax_inst(PQ + 16 * (2 * s + 1) + 8, E1, M1, PH + 16 * s + 8)
        weave(S, I(zipl(a, b)), lq, 40)
        if s == 0:
            for u in lq.take(100):
                S.extend(u)
            g.poll_issue(VPD, VPOLL, sWS, "s14")
            S(f"""s_lshr_b32 s{s_t0}, s{s_m4}, 1
s_add_u32 s{s_t0}, s{s_t0}, {MISC + 4096}
v_add_u32 v{VT + 4}, s{s_t0}, v{VL16}
ds_write_b128 v{VT + 4}, {vr(ZR, 4)}
ds_write_b128 v{VT + 4}, {vr(ZR + 4, 4)} offset:1024
v_lshrrev_b32 v{VT + 5}, 5, v{VL}
v_lshlrev_b32 v{VT + 5}, 10, v{VT + 5}
v_bfe_u32 v{VT + 6}, v{VL}, 2, 2
v_lshl_add_u32 v{VT + 5}, v{VT + 6}, 7, v{VT + 5}
v_bfe_u32 v{VT + 6}, v{VL}, 4, 1
v_lshl_add_u32 v{VT + 5}, v{VT + 6}, 5, v{VT + 5}
v_and_b32 v{VT + 6}, 3, v{VL}
v_lshl_add_u32 v{VT + 5}, v{VT + 6}, 3, v{VT + 5}
v_add_u32 v{VT + 5}, s{s_t0}, v{VT + 5}""")
            S.wait(lgkm0=True)
            for h in range(2):
                for t in range(2):
                    S(f"ds_read_b64_tr_b16 {vr(ZR + 4 * h + 2 * t, 2)}, v{VT + 5} offset:{64 * h + 512 * t}")
    g.stamp()
    PS, Z0, Z1 = PQ, PQ + 16, PQ + 32
    for t in range(16):
        S(mfma(PS, vr(VID, 4), ar(PA + 4 * t, 4), t > 0))
    S(mfma(Z0, vr(ZR, 4), vr(VONES, 4), False))
    S(mfma(Z1, vr(ZR + 4, 4), vr(VONES, 4), False))
    g.poll_check(VPD, VPOLL, sWS, "s14", 0xf)
    add_act(g, 0, 12)
    for u in lq.take(4):
        S.extend(u)
    KA = VFR
    PX = VFR + 16
    S(f"""s_lshr_b32 s{s_t0}, s{s_m4}, 2
s_add_u32 s{s_t0}, s{s_t0}, {MISC + 12288}
v_add_u32 v{VT + 4}, s{s_t0}, v{VL16}
s_lshl_b32 s{s_t0}, s{s_ch}, 11
s_add_u32 s{s_t0}, s{s_t0}, {MISC + 12288}
v_add_u32 v{VT + 5}, s{s_t0}, v{VL16}""")
    for i in range(4):
        S(f"v_cvt_pk_bf16_f32 v{PX + i}, v{PS + 2 * i}, v{PS + 2 * i + 1}")
    S(f"ds_write_b128 v{VT + 4}, {vr(PX, 4)}")
    for h, Z in enumerate((Z0, Z1)):
        for i in range(8):
            S(f"v_cvt_pk_bf16_f32 v{KA + 8 * h + i}, v{Z + 2 * i}, v{Z + 2 * i + 1}")
    S.wait(lgkm0=True)
    S("s_barrier")
    S(f"ds_read_b128 {vr(PX, 4)}, v{VT + 5}\nds_read_b128 {vr(PX + 4, 4)}, v{VT + 5} offset:1024")
    for u in lq.take(2):
        S.extend(u)
    for i in range(8):
        S(f"v_cndmask_b32 v{KA + i}, v{PX + i}, v{KA + i}, s[{s_mk0}:{s_mk0 + 1}]")
    ND = PQ
    for s in range(2):
        for jj in range(2):
            S(mfma(ND + 32 * s, vr(KA + 4 * jj, 4), vr(PH + 16 * s + 4 * jj, 4), jj > 0))
    for i in range(8):
        S(f"v_cndmask_b32 v{KA + 8 + i}, v{KA + 8 + i}, v{PX + i}, s[{s_mk0}:{s_mk0 + 1}]")
    for s in range(2):
        for jj in range(2):
            S(mfma(ND + 32 * s + 16, vr(KA + 8 + 4 * jj, 4), vr(PH + 16 * s + 8 + 4 * jj, 4), jj > 0))
    S(f"""s_lshl_b32 s{s_t0}, s{s_j}, 1
s_add_u32 s{s_t0}, s{s_t0}, s{s_ch}
s_lshl_b32 s{s_t0}, s{s_t0}, 12
s_add_u32 s{s_t0}, s{s_t0}, {86 * 2048}
s_add_u32 s{s_o0}, s{s_t0}, s{s_act}""")
    main = []
    for h in range(2):
        for s in range(2):
            d = ND + 32 * s + 16 * h
            num, den = (d, d + 8) if h == 0 else (d + 8, d)
            O = VFR + 24 + 4 * (2 * h + s)
            main += [f"v_add_f32 v{den}, v{den}, v{VC + 3}", f"v_rcp_f32 v{den}, v{den}"]
            main += [f"v_pk_mul_f32 {vr(num + 2 * i, 2)}, {vr(num + 2 * i, 2)}, {vr(den, 2)} op_sel_hi:[1,0]" for i in range(4)]
            main += [f"v_cvt_pk_bf16_f32 v{O + i}, v{num + 2 * i}, v{num + 2 * i + 1}" for i in range(4)]
            main += I([f"buffer_store_dwordx4 {vr(O, 4)}, v{VL16}, {srd(sWS)}, s{s_o0} offen offset:{2048 * h + 1024 * s} sc1"], "ost")
    S.extend(I(main))
    S(f"s_add_u32 s{s_t2}, s{s_t2}, 16")
    for u in lq.take(10):
        S.extend(u)
    S.wait(vm_tag="ost")
    flag_store(g, s_t2)
    g.stamp()
    phase_b(g, grp)
    return g


def gen_kv(light):
    g = Gen("KL" if light else "KH")
    S, lq = g.S, g.lq
    head(g)
    if light:
        S("L_KL:")
    if OPT["stamps"]:
        S("s_memrealtime s[98:99]")
    if OPT["diag"]:
        S(("s_memrealtime" if OPT["diag"].endswith("r") else "s_memtime") + " s[98:99]")
    NCH = 2 if light else 3
    FS = NCH * 8192
    XR = [0, 16384, 32768, 49152]
    WR = [65536, 81920, 98304, 114688]
    quad_parts(g)
    S(f"""s_lshl_b32 s{s_t0}, s{s_w}, 4
v_add_u32 v{VT + 3}, s{s_t0}, v{VT}
v_mul_u32_u24 v{VT + 3}, 3072, v{VT + 3}
v_lshrrev_b32 v{VT + 4}, 5, v{VL}
v_lshl_add_u32 v{VT + 3}, v{VT + 4}, 10, v{VT + 3}
v_and_b32 v{VT + 4}, 1, v{VT + 2}
v_lshl_add_u32 v{VT + 4}, v{VT + 4}, 6, v{VT + 1}
s_movk_i32 s{s_t0}, 1024
v_add3_u32 v{VQ}, v{VT + 3}, v{VT + 4}, s{s_t0}""")
    for i in range(1, 4):
        S(f"v_add_u32 v{VQ + i}, {i * (4 * 3072 - 1024)}, v{VQ}")
    S("s_waitcnt lgkmcnt(0)")
    if OPT["stamps"] or OPT["diag"]:
        S("s_mov_b32 s3, s98")
    mk_srds(g, [sX, sQKV, sWS])
    if not light:
        zero_flags(g)
    for j in range(8):
        add_x(g, j, XR[j % 4])
        w = WR[j % 4]
        add_rows(g, f"A{j}", VQ, 4, sQKV, 3072, s_qb, s_o1, s_m4, w, (w, w + 16384))
    for u in lq.take(12):
        S.extend(u)
    code_prefetch(g, CODE_SZ[g.kind])
    mk_srds(g, [sG, sU, sPHI, sDBG, sWO, sWD, sOUT, sGW])
    quad_parts(g)
    if light:
        voff_n2(g, VG, 2, 2752, True)
        S(f"v_xor_b32 v{VU}, 32, v{VG}\nv_xor_b32 v{VU + 1}, 32, v{VG + 1}")
    else:
        voff_ffn3(g)
    unit_start(S, s_us, f"s{s_j}", False, s_t0)
    S(f"s_lshr_b32 s{s_fb}, s{s_us}, 1\ns_lshl_b32 s{s_fb}, s{s_fb}, 6\ns_mul_i32 s{s_m6}, s{s_w}, {NCH * 2048}")
    misc_setup(g)
    VXB = VFR + 44
    S(f"s_lshl_b32 s{s_t0}, s{s_ch}, 12")
    for i in range(4):
        S(f"v_add_u32 v{VXA + i}, s{s_t0}, v{VXA + i}\nv_xor_b32 v{VXB + i}, 0x1000, v{VXA + i}")
    VKA = VWA + 9
    S(f"""v_lshl_add_u32 v{VKA}, v{VT + 2}, 11, v{VT + 6}
s_lshl_b32 s{s_t0}, s{s_ch}, 8
s_add_u32 s{s_t0}, s{s_t0}, {WR[0]}
v_add_u32 v{VKA}, s{s_t0}, v{VKA}""")
    for b in range(2 if light else 3):
        S(f"s_and_b32 s{s_t0}, s{s_us}, 1")
        if b < 2:
            S(f"s_lshl_b32 s{s_t3}, s{s_ch}, 1\ns_add_u32 s{s_t0}, s{s_t0}, s{s_t3}\ns_add_u32 s{s_t0}, s{s_t0}, {b}")
        else:
            S(f"s_add_u32 s{s_t0}, s{s_t0}, 4")
        ffn_addr(g, VWA + b, s_t0, NCH, 0)
        S(f"v_add_u32 v{VWA + 3 + b}, 0x10000, v{VWA + b}\nv_add_u32 v{VWA + 6 + b}, 0x20000, v{VWA + b}")
    phi_load(g)
    if light:
        S(f"s_lshr_b32 s{s_t1}, s{s_m4}, 2\ns_add_u32 m0, s{s_t1}, {MISC + 12288}\ns_mov_b32 s{s_t0}, 0")
        S(dma(VL16, sGW, s_t0, 0), tag="gw")
        S(f"s_add_u32 s15, s{s_t1}, {MISC + 12288}\nv_lshlrev_b32 v{VWA + 10}, 4, v{VT + 2}")
    for u in lq.take(4):
        S.extend(u)
    consts(g)
    pb_setup(g)
    act_base(g)
    phi_read(g)
    g.stamp()
    S.wait(vm_tag="A0")
    S("s_barrier")
    if not light:
        set_ready(g)
    g.stamp()

    xa = lambda ks, s: 8 * ks + 4 * s

    def reads1(ks):
        j, kk = ks // 4, ks % 4
        fw = VFR + 8 * (ks % 2)
        o = WR[j % 4] - WR[0] + kk * 4096
        xr = [f"ds_read_b128 {ar(xa(ks, s), 4)}, v{(VXA, VXB)[s] + kk} offset:{XR[j % 4]}" for s in range(2)]
        wr = [[f"ds_read_b64_tr_b16 {vr(fw + 4 * b + 2 * t, 2)}, v{VKA} offset:{o + 512 * b + 1024 * t}" for t in range(2)] for b in range(2)]
        return wr[0] + [xr[0], xr[1]] + wr[1]

    K = 1024
    if light:
        FR = [128 * K, 0, 64 * K, 16 * K, 80 * K, 32 * K, 96 * K, 48 * K]
        grp = [112 * K] + FR
        order = [("F", j) for j in range(8)] + [("W", i) for i in range(9)]
    else:
        FR = [0, 64 * K, 24 * K, 88 * K] * 2
        grp = [128 * K, 48 * K, 112 * K, 0, 64 * K, 16 * K, 32 * K, 80 * K, 96 * K]
        order = [("W", 0)] + [("F", j) for j in range(4)] + [("W", 1), ("W", 2)] + [("F", j) for j in range(4, 8)] + [("W", i) for i in range(3, 9)]
    for what, j in order:
        if what == "W":
            add_w2(g, j, grp[j])
            continue
        f = FR[j]
        add_rows(g, f"F{j}", VG, NCH, sG, 2752, s_fb, s_o2, s_m6, f, (f, f + FS), newkb=j)
        add_rows(g, f"F{j}", VU, NCH, sU, 2752, s_fb, s_o2, s_m6, f + NCH * 1024, None, newso=False)
    for r in reads1(0):
        S(r)
    KA_, VA_ = ACC, ACC + 32
    for ks in range(32):
        j, kk = ks // 4, ks % 4
        fw = VFR + 8 * (ks % 2)
        mf = [mfma(KA_ + 16 * s, vr(fw, 4), ar(xa(ks, s), 4), ks > 0) for s in range(2)] + \
             [mfma(VA_ + 16 * s, ar(xa(ks, s), 4), vr(fw + 4, 4), ks > 0) for s in range(2)]
        bar = None
        if kk == 3:
            bar = (f"A{j + 1}" if j < 7 else None, [(XR[j % 4], XR[j % 4] + 16384), (WR[j % 4], WR[j % 4] + 16384)])
        nl = 4 if ks < 4 else 2
        if ks == 16:
            g.poll_issue(VPD, VFLAG, sDBG, "0")
        if ks == 28:
            g.poll_check(VPD, VFLAG, sDBG, "0", 1)
        kstep(g, mf, reads1(ks + 1) if ks < 31 else [], nl, barrier=bar, wait0=False)
    g.stamp()
    KB = VFR
    VB = VFR + 16
    PH = VFR + 32
    PK = ACC + 64
    E0, E1 = ACC, ACC + 16
    TR0, TR1 = ACC + 32, ACC + 48
    M0, M1 = VT, VT + 2
    main = []
    for s in range(2):
        for h in range(2):
            for i in range(4):
                main.append(f"v_cvt_pk_bf16_f32 v{KB + 8 * s + 4 * h + i}, v{KA_ + 16 * s + 8 * h + 2 * i}, v{KA_ + 16 * s + 8 * h + 2 * i + 1}")
            main.append(mfma(PK + 16 * (2 * s + h), vr(VPHI, 4), vr(KB + 8 * s + 4 * h, 4), False))
    for s in range(2):
        for i in range(8):
            main.append(f"v_cvt_pk_bf16_f32 v{VB + 8 * s + i}, v{VA_ + 16 * s + 2 * i}, v{VA_ + 16 * s + 2 * i + 1}")
    PT = KB
    D0, D1 = PK, PK + 16
    ZA = [VT + 4, VT + 6]

    def after(s):
        L = []
        for h, TR in enumerate((TR0, TR1)):
            for i in range(8):
                L.append(f"v_cvt_pk_bf16_f32 v{PT + 8 * h + i}, v{TR + 2 * i}, v{TR + 2 * i + 1}")
            for jj in range(2):
                L.append(mfma((D0, D1)[h], vr(PT + 8 * h + 4 * jj, 4), vr(VB + 8 * s + 4 * jj, 4), s > 0 or jj > 0))
            for i in range(8):
                if s == 0 and i == 0:
                    continue
                a = vr(TR, 2) if (s == 0 and i == 1) else vr(ZA[h], 2)
                L.append(f"v_pk_add_f32 {vr(ZA[h], 2)}, {a}, {vr(TR + 2 * i, 2)}")
        return L

    for s in range(2):
        a = softmax_inst(PK + 16 * (2 * s), E0, M0, PH)
        b = softmax_inst(PK + 16 * (2 * s + 1) + 8, E1, M1, PH + 8)
        sm = zipl(a, b)
        if s == 1:
            sm = sm[:26] + after(0) + sm[26:]
        main += sm
        for h, TR in enumerate((TR0, TR1)):
            for jj in range(2):
                main.append(mfma(TR, vr(PH + 8 * h + 4 * jj, 4), vr(VID + 4 * jj, 4), jj > 0))
    weave(S, I(main), lq, 72)
    XCH = MISC + 4096
    jct(g, s_t3)
    S(f"""s_lshl_b32 s{s_o0}, s{s_t3}, 4
s_add_u32 s{s_o0}, s{s_o0}, s{s_tb}
s_lshl_b32 s{s_kb}, s{s_o0}, 7
s_add_u32 s{s_kb}, s{s_kb}, {ZP}
s_lshl_b32 s{s_o0}, s{s_o0}, 10
s_add_u32 s{s_o0}, s{s_o0}, {KVP}
s_lshl_b32 s{s_t3}, s{s_t3}, 5
s_add_u32 s{s_t3}, s{s_t3}, s{s_tb}
s_lshl_b32 s{s_t3}, s{s_t3}, 2
s_add_u32 s{s_t3}, s{s_t3}, {KVF}""")
    S.extend(I(after(1)))
    S(f"""v_add_f32 v{ZA[0]}, v{ZA[0]}, v{ZA[0] + 1}
v_add_f32 v{ZA[1]}, v{ZA[1]}, v{ZA[1] + 1}
v_permlane32_swap_b32 v{ZA[0]}, v{ZA[1]}
v_add_f32 v{ZA[0]}, v{ZA[0]}, v{ZA[1]}""")
    S(f"""s_cmp_eq_u32 s{s_th}, 1
s_cselect_b64 s[{s_mk1}:{s_mk1 + 1}], -1, 0
s_lshr_b32 s{s_t0}, s{s_m4}, 1
s_add_u32 s{s_t0}, s{s_t0}, {XCH}
v_add_u32 v{VT + 8}, s{s_t0}, v{VL16}
s_xor_b32 s{s_t0}, s{s_t0}, 2048
v_add_u32 v{VT + 9}, s{s_t0}, v{VL16}
s_lshl_b32 s{s_t0}, s{s_w}, 8
s_add_u32 s{s_t0}, s{s_t0}, {MISC}
v_lshl_add_u32 v{VT}, v{VL}, 2, s{s_t0}
v_xor_b32 v{VT + 1}, 0x100, v{VT}""")
    for i in range(16):
        S(f"v_cndmask_b32 v{D0 + i}, v{D0 + i}, v{D1 + i}, s[{s_mk0}:{s_mk0 + 1}]")
    for i in range(8):
        S(f"v_cndmask_b32 v{D1 + i}, v{D0 + 8 + i}, v{D0 + i}, s[{s_mk1}:{s_mk1 + 1}]")
    S(f"ds_write_b128 v{VT + 8}, {vr(D1, 4)}\nds_write_b128 v{VT + 8}, {vr(D1 + 4, 4)} offset:1024\nds_write_b32 v{VT}, v{ZA[0]}")
    for i in range(8):
        S(f"v_cndmask_b32 v{D0 + i}, v{D0 + i}, v{D0 + 8 + i}, s[{s_mk1}:{s_mk1 + 1}]")
    assert lq.issued("F0")
    S.wait(vm_tag="F0", lgkm0=True)
    S("s_barrier")
    S(f"ds_read_b128 {vr(D1 + 8, 4)}, v{VT + 9}\nds_read_b128 {vr(D1 + 12, 4)}, v{VT + 9} offset:1024\nds_read_b32 v{ZA[1]}, v{VT + 1}")

    NB = 2 if light else 3

    def reads2(ks):
        j, kk = ks // 4, ks % 4
        fw = VFR + 12 * (ks % 2)
        a = FR[j] + kk * NCH * 2048
        st = a // 65536
        o = a - st * 65536
        L = [f"ds_read_b64_tr_b16 {vr(fw + 4 * b + 2 * t, 2)}, v{VWA + 3 * st + b} offset:{o + t * NCH * 256}" for b in range(NB) for t in range(2)]
        if light:
            L.append(f"ds_read_b128 {vr(fw + 8, 4)}, v{VWA + 11} offset:{32 * kk}")
        return L

    def gw_addr(j):
        if light:
            S("\n".join([f"s_add_u32 s{s_t0}, s{s_rot}, {j}", f"s_and_b32 s{s_t0}, s{s_t0}, 7", f"s_lshl_b32 s{s_t0}, s{s_t0}, 7",
                         f"s_add_u32 s{s_t0}, s{s_t0}, s15", f"v_add_u32 v{VWA + 11}, s{s_t0}, v{VWA + 10}"]))

    for i in range(4):
        S(f"v_pk_add_f32 {vr(D0 + 2 * i, 2)}, {vr(D0 + 2 * i, 2)}, {vr(D1 + 8 + 2 * i, 2)}")
    S(f"v_add_f32 v{ZA[0]}, v{ZA[0]}, v{ZA[1]}")
    O = VFR + 40
    for i in range(4):
        S(f"v_cvt_pk_bf16_f32 v{O + i}, v{D0 + 2 * i}, v{D0 + 2 * i + 1}")
    S(f"v_cvt_pk_bf16_f32 v{O + 4}, v{ZA[0]}, v{ZA[0]}\nv_lshlrev_b32 v{O + 5}, 1, v{VL}")
    S(f"buffer_store_dwordx4 {vr(O, 4)}, v{VL16}, {srd(sWS)}, s{s_o0} offen sc1", tag="kst")
    S(f"buffer_store_short v{O + 4}, v{O + 5}, {srd(sWS)}, s{s_kb} offen sc1", tag="kst")
    S(f"s_mov_b32 s{s_qb}, s{s_t3}")
    gw_addr(0)
    for r in reads2(0):
        S(r)
    g.stamp()
    for ks in range(32):
        j, kk = ks // 4, ks % 4
        fw = VFR + 12 * (ks % 2)
        mf = [mfma(ACC + (2 * b + s) * 16, vr(fw + 4 * b, 4), ar(xa(ks, s), 4), ks > 0) for b in range(2) for s in range(2)]
        mf.append(mfma(ACC + 64, vr(fw + 8, 4), ar(xa(ks, 0), 4), ks > 0))
        bar = None
        if kk == 3:
            bar = (f"F{j + 1}" if j < 7 else None, [(FR[j], FR[j] + FS)])
            if j < 7:
                gw_addr(j + 1)
        if ks == 6:
            S.wait(vm_tag="kst")
            flag_store(g, s_qb)
        if ks == 28:
            g.poll_issue(VPD, VPOLL, sWS, "s14")
        kstep(g, mf, reads2(ks + 1) if ks < 31 else [], 2, barrier=bar)
    g.stamp()
    S(f"""s_lshl_b32 s{s_t0}, s{s_ch}, 1
s_add_u32 s{s_t0}, s{s_t0}, s{s_us}
s_lshl_b32 s{s_t0}, s{s_t0}, 11
s_add_u32 s{s_t0}, s{s_t0}, s{s_act}
s_lshl_b32 s{s_t1}, s{s_ch}, 10
s_add_u32 s{s_o0}, s{s_t0}, s{s_t1}
s_xor_b32 s{s_kb}, s{s_o0}, 1024
s_add_u32 s{s_t0}, s{s_us}, 4
s_lshl_b32 s{s_t0}, s{s_t0}, 11
s_add_u32 s{s_t0}, s{s_t0}, s{s_act}
s_add_u32 s{s_fb}, s{s_t0}, s{s_t1}""")
    main = []
    n = 0
    for b in range(2):
        for s in range(2):
            O = VFR + 16 + 4 * (n % 2)
            main += I(gelu_block(ACC + (2 * b + s) * 16, VFR, VFR + 8, O))
            main += I([f"buffer_store_dwordx4 {vr(O, 4)}, v{VL16}, {srd(sWS)}, s{s_o0 if s == 0 else s_kb} offen offset:{2048 * b} sc1"], "hst")
            n += 1
    half = len(main) // 2
    weave(S, main[:half], lq, 60)
    for u in lq.take(100):
        S.extend(u)
    g.poll_check(VPD, VPOLL, sWS, "s14", 0xf)
    add_act(g, 0, 12)
    main = main[half:]
    bf_addr(g, s_t2, 2)
    if not light:
        O = VFR + 16
        main += I(gelu_block(ACC + 64, VFR, VFR + 8, O))
        main += I([f"buffer_store_dwordx4 {vr(O, 4)}, v{VL16}, {srd(sWS)}, s{s_fb} offen sc1"], "hst")
        vf = VFLAG
    else:
        vf = VT + 3
        S(f"""s_lshl_b32 s{s_t0}, s{s_tb}, 1
s_add_u32 s{s_t0}, s{s_t0}, s{s_th}
s_lshl_b32 s{s_t1}, s{s_t0}, 1
s_add_u32 s{s_t1}, s{s_t1}, s{s_ch}
s_lshl_b32 s{s_t1}, s{s_t1}, 7
s_add_u32 s{s_fb}, s{s_t1}, {GATE}
s_lshl_b32 s{s_t0}, s{s_t0}, 9
s_lshl_b32 s{s_t1}, s{s_ch}, 2
s_add_u32 s{s_t0}, s{s_t0}, s{s_t1}
s_add_u32 s{s_t0}, s{s_t0}, {BF + 48 - 128}
s_xor_b32 s{s_t1}, s{s_j}, s{s_th}
s_bitcmp1_b32 s{s_t1}, 0
s_cselect_b32 s{s_t1}, {OOB}, 0
v_mov_b32 v{VT}, {OOB}
v_lshl_add_u32 v{VT + 1}, v{VL}, 2, s{s_t1}
v_cmp_gt_u32 vcc, 32, v{VL}
v_cndmask_b32 v{VT + 2}, v{VT}, v{VT + 1}, vcc
s_add_u32 s{s_t0}, s{s_t0}, s{s_t1}
v_lshl_add_u32 v{VT + 1}, v{VL}, 7, s{s_t0}
v_cmp_gt_u32 vcc, 5, v{VL}
v_cndmask_b32 v{vf}, v{VT}, v{VT + 1}, vcc
v_mov_b32 v{VT + 1}, s{s_t2}
v_cmp_eq_u32 vcc, 0, v{VL}
v_cndmask_b32 v{vf}, v{vf}, v{VT + 1}, vcc
s_mov_b32 s{s_t2}, 0""")
        main += I([f"buffer_store_dword v{ACC + 64}, v{VT + 2}, {srd(sWS)}, s{s_fb} offen sc1"], "hst")
    weave(S, main, lq, 72)
    for u in lq.take(10):
        S.extend(u)
    S.wait(vm_tag="hst")
    flag_store(g, s_t2, vf)
    g.stamp()
    phase_b(g, grp)
    return g


CODE_SZ = {"Q": 24576, "KH": 24576, "KL": 24576}


def build(path, **opt):
    OPT.update(opt)
    gens = [gen_kv(False), gen_kv(True), gen_q()]
    txt = []
    hd = None
    for g in gens:
        t = finalize(g.S, g.kind)
        h, body = t.split("L_split:\n")
        if hd is None:
            hd = h
            txt.append(h)
        assert h == hd
        txt.append(body)
        txt.append("\n".join(g.slow))
        txt.append(".p2align 6")
    hdr = open("gated_mix__linear_kernel_hedgehog__glu_gated_geglu__prompt.s.ref").read().split("; Override launch")[0]
    out = hdr + "; @launch grid=(256,1,1) block=(256,1,1) lds=163840\n"
    out += f""".amdgcn_target "amdgcn-amd-amdhsa--gfx950"
.text
.globl {KN}
.p2align 8
.type {KN},@function
{KN}:
"""
    out += "\n".join(txt)
    out += "\nL_end:\ns_endpgm\n"
    out += ".fill 8192, 4, 0xbf810000\n"
    out += f""".section .rodata,"a"
.p2align 6
.amdhsa_kernel {KN}
  .amdhsa_next_free_vgpr 512
  .amdhsa_next_free_sgpr 102
  .amdhsa_accum_offset 256
  .amdhsa_group_segment_fixed_size 0
  .amdhsa_kernarg_size 96
  .amdhsa_user_sgpr_count 2
  .amdhsa_user_sgpr_kernarg_segment_ptr 1
  .amdhsa_system_sgpr_workgroup_id_x 1
.end_amdhsa_kernel
"""
    open(path, "w").write(out)
    print("wrote", path, len(out), "bytes")


if __name__ == "__main__":
    kw = {}
    path = sys.argv[1] if len(sys.argv) > 1 else "k.s"
    for a in sys.argv[2:]:
        k, v = a.split("=")
        kw[k] = {"0": False, "1": True}.get(v, v)
    build(path, **kw)
```

```python
import sys
import struct
from ab import Stream, Ins, finalize

KN = "gated_mix__linear_kernel_hedgehog__glu_gated_geglu__prompt_kernel"
OPT = dict(stamps=False, rot="none", stop=None, codepf=True, diag=None)

ACT = 0
KVP = 0x780000
ZP = 0x800000
GATE = 0x810000
FLG = 0x820000
KVF = FLG
BF = FLG + 4096
NFLG = 4096 + 16384
STAMP = 0x830000
WS_SIZE = 0x860000
OOB = 0x7ff00000

sX, sQKV, sG, sU, sWO, sWD, sWS, sOUT, sPHI, sGW, sDBG = [28 + 4 * i for i in range(11)]
s_tb, s_j, s_w, s_th, s_ch, s_tt, s_ct, s_rot = range(72, 80)
s_xb, s_qb, s_fb, s_kb = 80, 81, 82, 83
s_o0, s_o1, s_o2 = 84, 85, 86
s_m4, s_m8, s_m6 = 87, 88, 89
s_t0, s_t1, s_t2, s_t3 = 90, 91, 92, 93
s_act, s_us, s_spin = 94, 95, 96
s_mk0, s_mk1 = 98, 100
s_pb = 4
s_stamp = 16


def srd(r):
    return f"s[{r}:{r + 3}]"


def vr(a, n=1):
    return f"v{a}" if n == 1 else f"v[{a}:{a + n - 1}]"


def ar(a, n=1):
    return f"a{a}" if n == 1 else f"a[{a}:{a + n - 1}]"


def f32(x):
    return "0x%08x" % struct.unpack("<I", struct.pack("<f", x))[0]


def mfma(d, a, b, c):
    return f"v_mfma_f32_32x32x16_bf16 {vr(d, 16)}, {a}, {b}, {vr(d, 16) if c else 0}"


class LDS:
    def __init__(self):
        self.busy = [None] * 160

    def free(self, lo, hi):
        return all(self.busy[k] is None for k in range(lo // 1024, (hi + 1023) // 1024))

    def claim(self, lo, hi, tag):
        assert self.free(lo, hi), (lo, hi, tag, self.busy)
        for k in range(lo // 1024, (hi + 1023) // 1024):
            self.busy[k] = tag

    def release(self, lo, hi):
        for k in range(lo // 1024, (hi + 1023) // 1024):
            assert self.busy[k] is not None
            self.busy[k] = None


class LoadQ:
    def __init__(self, lds):
        self.q = []
        self.lds = lds

    def add(self, pre, ins, tag, claim=None):
        self.q.append((pre, ins, tag, claim))

    def take(self, n=1):
        out = []
        while n > 0 and self.q:
            pre, ins, tag, claim = self.q[0]
            if claim is not None:
                if not self.lds.free(*claim):
                    break
                self.lds.claim(claim[0], claim[1], tag)
            self.q.pop(0)
            out.append([Ins(p) for p in pre] + [Ins(ins, tag)])
            n -= 1
        return out

    def issued(self, tag):
        return all(t != tag for _, _, t, _ in self.q)


def weave(S, main, lq, every):
    acc = 0
    for it in main:
        S.items.append(it)
        if isinstance(it, Ins):
            acc += 8 if it.kind in ("trans", "perm", "mfma", "ds", "vmem") else 4
        if acc >= every:
            u = lq.take(1)
            if u:
                S.extend(u[0])
            acc = 0


DIAG_NAMES = {"Q": ["pro", "a0", "loop", "gelu", "sm", "pub", "b0", "b1", "end"],
              "KH": ["pro", "a0", "seg1", "kv", "loop", "pub", "b0", "b1", "end"],
              "KL": ["pro", "a0", "seg1", "kv", "loop", "pub", "b0", "b1", "end"]}


class Gen:
    def __init__(self, kind):
        self.kind = kind
        self.S = Stream()
        self.slow = []
        self.lds = LDS()
        self.lq = LoadQ(self.lds)
        self.nstamp = 0
        self.npoll = 0

    def stamp(self):
        if OPT["diag"]:
            a, b, mult, unit = OPT["diag"].split(":")
            ins = "s_memrealtime" if unit == "r" else "s_memtime"
            names = DIAG_NAMES[self.kind]
            nm = names[self.nstamp]
            self.nstamp += 1
            if nm == a:
                self.S(f"{ins} s[18:19]\ns_waitcnt lgkmcnt(0)")
            if nm == b:
                self.S(f"{ins} s[20:21]\ns_waitcnt lgkmcnt(0)")
        if OPT["stamps"]:
            S = self.S
            S(f"s_memtime s[{s_stamp}:{s_stamp + 1}]")
            S("s_waitcnt lgkmcnt(0)")
            S(f"v_writelane_b32 v{VST}, s{s_stamp}, {self.nstamp}")
            self.nstamp += 1

    def poll_issue(self, vdst, vaddr, srdr, soff):
        self.S(f"buffer_load_dword v{vdst}, v{vaddr}, {srd(srdr)}, {soff} offen sc1")

    def poll_check(self, vdst, vaddr, srdr, soff, mask):
        S = self.S
        k = f"{self.kind}{self.npoll}"
        self.npoll += 1
        S(f"v_cmp_eq_u32 vcc, 1, v{vdst}")
        S(f"s_andn2_b32 s{s_t0}, {mask}, vcc_lo")
        S(f"s_cbranch_scc1 L_slow_{k}")
        S(f"L_back_{k}:")
        self.slow.append(f"""L_slow_{k}:
s_mov_b32 s{s_spin}, 0
L_spin_{k}:
s_sleep 3
buffer_load_dword v{vdst}, v{vaddr}, {srd(srdr)}, {soff} offen sc1
s_add_u32 s{s_spin}, s{s_spin}, 1
s_cmp_ge_u32 s{s_spin}, 0x8000
s_cbranch_scc1 L_back_{k}
s_waitcnt vmcnt(0)
v_cmp_eq_u32 vcc, 1, v{vdst}
s_nop 1
s_andn2_b32 s{s_t0}, {mask}, vcc_lo
s_cbranch_scc1 L_spin_{k}
s_branch L_back_{k}""")


VL = 1
VX = 2
VQ = 6
VG = 10
VU = 13
VXA = 16
VWA = 20
VW2 = 32
VW2D = 36
VL16 = 38
VL16D = 39
VW2A = 40
VPB = 43
VPOLL = 44
VPD = 45
VFLAG = 46
VONE = 47
VC = 48
VID = 52
VONES = 60
VPHI = 64
VT = 68
VST = 79
VFR = 80
ACC = 128

MISC = 144 * 1024
LOG2E = 1.4426950408889634
GC = 0.7978845608028654


def head(g):
    S = g.S
    if OPT["stamps"]:
        S("s_memrealtime s[98:99]\ns_memtime s[100:101]")
    if OPT["diag"]:
        S(("s_memrealtime" if OPT["diag"].endswith("r") else "s_memtime") + " s[98:99]")
    S(f"""s_cmp_ge_u32 s2, 256
s_cbranch_scc1 L_end
s_load_dwordx16 s[4:19], s[0:1], 0
s_load_dwordx8 s[20:27], s[0:1], 64
v_lshrrev_b32 v{VT}, 6, v0
v_and_b32 v{VL}, 63, v0
s_and_b32 s{s_t0}, s2, 7
s_lshr_b32 s{s_t1}, s2, 3
v_readfirstlane_b32 s{s_w}, v{VT}
s_and_b32 s{s_tb}, s{s_t0}, 1
s_lshl_b32 s{s_tb}, s{s_tb}, 3
s_and_b32 s{s_ct}, s{s_t1}, 7
s_add_u32 s{s_tb}, s{s_tb}, s{s_ct}
s_lshr_b32 s{s_t2}, s{s_t1}, 3
s_lshl_b32 s{s_tt}, s{s_t0}, 2
s_add_u32 s{s_tt}, s{s_tt}, s{s_t2}
s_and_b32 s{s_j}, s{s_t0}, 6
s_lshr_b32 s{s_t3}, s{s_t2}, 1
s_add_u32 s{s_j}, s{s_j}, s{s_t3}
s_and_b32 s{s_th}, s{s_w}, 1
s_lshr_b32 s{s_ch}, s{s_w}, 1
s_lshl_b32 s{s_m4}, s{s_w}, 12""")
    rot = OPT["rot"]
    if rot == "none":
        S(f"s_mov_b32 s{s_rot}, 0")
    elif rot == "xcd":
        S(f"s_mov_b32 s{s_rot}, s{s_t0}")
    elif rot == "full":
        S(f"s_lshl_b32 s{s_rot}, s{s_t2}, 1\ns_add_u32 s{s_rot}, s{s_rot}, s{s_ct}\ns_add_u32 s{s_rot}, s{s_rot}, s{s_t0}\ns_and_b32 s{s_rot}, s{s_rot}, 7")
    elif rot == "half":
        S(f"s_add_u32 s{s_rot}, s{s_t2}, s{s_ct}\ns_lshl_b32 s{s_rot}, s{s_rot}, 2\ns_add_u32 s{s_rot}, s{s_rot}, s{s_t0}\ns_and_b32 s{s_rot}, s{s_rot}, 7")
    S(f"""v_lshrrev_b32 v{VT}, 3, v0
v_lshrrev_b32 v{VT + 1}, 4, v{VL}
v_xor_b32 v{VT + 1}, v{VT + 1}, v{VL}
v_and_b32 v{VT + 1}, 7, v{VT + 1}
v_lshrrev_b32 v{VT + 2}, 3, v{VT}
v_and_b32 v{VT}, 7, v{VT}
v_lshl_add_u32 v{VT}, v{VT + 2}, 5, v{VT}
v_lshlrev_b32 v{VT}, 10, v{VT}
v_lshl_add_u32 v{VX}, v{VT + 1}, 4, v{VT}
v_xor_b32 v{VX + 1}, 64, v{VX}
v_add_u32 v{VX + 1}, 7168, v{VX + 1}
v_add_u32 v{VX + 2}, 14336, v{VX}
v_add_u32 v{VX + 3}, 14336, v{VX + 1}
v_lshlrev_b32 v{VL16}, 4, v{VL}
s_lshl_b32 s{s_xb}, s{s_tb}, 17
s_lshl_b32 s{s_qb}, s{s_j}, 7
s_bitcmp1_b32 s{s_t2}, 0
s_cbranch_scc1 L_Q
s_cmp_ge_u32 s{s_j}, 6
s_cbranch_scc1 L_KL
L_split:
.p2align 3""")


def mk_srds(g, which):
    S = g.S
    tab = {sX: (4, 2048 * 1024), sQKV: (6, 512 * 3072), sPHI: (8, 32 * 512), sWO: (10, 512 * 1024), sG: (14, 512 * 2752),
           sU: (16, 512 * 2752), sWD: (18, 1376 * 1024), sGW: (20, 1024), sOUT: (22, 2048 * 1024), sDBG: (24, 256), sWS: (26, WS_SIZE)}
    for r in which:
        p, n = tab[r]
        S(f"s_mov_b64 s[{r}:{r + 1}], s[{p}:{p + 1}]\ns_mov_b32 s{r + 2}, {n}\ns_mov_b32 s{r + 3}, 0x20000")


def quad_parts(g):
    g.S(f"""v_bfe_u32 v{VT}, v{VL}, 2, 2
v_and_b32 v{VT + 1}, 3, v{VL}
v_lshlrev_b32 v{VT + 1}, 4, v{VT + 1}
v_lshrrev_b32 v{VT + 2}, 4, v{VL}""")


def voff_n2(g, dst, n, stride, wave_rows):
    S = g.S
    S(f"""v_lshrrev_b32 v{VT + 3}, 5, v{VL}
v_lshl_add_u32 v{VT + 3}, v{VT + 3}, 2, v{VT}""")
    if wave_rows:
        S(f"s_lshl_b32 s{s_t0}, s{s_w}, 4\nv_add_u32 v{VT + 3}, s{s_t0}, v{VT + 3}")
    S(f"""v_mul_u32_u24 v{VT + 3}, {stride}, v{VT + 3}
v_and_b32 v{VT + 4}, 1, v{VT + 2}
v_lshl_add_u32 v{VT + 4}, v{VT + 4}, 6, v{VT + 1}
v_add_u32 v{dst}, v{VT + 3}, v{VT + 4}""")
    for i in range(1, n):
        S(f"v_add_u32 v{dst + i}, {i * (8 * stride - 1024)}, v{dst}")


def voff_ffn3(g):
    S = g.S
    S(f"s_lshl_b32 s{s_t0}, s{s_w}, 4\nv_add_u32 v{VT + 5}, s{s_t0}, v{VT}")
    for i in range(3):
        S(f"""v_add_u32 v{VT + 3}, {4 * i}, v{VT + 2}
v_mul_u32_u24 v{VT + 4}, 43, v{VT + 3}
v_lshrrev_b32 v{VT + 4}, 7, v{VT + 4}
v_mul_u32_u24 v{VT + 6}, 3, v{VT + 4}
v_sub_u32 v{VT + 3}, v{VT + 3}, v{VT + 6}
v_lshl_add_u32 v{VT + 4}, v{VT + 4}, 2, v{VT + 5}
v_mul_u32_u24 v{VT + 4}, 2752, v{VT + 4}
v_lshl_add_u32 v{VT + 3}, v{VT + 3}, 6, v{VT + 1}
v_add_u32 v{VG + i}, v{VT + 3}, v{VT + 4}""")
        if i:
            S(f"v_subrev_u32 v{VG + i}, {1024 * i}, v{VG + i}")
        S(f"v_xor_b32 v{VU + i}, 32, v{VG + i}")


def unit_start(S, dst, jreg, isq, tmp):
    S(f"s_lshr_b32 s{dst}, {jreg}, 1\ns_mul_i32 s{dst}, s{dst}, 22\ns_and_b32 s{tmp}, {jreg}, 1")
    if isq:
        S(f"s_mul_i32 s{tmp}, s{tmp}, 6\ns_add_u32 s{dst}, s{dst}, s{tmp}\ns_cmp_ge_u32 {jreg}, 6\ns_cselect_b32 s{tmp}, 8, 10\ns_add_u32 s{dst}, s{dst}, s{tmp}")
    else:
        S(f"s_mul_i32 s{tmp}, s{tmp}, 5\ns_add_u32 s{dst}, s{dst}, s{tmp}\ns_cmp_eq_u32 {jreg}, 7\ns_cselect_b32 s{tmp}, 1, 0\ns_sub_u32 s{dst}, s{dst}, s{tmp}")


def kb_pre(j):
    return [f"s_add_u32 s{s_kb}, s{s_rot}, {j}", f"s_and_b32 s{s_kb}, s{s_kb}, 7"]


def dma(v, r, so, imm):
    return f"buffer_load_dwordx4 v{v}, {srd(r)}, s{so} offen" + (f" offset:{imm}" if imm else "") + " lds"


def add_x(g, j, base):
    for i in range(4):
        pre = []
        if i == 0:
            pre = kb_pre(j) + [f"s_lshl_b32 s{s_o0}, s{s_kb}, 7", f"s_add_u32 m0, s{s_m4}, {base}", f"s_add_u32 s{s_o0}, s{s_o0}, s{s_xb}"]
        g.lq.add(pre, dma(VX + i, sX, s_o0, 1024 * i), f"A{j}", (base, base + 16384) if i == 0 else None)


def add_rows(g, tag, v0, n, r, stride, sbase, so, mreg, mbase, claim, newkb=None, newso=True):
    for i in range(n):
        pre = []
        if i == 0:
            if newkb is not None:
                pre += kb_pre(newkb)
            if newso:
                pre += [f"s_mul_i32 s{so}, s{s_kb}, {64 * stride}", f"s_add_u32 m0, s{mreg}, {mbase}", f"s_add_u32 s{so}, s{so}, s{sbase}"]
            else:
                pre += [f"s_add_u32 m0, s{mreg}, {mbase}"]
        g.lq.add(pre, dma(v0 + i, r, so, 1024 * i), tag, claim if i == 0 else None)


def misc_setup(g):
    S = g.S
    S(f"""v_bfe_u32 v{VT}, v{VL}, 2, 2
v_and_b32 v{VT + 1}, 3, v{VL}
v_lshlrev_b32 v{VT + 1}, 3, v{VT + 1}
v_lshl_add_u32 v{VPB}, v{VT}, 6, v{VT + 1}
v_lshrrev_b32 v{VT + 2}, 5, v{VL}
v_bfe_u32 v{VT + 3}, v{VL}, 4, 1
v_and_b32 v{VT + 4}, 31, v{VL}
v_bfe_u32 v{VT + 5}, v{VL}, 1, 3
v_xor_b32 v{VT + 5}, v{VT + 5}, v{VT + 2}
v_lshlrev_b32 v{VT + 5}, 4, v{VT + 5}
v_lshl_add_u32 v{VT + 5}, v{VT + 4}, 7, v{VT + 5}
s_lshl_b32 s{s_t0}, s{s_th}, 13
v_add_u32 v{VXA}, s{s_t0}, v{VT + 5}
v_xor_b32 v{VXA + 1}, 32, v{VXA}
v_xor_b32 v{VXA + 2}, 64, v{VXA}
v_xor_b32 v{VXA + 3}, 0x60, v{VXA}""")
    S(f"""v_lshl_add_u32 v{VT + 6}, v{VT + 3}, 5, v{VPB}
v_lshl_add_u32 v{VW2A}, v{VT + 2}, 9, v{VT + 6}
v_add_u32 v{VW2A}, s{s_m4}, v{VW2A}
v_add_u32 v{VW2A + 1}, 0x10000, v{VW2A}
v_add_u32 v{VW2A + 2}, 0x20000, v{VW2A}""")


def consts(g):
    S = g.S
    S(f"""v_mov_b32 v{VC}, {f32(-2 * LOG2E * GC * 0.044715)}
v_mov_b32 v{VC + 1}, {f32(-2 * LOG2E * GC)}
v_mov_b32 v{VC + 2}, {f32(LOG2E)}
v_mov_b32 v{VC + 3}, {f32(1e-6)}
v_mov_b32 v{VONE}, 1
v_mov_b32 v{VT}, {OOB}
v_lshlrev_b32 v{VT + 1}, 2, v{VL}
v_cmp_gt_u32 vcc, 16, v{VL}
v_cndmask_b32 v{VPOLL}, v{VT}, v{VT + 1}, vcc
v_cmp_eq_u32 vcc, 0, v{VL}
v_cndmask_b32 v{VFLAG}, v{VT}, v{VT + 1}, vcc
s_mov_b32 s{s_mk0}, 0xffff0000
s_mov_b32 s{s_mk0 + 1}, 0xffff0000
s_mov_b32 s{s_mk1}, 0
s_mov_b32 s{s_mk1 + 1}, -1""")
    for i in range(4):
        S(f"v_mov_b32 v{VONES + i}, 0x3f803f80")
    S(f"""v_lshrrev_b32 v{VT}, 5, v{VL}
v_and_b32 v{VT + 1}, 31, v{VL}
v_lshlrev_b32 v{VT}, 2, v{VT}
v_sub_u32 v{VT}, v{VT + 1}, v{VT}
v_mov_b32 v{VT + 2}, 0x3f80
v_mov_b32 v{VT + 3}, 0x3f800000""")
    for jj in range(2):
        for d in range(4):
            i = 2 * d
            row = 16 * jj + 8 * (i >> 2) + (i & 3)
            S(f"""v_cmp_eq_u32 vcc, {row}, v{VT}
v_cndmask_b32 v{VT + 4}, 0, v{VT + 2}, vcc
v_cmp_eq_u32 vcc, {row + 1}, v{VT}
v_cndmask_b32 v{VID + 4 * jj + d}, v{VT + 4}, v{VT + 3}, vcc""")


def phi_load(g):
    S = g.S
    S(f"""s_lshl_b32 s{s_t0}, s{s_j}, 1
s_add_u32 s{s_t0}, s{s_t0}, s{s_ch}
s_lshl_b32 s{s_t0}, s{s_t0}, 10
s_lshr_b32 s{s_t1}, s{s_m4}, 2
s_add_u32 m0, s{s_t1}, {MISC}""")
    S(dma(VL16, sPHI, s_t0, 0), tag="phi")


def phi_read(g):
    S = g.S
    S(f"""v_lshrrev_b32 v{VT}, 5, v{VL}
v_bfe_u32 v{VT + 1}, v{VL}, 2, 2
v_lshl_add_u32 v{VT}, v{VT}, 2, v{VT + 1}
v_lshlrev_b32 v{VT}, 5, v{VT}
v_and_b32 v{VT + 1}, 3, v{VL}
v_lshl_add_u32 v{VT}, v{VT + 1}, 3, v{VT}
v_bfe_u32 v{VT + 1}, v{VL}, 4, 1
v_lshl_add_u32 v{VT}, v{VT + 1}, 9, v{VT}
s_lshr_b32 s{s_t1}, s{s_m4}, 2
s_add_u32 s{s_t1}, s{s_t1}, {MISC}
v_add_u32 v{VT}, s{s_t1}, v{VT}""")
    S.wait(vm_tag="phi")
    S(f"ds_read_b64_tr_b16 {vr(VPHI, 2)}, v{VT}\nds_read_b64_tr_b16 {vr(VPHI + 2, 2)}, v{VT} offset:256")


def zero_flags(g):
    S = g.S
    S(f"""s_cmp_lg_u32 s2, 0
s_cbranch_scc1 L_nz_{g.kind}
v_mov_b32 v{VFR}, 0
v_mov_b32 v{VFR + 1}, 0
v_mov_b32 v{VFR + 2}, 0
v_mov_b32 v{VFR + 3}, 0
s_mul_i32 s{s_t0}, s{s_w}, 5120
s_add_u32 s{s_t0}, s{s_t0}, {FLG}
s_add_u32 s{s_t1}, s{s_t0}, 4096""")
    for i in range(4):
        S(f"buffer_store_dwordx4 {vr(VFR, 4)}, v{VL16}, {srd(sWS)}, s{s_t0} offen offset:{1024 * i} sc1", count=False)
    S(f"buffer_store_dwordx4 {vr(VFR, 4)}, v{VL16}, {srd(sWS)}, s{s_t1} offen sc1", count=False)
    S(f"L_nz_{g.kind}:")


def set_ready(g):
    S = g.S
    S(f"""s_or_b32 s{s_t0}, s2, s{s_w}
s_cmp_lg_u32 s{s_t0}, 0
s_cbranch_scc1 L_nr_{g.kind}""")
    S(f"buffer_store_dword v{VONE}, v{VFLAG}, {srd(sDBG)}, 0 offen sc1", count=False)
    S(f"L_nr_{g.kind}:")


def code_prefetch(g, nbytes):
    if not OPT["codepf"]:
        return
    S = g.S
    lines = (nbytes // 128 + 31) // 32
    S(f"""s_getpc_b64 s[{s_mk0}:{s_mk0 + 1}]
s_lshl_b32 s{s_t0}, s{s_ct}, 2
s_add_u32 s{s_t0}, s{s_t0}, s{s_w}
s_mul_i32 s{s_t0}, s{s_t0}, {lines * 128}
v_lshlrev_b32 v{VT}, 7, v{VL}
v_add_u32 v{VT}, s{s_t0}, v{VT}
s_mov_b64 exec, {(1 << lines) - 1}
global_load_dword v{VPD}, v{VT}, s[{s_mk0}:{s_mk0 + 1}]
s_mov_b64 exec, -1""")


def gelu_block(acc, T, Y, O):
    L = []
    P = range(4)
    p = lambda b, i: vr(b + 2 * i, 2)
    L += [f"v_pk_mul_f32 {p(T, i)}, {p(acc, i)}, {p(acc, i)}" for i in P]
    L += [f"v_pk_fma_f32 {p(T, i)}, {p(T, i)}, {vr(VC, 2)}, {vr(VC, 2)} op_sel:[0,0,1] op_sel_hi:[1,0,1]" for i in P]
    L += [f"v_pk_mul_f32 {p(T, i)}, {p(T, i)}, {p(acc, i)}" for i in P]
    for i in P:
        L += [f"v_exp_f32 v{T + 2 * i}, v{T + 2 * i}", f"v_exp_f32 v{T + 2 * i + 1}, v{T + 2 * i + 1}", f"v_pk_mul_f32 {p(Y, i)}, {p(acc, i)}, {p(acc + 8, i)}"]
    L += [f"v_pk_add_f32 {p(T, i)}, {p(T, i)}, 1.0 op_sel_hi:[1,0]" for i in P]
    L += [f"v_rcp_f32 v{T + i}, v{T + i}" for i in range(8)]
    L += [f"v_pk_mul_f32 {p(Y, i)}, {p(Y, i)}, {p(T, i)}" for i in P]
    L += [f"v_cvt_pk_bf16_f32 v{O + i}, v{Y + 2 * i}, v{Y + 2 * i + 1}" for i in P]
    return L


def softmax_inst(P, E, M, O):
    L = []
    p = lambda b, i: vr(b + 2 * i, 2)
    a, b = M, M + 1
    L += [f"v_max3_f32 v{a}, v{P}, v{P + 1}, v{P + 2}", f"v_max3_f32 v{b}, -v{P}, -v{P + 1}, -v{P + 2}",
          f"v_max3_f32 v{a}, v{a}, v{P + 3}, v{P + 4}", f"v_max3_f32 v{b}, v{b}, -v{P + 3}, -v{P + 4}",
          f"v_max3_f32 v{a}, v{a}, v{P + 5}, v{P + 6}", f"v_max3_f32 v{b}, v{b}, -v{P + 5}, -v{P + 6}",
          f"v_max_f32 v{a}, v{a}, v{P + 7}", f"v_max_f32 v{b}, v{b}, -v{P + 7}",
          f"v_permlane32_swap_b32 v{a}, v{b}",
          f"v_max_f32 v{a}, v{a}, v{b}",
          f"v_mul_f32 v{b}, -v{a}, v{VC + 2}",
          f"v_mul_f32 v{a}, -v{a}, v{VC + 2}",
          f"v_permlane32_swap_b32 v{a}, v{b}"]
    for i in range(4):
        L += [f"v_pk_fma_f32 {p(E, i)}, {p(P, i)}, {vr(VC + 2, 2)}, {vr(M, 2)} op_sel_hi:[1,0,0]"]
    for i in range(4):
        L += [f"v_pk_fma_f32 {p(E + 8, i)}, {p(P, i)}, {vr(VC + 2, 2)}, {vr(M, 2)} op_sel:[0,0,1] op_sel_hi:[1,0,1] neg_lo:[1,0,0] neg_hi:[1,0,0]"]
    L += [f"v_exp_f32 v{E + i}, v{E + i}" for i in range(16)]
    L += [f"v_pk_add_f32 {p(P, 0)}, {p(E, 0)}, {p(E, 1)}", f"v_pk_add_f32 {p(P, 1)}, {p(E, 2)}, {p(E, 3)}",
          f"v_pk_add_f32 {p(P, 2)}, {p(E + 8, 0)}, {p(E + 8, 1)}", f"v_pk_add_f32 {p(P, 3)}, {p(E + 8, 2)}, {p(E + 8, 3)}",
          f"v_pk_add_f32 {p(P, 0)}, {p(P, 0)}, {p(P, 1)}", f"v_pk_add_f32 {p(P, 2)}, {p(P, 2)}, {p(P, 3)}",
          f"v_add_f32 v{a}, v{P}, v{P + 1}", f"v_add_f32 v{b}, v{P + 4}, v{P + 5}",
          f"v_permlane32_swap_b32 v{a}, v{b}",
          f"v_add_f32 v{a}, v{a}, v{b}",
          f"v_rcp_f32 v{a}, v{a}",
          f"v_mov_b32 v{b}, v{a}",
          f"v_permlane32_swap_b32 v{a}, v{b}"]
    L += [f"v_pk_mul_f32 {p(E, i)}, {p(E, i)}, {vr(M, 2)} op_sel_hi:[1,0]" for i in range(4)]
    L += [f"v_pk_mul_f32 {p(E + 8, i)}, {p(E + 8, i)}, {vr(M, 2)} op_sel:[0,1] op_sel_hi:[1,1]" for i in range(4)]
    L += [f"v_cvt_pk_bf16_f32 v{O + i}, v{E + 2 * i}, v{E + 2 * i + 1}" for i in range(8)]
    return L


def zipl(*ls):
    out = []
    n = max(len(l) for l in ls)
    for i in range(n):
        for l in ls:
            if i < len(l):
                out.append(l[i])
    return out


def I(lines, tag=None):
    return [Ins(x, tag) if isinstance(x, str) else x for x in lines]


def kstep(g, mf, reads, nload, rd_per_gap=2, barrier=None, wait0=True):
    S = g.S
    reads = list(reads)
    if wait0 or barrier is not None:
        S.wait(lgkm0=True)
    n = len(mf)
    first_ld = min((len(reads) + rd_per_gap - 1) // rd_per_gap, n - 1)
    left = nload
    for i, m in enumerate(mf):
        S(m)
        if i == 0 and barrier is not None:
            tag, rel = barrier
            if tag is not None:
                assert g.lq.issued(tag), tag
                S.wait(vm_tag=tag)
            S("s_barrier")
            for lo, hi in rel:
                g.lds.release(lo, hi)
        k = rd_per_gap if i < n - 1 else len(reads)
        for r in reads[:k]:
            S(r)
        reads = reads[k:]
        if i >= first_ld and left > 0:
            gaps = n - i
            t = (left + gaps - 1) // gaps
            for u in g.lq.take(t):
                S.extend(u)
            left -= t


W2GRP = {}


def pb_setup(g):
    S = g.S
    S(f"s_add_u32 s{s_t1}, s{s_w}, 4")
    unit_start(S, 4, f"s{s_w}", True, s_t0)
    unit_start(S, 5, f"s{s_t1}", True, s_t0)
    unit_start(S, 6, f"s{s_w}", False, s_t0)
    unit_start(S, 7, f"s{s_t1}", False, s_t0)
    S(f"s_mul_i32 s{s_t0}, s{s_tt}, 118\ns_lshl_b32 s{s_t2}, s{s_ct}, 7")
    for i in range(4):
        S(f"s_add_u32 s{8 + i}, s{4 + i}, s{s_t0}\ns_lshl_b32 s{8 + i}, s{8 + i}, 11\ns_lshl_b32 s{4 + i}, s{4 + i}, 14\ns_add_u32 s{4 + i}, s{4 + i}, s{s_t2}")
    S(f"""s_lshl_b32 s{s_t1}, s{s_w}, 2
s_add_u32 s12, s{s_t1}, s{s_t0}
s_add_u32 s12, s12, 86
s_lshl_b32 s12, s12, 11
s_lshl_b32 s13, s{s_w}, 16
s_add_u32 s13, s13, s{s_t2}
s_lshl_b32 s14, s{s_tt}, 2
s_add_u32 s14, s14, s{s_w}
s_lshl_b32 s14, s14, 7
s_add_u32 s14, s14, {BF}""")
    quad_parts(g)
    voff_n2(g, VW2, 4, 1024, False)
    S(f"""s_cmp_ge_u32 s{s_w}, 2
s_cselect_b32 s{s_t0}, {OOB}, 0
v_add_u32 v{VW2D}, s{s_t0}, v{VW2 + 2}
v_add_u32 v{VW2D + 1}, s{s_t0}, v{VW2 + 3}
v_add_u32 v{VL16D}, s{s_t0}, v{VL16}""")


PB_K = [("QH", p, i) for p in range(2) for i in range(6)] + [("O", p, i) for p in range(2) for i in range(4)] + \
       [("KH", 0, 0), ("KH", 0, 1), ("KH", 0, 2), ("KH", 0, 3), ("KH", 0, 4), ("KH", 1, 4), ("KH", 1, 0), ("KH", 1, 1), ("KH", 1, 2), ("KH", 1, 3)]


def w2_src(k):
    part, p, i = PB_K[k]
    if part == "QH":
        return sWD, 4 + p, i * 16384
    if part == "KH":
        return sWD, 6 + p, i * 16384
    return sWO, 13, p * 262144 + i * 16384


def act_src(k):
    part, p, i = PB_K[k]
    if part == "QH":
        return 8 + p, i * 2048
    if part == "KH":
        return 10 + p, i * 2048
    return 12, p * 16 * 2048 + i * 2048


def add_w2(g, grp, base):
    k = 2 * grp
    r, sb, off = w2_src(k)
    tag = f"W{grp}"
    pre = [f"s_add_u32 m0, s{s_m4}, {base}", f"s_add_u32 s{s_o1}, s{sb}, {off}"]
    g.lq.add(pre, dma(VW2, r, s_o1, 0), tag, (base, base + 16384))
    g.lq.add([], dma(VW2 + 1, r, s_o1, 1024), tag)
    if PB_K[k + 1] == ("KH", 1, 4):
        r2, sb2, off2 = w2_src(k + 1)
        g.lq.add([f"s_add_u32 s{s_o1}, s{sb2}, {off2 - 16384}"], dma(VW2D, r2, s_o1, 2048), tag)
        g.lq.add([], dma(VW2D + 1, r2, s_o1, 3072), tag)
    else:
        g.lq.add([], dma(VW2 + 2, r, s_o1, 2048), tag)
        g.lq.add([], dma(VW2 + 3, r, s_o1, 3072), tag)


def areg(k, sub):
    return 8 * k + 4 * sub


def add_act(g, k0, k1):
    k = k0
    while k < k1:
        sb, off = act_src(k)
        two = k + 1 < k1 and act_src(k + 1) == (sb, off + 2048)
        va = VL16D if PB_K[k] == ("KH", 1, 4) else VL16
        n = 4 if two else 2
        for i in range(n):
            pre = [f"s_add_u32 s{s_o2}, s{sb}, {off}"] if i == 0 else []
            g.lq.add(pre, f"buffer_load_dwordx4 {ar(areg(k + i // 2, i % 2), 4)}, v{va}, {srd(sWS)}, s{s_o2} offen" +
                     (f" offset:{1024 * i}" if i else "") + " sc1", f"act{k + i // 2}")
        k += n // 2


def phase_b(g, grp_addr):
    S = g.S
    lq = g.lq
    addr = dict(enumerate(grp_addr))
    for i in range(6):
        addr[9 + i] = addr[i]
    AB, AA = ACC, ACC + 64
    VGT = VT

    def reads(k):
        a = addr[k // 2] + (k % 2) * 2048
        base, off = VW2A + a // 65536, a % 65536
        fb = VFR + 8 * (k % 2)
        return [f"ds_read_b64_tr_b16 {vr(fb + 4 * c + 2 * t, 2)}, v{base} offset:{off + 256 * c + 1024 * t}" for c in range(2) for t in range(2)]

    for u in lq.take(1000):
        S.extend(u)
    assert not lq.q
    g.poll_issue(VPD, VPOLL, sWS, "s14")
    S.wait(vm_tag="W0")
    for r in reads(0):
        S(r)
    g.stamp()
    started = set()
    for k in range(30):
        part = PB_K[k][0]
        acc = AA if part == "O" else AB
        first = acc not in started
        started.add(acc)
        fb = VFR + 8 * (k % 2)
        mf = [mfma(acc + 32 * s + 16 * c, vr(fb + 4 * c, 4), ar(areg(k, s), 4), not first) for s in range(2) for c in range(2)]
        if k == 2:
            g.poll_check(VPD, VPOLL, sWS, "s14", 0xf0)
            add_act(g, 12, 20)
        if k == 8:
            g.poll_issue(VPD, VPOLL, sWS, "s14")
        if k == 12:
            g.poll_check(VPD, VPOLL, sWS, "s14", 0x3f00)
            add_act(g, 20, 30)
            S(f"""s_lshl_b32 s{s_t0}, s{s_tt}, 8
s_add_u32 s{s_t0}, s{s_t0}, {GATE}
v_and_b32 v{VT + 2}, 31, v{VL}
v_lshlrev_b32 v{VT + 2}, 2, v{VT + 2}
buffer_load_dword v{VGT}, v{VT + 2}, {srd(sWS)}, s{s_t0} offen sc1
buffer_load_dword v{VGT + 1}, v{VT + 2}, {srd(sWS)}, s{s_t0} offen offset:128 sc1""")
        while not lq.issued(f"act{k}"):
            u = lq.take(1)
            assert u
            S.extend(u[0])
        S.wait(lgkm0=True)
        if k % 2 == 1 and k // 2 < 6:
            g.lds.release(addr[k // 2], addr[k // 2] + 16384)
            add_w2(g, 9 + k // 2, addr[k // 2])
        rd = []
        if k + 1 < 30:
            rd = reads(k + 1)
            if (k + 1) % 2 == 0:
                while not lq.issued(f"W{(k + 1) // 2}"):
                    u = lq.take(1)
                    assert u
                    S.extend(u[0])
        for i, m in enumerate(mf):
            S(m)
            if i == 0 and rd and (k + 1) % 2 == 0:
                S.wait(vm_tag=f"W{(k + 1) // 2}")
            if i < 2:
                for r in rd[2 * i:2 * i + 2]:
                    S(r)
            else:
                for u in lq.take(2 if i == 2 else 1):
                    S.extend(u)
    assert not lq.q
    g.stamp()
    S(f"""v_mul_f32 v{VGT}, -v{VGT}, v{VC + 2}
v_mul_f32 v{VGT + 1}, -v{VGT + 1}, v{VC + 2}
v_exp_f32 v{VGT}, v{VGT}
v_exp_f32 v{VGT + 1}, v{VGT + 1}
v_add_f32 v{VGT}, 1.0, v{VGT}
v_add_f32 v{VGT + 1}, 1.0, v{VGT + 1}
v_rcp_f32 v{VGT}, v{VGT}
v_rcp_f32 v{VGT + 1}, v{VGT + 1}
v_sub_f32 v{VGT + 2}, 1.0, v{VGT}
v_sub_f32 v{VGT + 3}, 1.0, v{VGT + 1}""")
    PITCH, WB = 272, 64 * 272
    S(f"""v_and_b32 v{VT + 4}, 31, v{VL}
v_mul_u32_u24 v{VT + 4}, {PITCH}, v{VT + 4}
v_lshrrev_b32 v{VT + 5}, 5, v{VL}
v_lshl_add_u32 v{VT + 4}, v{VT + 5}, 4, v{VT + 4}
s_mul_i32 s{s_t0}, s{s_w}, {WB}
v_add_u32 v{VT + 4}, s{s_t0}, v{VT + 4}""")
    for s in range(2):
        osel = "op_sel_hi:[1,0]" if s == 0 else "op_sel:[0,1] op_sel_hi:[1,1]"
        for i in range(16):
            S(f"v_pk_mul_f32 {vr(AA + 32 * s + 2 * i, 2)}, {vr(AA + 32 * s + 2 * i, 2)}, {vr(VGT, 2)} {osel}")
    S("s_barrier")
    for s in range(2):
        osel = "op_sel_hi:[1,0,1]" if s == 0 else "op_sel:[0,1,0] op_sel_hi:[1,1,1]"
        for c in range(2):
            for q in range(4):
                b = 32 * s + 16 * c + 4 * q
                for i in range(2):
                    S(f"v_pk_fma_f32 {vr(AB + b + 2 * i, 2)}, {vr(AB + b + 2 * i, 2)}, {vr(VGT + 2, 2)}, {vr(AA + b + 2 * i, 2)} {osel}")
                S(f"ds_write_b128 v{VT + 4}, {vr(AB + b, 4)} offset:{s * 32 * PITCH + c * 128 + q * 32}")
    S(f"""v_lshrrev_b32 v{VT + 5}, 3, v0
v_and_b32 v{VT + 6}, 7, v0
v_mul_u32_u24 v{VT + 7}, {PITCH}, v{VT + 5}
v_lshl_add_u32 v{VT + 7}, v{VT + 6}, 5, v{VT + 7}
v_lshlrev_b32 v{VT + 5}, 10, v{VT + 5}
v_lshl_add_u32 v{VT + 5}, v{VT + 6}, 4, v{VT + 5}
s_lshl_b32 s{s_t0}, s{s_tt}, 16
s_lshl_b32 s{s_t1}, s{s_ct}, 7
s_add_u32 s{s_t0}, s{s_t0}, s{s_t1}
s_add_u32 s{s_t1}, s{s_t0}, 32768""")
    S.wait(lgkm0=True)
    S("s_barrier")
    R = ACC
    for h in range(2):
        for wv in range(4):
            for q in range(2):
                S(f"ds_read_b128 {vr(R + 32 * h + 8 * wv + 4 * q, 4)}, v{VT + 7} offset:{wv * WB + h * 32 * PITCH + q * 16}")
    for h in range(2):
        b = R + 32 * h
        for i in range(4):
            S(f"v_pk_add_f32 {vr(b + 2 * i, 2)}, {vr(b + 2 * i, 2)}, {vr(b + 8 + 2 * i, 2)}")
        for i in range(4):
            S(f"v_pk_add_f32 {vr(b + 16 + 2 * i, 2)}, {vr(b + 16 + 2 * i, 2)}, {vr(b + 24 + 2 * i, 2)}")
        for i in range(4):
            S(f"v_pk_add_f32 {vr(b + 2 * i, 2)}, {vr(b + 2 * i, 2)}, {vr(b + 16 + 2 * i, 2)}")
        for i in range(4):
            S(f"v_cvt_pk_bf16_f32 v{b + 8 + i}, v{b + 2 * i}, v{b + 2 * i + 1}")
        S(f"buffer_store_dwordx4 {vr(b + 8, 4)}, v{VT + 5}, {srd(sOUT)}, s{s_t0 + h} offen")
    finish(g)


def finish(g):
    S = g.S
    if OPT["diag"]:
        a, b, mult, unit = OPT["diag"].split(":")
        S.wait(vm0=True)
        g.stamp()
        if a == "entry":
            S("s_mov_b32 s18, s3")
        if b == "karg":
            S("s_mov_b32 s20, s97")
        S(f"s_sub_u32 s22, s20, s18\ns_mul_i32 s22, s22, {mult}")
        if unit == "c":
            S("s_lshr_b32 s22, s22, 4")
        S(f"""s_min_u32 s22, s22, 20000
s_memrealtime s[24:25]
s_waitcnt lgkmcnt(0)
L_dg_{g.kind}:
s_memrealtime s[26:27]
s_waitcnt lgkmcnt(0)
s_sub_u32 s26, s26, s24
s_cmp_lt_u32 s26, s22
s_cbranch_scc1 L_dg_{g.kind}""")
    if OPT["stamps"]:
        S.wait(vm0=True)
        g.stamp()
        S(f"""s_memrealtime s[{s_stamp}:{s_stamp + 1}]
s_waitcnt lgkmcnt(0)
v_writelane_b32 v{VST}, s{s_stamp}, 30
v_writelane_b32 v{VST}, s3, 31
s_lshl_b32 s{s_t0}, s2, 2
s_add_u32 s{s_t0}, s{s_t0}, s{s_w}
s_lshl_b32 s{s_t0}, s{s_t0}, 7
s_add_u32 s{s_t0}, s{s_t0}, {STAMP}
v_lshlrev_b32 v{VT}, 2, v{VL}
s_mov_b64 exec, 0xffffffff
buffer_store_dword v{VST}, v{VT}, {srd(sWS)}, s{s_t0} offen""")
    S("s_endpgm")


def flag_store(g, soff, vflag=VFLAG):
    g.S(f"buffer_store_dword v{VONE}, v{vflag}, {srd(sWS)}, s{soff} offen sc1")


def bf_addr(g, dst, stage):
    g.S(f"""s_lshl_b32 s{dst}, s{s_tb}, 1
s_add_u32 s{dst}, s{dst}, s{s_th}
s_lshl_b32 s{dst}, s{dst}, 2
s_and_b32 s{s_t0}, s{s_j}, 3
s_add_u32 s{dst}, s{dst}, s{s_t0}
s_lshl_b32 s{dst}, s{dst}, 5
s_lshr_b32 s{s_t0}, s{s_j}, 2
s_lshl_b32 s{s_t0}, s{s_t0}, 1
s_add_u32 s{dst}, s{dst}, s{s_t0}
s_add_u32 s{dst}, s{dst}, s{s_ch}
s_lshl_b32 s{dst}, s{dst}, 2
s_add_u32 s{dst}, s{dst}, {BF + 16 * stage}""")


def act_base(g):
    g.S(f"s_lshl_b32 s{s_act}, s{s_tb}, 1\ns_add_u32 s{s_act}, s{s_act}, s{s_th}\ns_mul_i32 s{s_act}, s{s_act}, {118 * 2048}")


def jct(g, dst):
    g.S(f"s_lshl_b32 s{dst}, s{s_j}, 1\ns_add_u32 s{dst}, s{dst}, s{s_ch}\ns_lshl_b32 s{dst}, s{dst}, 1\ns_add_u32 s{dst}, s{dst}, s{s_th}")


def ffn_addr(g, dst, idx_expr_sreg, n, base):
    up = n * 1024
    g.S(f"""s_lshr_b32 s{s_t1}, s{idx_expr_sreg}, 1
s_lshl_b32 s{s_t1}, s{s_t1}, 8
s_add_u32 s{s_t1}, s{s_t1}, {base}
s_and_b32 s{s_t2}, s{idx_expr_sreg}, 1
v_xor_b32 v{VT + 7}, s{s_t2}, v{VT + 3}
v_lshl_add_u32 v{VT + 7}, v{VT + 7}, 5, v{VPB}
v_mul_u32_u24 v{VT + 8}, {up}, v{VT + 3}
v_add3_u32 v{VT + 7}, v{VT + 7}, v{VT + 8}, s{s_t1}
v_mul_u32_u24 v{VT + 8}, {n * 512}, v{VT + 2}
v_add_u32 v{dst}, v{VT + 7}, v{VT + 8}""")


def gen_q():
    g = Gen("Q")
    S, lq = g.S, g.lq
    head(g)
    S("L_Q:")
    XR = [0, 16384, 32768]
    WR = [49152, 81920, 114688]
    quad_parts(g)
    voff_n2(g, VQ, 2, 3072, True)
    voff_ffn3(g)
    unit_start(S, s_us, f"s{s_j}", True, s_t0)
    S(f"s_lshl_b32 s{s_fb}, s{s_us}, 5\ns_lshl_b32 s{s_m8}, s{s_w}, 13")
    S("s_waitcnt lgkmcnt(0)")
    if OPT["stamps"] or OPT["diag"]:
        S("s_mov_b32 s3, s98")
    if OPT["stamps"]:
        S(f"v_mov_b32 v{VST}, 0\nv_writelane_b32 v{VST}, s100, 0")
        g.nstamp = 1
        S("s_memtime s[100:101]\ns_waitcnt lgkmcnt(0)")
        S(f"v_writelane_b32 v{VST}, s100, 1")
        g.nstamp = 2
    if OPT["diag"] and OPT["diag"].split(":")[1] == "karg":
        S("s_memrealtime s[100:101]\ns_waitcnt lgkmcnt(0)\ns_mov_b32 s97, s100")
    mk_srds(g, [sX, sQKV, sG, sU])
    for j in range(8):
        add_x(g, j, XR[j % 3])
        w = WR[j % 3]
        add_rows(g, f"A{j}", VQ, 2, sQKV, 3072, s_qb, s_o1, s_m8, w, (w, w + 32768))
        add_rows(g, f"A{j}", VG, 3, sG, 2752, s_fb, s_o2, s_m8, w + 2048, None)
        add_rows(g, f"A{j}", VU, 3, sU, 2752, s_fb, s_o2, s_m8, w + 5120, None, newso=False)
    for u in lq.take(12):
        S.extend(u)
    code_prefetch(g, CODE_SZ["Q"])
    mk_srds(g, [sWS, sPHI, sDBG, sWO, sWD, sOUT])
    misc_setup(g)
    S(f"""v_lshl_add_u32 v{VWA}, v{VT + 2}, 10, v{VT + 6}
s_lshl_b32 s{s_t0}, s{s_ch}, 8
s_add_u32 s{s_t0}, s{s_t0}, {WR[0]}
v_add_u32 v{VWA}, s{s_t0}, v{VWA}""")
    for b in range(3):
        S(f"s_mul_i32 s{s_t0}, s{s_ch}, 3\ns_add_u32 s{s_t0}, s{s_t0}, {b}")
        ffn_addr(g, VWA + 1 + b, s_t0, 3, WR[0] + 2048)
    for b in range(4):
        S(f"v_add_u32 v{VWA + 4 + b}, 0x10000, v{VWA + b}")
    phi_load(g)
    for u in lq.take(12):
        S.extend(u)
    consts(g)
    pb_setup(g)
    act_base(g)
    phi_read(g)
    g.stamp()
    S.wait(vm_tag="A0")
    S("s_barrier")
    g.stamp()

    def reads(ks):
        j, kk = ks // 4, ks % 4
        buf = ks % 2
        fx, fw = VFR + 8 * buf, VFR + 16 + 16 * buf
        o = WR[j % 3] - WR[0] + kk * 8192
        st = 4 if o >= 65536 else 0
        o %= 65536
        xr = [f"ds_read_b128 {vr(fx + 4 * s, 4)}, v{VXA + kk} offset:{XR[j % 3] + 4096 * s}" for s in range(2)]
        wr = [[f"ds_read_b64_tr_b16 {vr(fw + 4 * b + 2 * t, 2)}, v{VWA + st + b} offset:{o + t * (512 if b == 0 else 768)}" for t in range(2)] for b in range(4)]
        return [xr[0], xr[1]] + wr[0] + wr[1] + wr[2] + wr[3]

    for r in reads(0):
        S(r)
    grp = [XR[2], WR[2], WR[2] + 16384, XR[0], WR[0], WR[0] + 16384, XR[1], WR[1], WR[1] + 16384]
    for i, a in enumerate(grp):
        add_w2(g, i, a)
    for ks in range(32):
        j, kk = ks // 4, ks % 4
        buf = ks % 2
        fx, fw = VFR + 8 * buf, VFR + 16 + 16 * buf
        mf = [mfma(ACC + (2 * b + s) * 16, vr(fw + 4 * b, 4), vr(fx + 4 * s, 4), ks > 0) for b in range(4) for s in range(2)]
        bar = None
        if kk == 3:
            bar = (f"A{j + 1}" if j < 7 else None, [(XR[j % 3], XR[j % 3] + 16384), (WR[j % 3], WR[j % 3] + 32768)])
        nl = 4 if ks < 3 else 3
        if ks == 12:
            g.poll_issue(VPD, VFLAG, sDBG, "0")
        if ks == 20:
            g.poll_check(VPD, VFLAG, sDBG, "0", 1)
        kstep(g, mf, reads(ks + 1) if ks < 31 else [], nl, barrier=bar)
    g.stamp()
    S(f"""s_mul_i32 s{s_t0}, s{s_ch}, 3
s_add_u32 s{s_t0}, s{s_t0}, s{s_us}
s_lshl_b32 s{s_t0}, s{s_t0}, 11
s_add_u32 s{s_o0}, s{s_t0}, s{s_act}
s_add_u32 s{s_kb}, s{s_o0}, 4096""")
    jct(g, s_t3)
    S(f"s_lshl_b32 s15, s{s_t3}, 7\ns_add_u32 s15, s15, {KVF}")
    main = []
    for b in range(3):
        for s in range(2):
            n = 2 * b + s
            O = VFR + 16 + 4 * (n % 2)
            main += I(gelu_block(ACC + (2 * (b + 1) + s) * 16, VFR, VFR + 8, O))
            so, off = (s_o0, n * 1024) if n < 4 else (s_kb, (n - 4) * 1024)
            main += I([f"buffer_store_dwordx4 {vr(O, 4)}, v{VL16}, {srd(sWS)}, s{so} offen offset:{off} sc1"], "hst")
            if n == 3:
                main += I([f"buffer_load_dword v{VPD}, v{VPOLL}, {srd(sWS)}, s15 offen sc1"])
    weave(S, main, lq, 72)
    g.stamp()
    g.poll_check(VPD, VPOLL, sWS, "s15", 0xffff)
    PA = 192
    ZR = VFR + 24
    S(f"s_lshl_b32 s{s_o0}, s{s_t3}, 14\ns_add_u32 s{s_o0}, s{s_o0}, {KVP}\ns_lshl_b32 s{s_kb}, s{s_t3}, 11\ns_add_u32 s{s_kb}, s{s_kb}, {ZP}")
    pre_q = list(lq.q)
    lq.q = []
    for i in range(2):
        lq.add([], f"buffer_load_dwordx4 {vr(ZR + 4 * i, 4)}, v{VL16}, {srd(sWS)}, s{s_kb} offen offset:{1024 * i} sc1", "zl")
    for t in range(16):
        pre = [f"s_add_u32 s{s_o0}, s{s_o0}, 4096"] if (t % 4 == 0 and t) else []
        lq.add(pre, f"buffer_load_dwordx4 {ar(PA + 4 * t, 4)}, v{VL16}, {srd(sWS)}, s{s_o0} offen offset:{1024 * (t % 4)} sc1", "pl")
    assert not pre_q, "W2 groups should all be issued by now"
    QB = VFR
    PQ = ACC + 32
    E0, E1 = ACC + 96, ACC + 112
    PH = ACC
    M0, M1 = VT, VT + 2
    main = []
    for s in range(2):
        for h in range(2):
            for i in range(4):
                main.append(f"v_cvt_pk_bf16_f32 v{QB + 8 * s + 4 * h + i}, v{ACC + 16 * s + 8 * h + 2 * i}, v{ACC + 16 * s + 8 * h + 2 * i + 1}")
            main.append(mfma(PQ + 16 * (2 * s + h), vr(VPHI, 4), vr(QB + 8 * s + 4 * h, 4), False))
    weave(S, I(main), lq, 24)
    bf_addr(g, s_t2, 0)
    S.wait(vm_tag="hst")
    flag_store(g, s_t2)
    for s in range(2):
        a = softmax_inst(PQ + 16 * (2 * s), E0, M0, PH + 16 * s)
        b = softmax_inst(PQ + 16 * (2 * s + 1) + 8, E1, M1, PH + 16 * s + 8)
        weave(S, I(zipl(a, b)), lq, 40)
        if s == 0:
            for u in lq.take(100):
                S.extend(u)
            g.poll_issue(VPD, VPOLL, sWS, "s14")
            S(f"""s_lshr_b32 s{s_t0}, s{s_m4}, 1
s_add_u32 s{s_t0}, s{s_t0}, {MISC + 4096}
v_add_u32 v{VT + 4}, s{s_t0}, v{VL16}
ds_write_b128 v{VT + 4}, {vr(ZR, 4)}
ds_write_b128 v{VT + 4}, {vr(ZR + 4, 4)} offset:1024
v_lshrrev_b32 v{VT + 5}, 5, v{VL}
v_lshlrev_b32 v{VT + 5}, 10, v{VT + 5}
v_bfe_u32 v{VT + 6}, v{VL}, 2, 2
v_lshl_add_u32 v{VT + 5}, v{VT + 6}, 7, v{VT + 5}
v_bfe_u32 v{VT + 6}, v{VL}, 4, 1
v_lshl_add_u32 v{VT + 5}, v{VT + 6}, 5, v{VT + 5}
v_and_b32 v{VT + 6}, 3, v{VL}
v_lshl_add_u32 v{VT + 5}, v{VT + 6}, 3, v{VT + 5}
v_add_u32 v{VT + 5}, s{s_t0}, v{VT + 5}""")
            S.wait(lgkm0=True)
            for h in range(2):
                for t in range(2):
                    S(f"ds_read_b64_tr_b16 {vr(ZR + 4 * h + 2 * t, 2)}, v{VT + 5} offset:{64 * h + 512 * t}")
    g.stamp()
    PS, Z0, Z1 = PQ, PQ + 16, PQ + 32
    for t in range(16):
        S(mfma(PS, vr(VID, 4), ar(PA + 4 * t, 4), t > 0))
    S(mfma(Z0, vr(ZR, 4), vr(VONES, 4), False))
    S(mfma(Z1, vr(ZR + 4, 4), vr(VONES, 4), False))
    g.poll_check(VPD, VPOLL, sWS, "s14", 0xf)
    add_act(g, 0, 12)
    for u in lq.take(4):
        S.extend(u)
    KA = VFR
    PX = VFR + 16
    S(f"""s_lshr_b32 s{s_t0}, s{s_m4}, 2
s_add_u32 s{s_t0}, s{s_t0}, {MISC + 12288}
v_add_u32 v{VT + 4}, s{s_t0}, v{VL16}
s_lshl_b32 s{s_t0}, s{s_ch}, 11
s_add_u32 s{s_t0}, s{s_t0}, {MISC + 12288}
v_add_u32 v{VT + 5}, s{s_t0}, v{VL16}""")
    for i in range(4):
        S(f"v_cvt_pk_bf16_f32 v{PX + i}, v{PS + 2 * i}, v{PS + 2 * i + 1}")
    S(f"ds_write_b128 v{VT + 4}, {vr(PX, 4)}")
    for h, Z in enumerate((Z0, Z1)):
        for i in range(8):
            S(f"v_cvt_pk_bf16_f32 v{KA + 8 * h + i}, v{Z + 2 * i}, v{Z + 2 * i + 1}")
    S.wait(lgkm0=True)
    S("s_barrier")
    S(f"ds_read_b128 {vr(PX, 4)}, v{VT + 5}\nds_read_b128 {vr(PX + 4, 4)}, v{VT + 5} offset:1024")
    for u in lq.take(2):
        S.extend(u)
    for i in range(8):
        S(f"v_cndmask_b32 v{KA + i}, v{PX + i}, v{KA + i}, s[{s_mk0}:{s_mk0 + 1}]")
    ND = PQ
    for s in range(2):
        for jj in range(2):
            S(mfma(ND + 32 * s, vr(KA + 4 * jj, 4), vr(PH + 16 * s + 4 * jj, 4), jj > 0))
    for i in range(8):
        S(f"v_cndmask_b32 v{KA + 8 + i}, v{KA + 8 + i}, v{PX + i}, s[{s_mk0}:{s_mk0 + 1}]")
    for s in range(2):
        for jj in range(2):
            S(mfma(ND + 32 * s + 16, vr(KA + 8 + 4 * jj, 4), vr(PH + 16 * s + 8 + 4 * jj, 4), jj > 0))
    S(f"""s_lshl_b32 s{s_t0}, s{s_j}, 1
s_add_u32 s{s_t0}, s{s_t0}, s{s_ch}
s_lshl_b32 s{s_t0}, s{s_t0}, 12
s_add_u32 s{s_t0}, s{s_t0}, {86 * 2048}
s_add_u32 s{s_o0}, s{s_t0}, s{s_act}""")
    main = []
    for h in range(2):
        for s in range(2):
            d = ND + 32 * s + 16 * h
            num, den = (d, d + 8) if h == 0 else (d + 8, d)
            O = VFR + 24 + 4 * (2 * h + s)
            main += [f"v_add_f32 v{den}, v{den}, v{VC + 3}", f"v_rcp_f32 v{den}, v{den}"]
            main += [f"v_pk_mul_f32 {vr(num + 2 * i, 2)}, {vr(num + 2 * i, 2)}, {vr(den, 2)} op_sel_hi:[1,0]" for i in range(4)]
            main += [f"v_cvt_pk_bf16_f32 v{O + i}, v{num + 2 * i}, v{num + 2 * i + 1}" for i in range(4)]
            main += I([f"buffer_store_dwordx4 {vr(O, 4)}, v{VL16}, {srd(sWS)}, s{s_o0} offen offset:{2048 * h + 1024 * s} sc1"], "ost")
    S.extend(I(main))
    S(f"s_add_u32 s{s_t2}, s{s_t2}, 16")
    for u in lq.take(10):
        S.extend(u)
    S.wait(vm_tag="ost")
    flag_store(g, s_t2)
    g.stamp()
    phase_b(g, grp)
    return g


def gen_kv(light):
    g = Gen("KL" if light else "KH")
    S, lq = g.S, g.lq
    head(g)
    if light:
        S("L_KL:")
    NCH = 2 if light else 3
    FS = NCH * 8192
    XR = [0, 16384, 32768, 49152]
    WR = [65536, 81920, 98304, 114688]
    quad_parts(g)
    S(f"""s_lshl_b32 s{s_t0}, s{s_w}, 4
v_add_u32 v{VT + 3}, s{s_t0}, v{VT}
v_mul_u32_u24 v{VT + 3}, 3072, v{VT + 3}
v_lshrrev_b32 v{VT + 4}, 5, v{VL}
v_lshl_add_u32 v{VT + 3}, v{VT + 4}, 10, v{VT + 3}
v_and_b32 v{VT + 4}, 1, v{VT + 2}
v_lshl_add_u32 v{VT + 4}, v{VT + 4}, 6, v{VT + 1}
s_movk_i32 s{s_t0}, 1024
v_add3_u32 v{VQ}, v{VT + 3}, v{VT + 4}, s{s_t0}""")
    for i in range(1, 4):
        S(f"v_add_u32 v{VQ + i}, {i * (4 * 3072 - 1024)}, v{VQ}")
    S("s_waitcnt lgkmcnt(0)")
    if OPT["stamps"] or OPT["diag"]:
        S("s_mov_b32 s3, s98")
    if OPT["stamps"]:
        S(f"v_mov_b32 v{VST}, 0\nv_writelane_b32 v{VST}, s100, 0")
        g.nstamp = 1
        S("s_memtime s[100:101]\ns_waitcnt lgkmcnt(0)")
        S(f"v_writelane_b32 v{VST}, s100, 1")
        g.nstamp = 2
    if OPT["diag"] and OPT["diag"].split(":")[1] == "karg":
        S("s_memrealtime s[100:101]\ns_waitcnt lgkmcnt(0)\ns_mov_b32 s97, s100")
    mk_srds(g, [sX, sQKV, sWS])
    if not light:
        zero_flags(g)
    for j in range(8):
        add_x(g, j, XR[j % 4])
        w = WR[j % 4]
        add_rows(g, f"A{j}", VQ, 4, sQKV, 3072, s_qb, s_o1, s_m4, w, (w, w + 16384))
    for u in lq.take(12):
        S.extend(u)
    code_prefetch(g, CODE_SZ[g.kind])
    mk_srds(g, [sG, sU, sPHI, sDBG, sWO, sWD, sOUT, sGW])
    quad_parts(g)
    if light:
        voff_n2(g, VG, 2, 2752, True)
        S(f"v_xor_b32 v{VU}, 32, v{VG}\nv_xor_b32 v{VU + 1}, 32, v{VG + 1}")
    else:
        voff_ffn3(g)
    unit_start(S, s_us, f"s{s_j}", False, s_t0)
    S(f"s_lshr_b32 s{s_fb}, s{s_us}, 1\ns_lshl_b32 s{s_fb}, s{s_fb}, 6\ns_mul_i32 s{s_m6}, s{s_w}, {NCH * 2048}")
    misc_setup(g)
    VXB = VFR + 44
    S(f"s_lshl_b32 s{s_t0}, s{s_ch}, 12")
    for i in range(4):
        S(f"v_add_u32 v{VXA + i}, s{s_t0}, v{VXA + i}\nv_xor_b32 v{VXB + i}, 0x1000, v{VXA + i}")
    VKA = VWA + 9
    S(f"""v_lshl_add_u32 v{VKA}, v{VT + 2}, 11, v{VT + 6}
s_lshl_b32 s{s_t0}, s{s_ch}, 8
s_add_u32 s{s_t0}, s{s_t0}, {WR[0]}
v_add_u32 v{VKA}, s{s_t0}, v{VKA}""")
    for b in range(2 if light else 3):
        S(f"s_and_b32 s{s_t0}, s{s_us}, 1")
        if b < 2:
            S(f"s_lshl_b32 s{s_t3}, s{s_ch}, 1\ns_add_u32 s{s_t0}, s{s_t0}, s{s_t3}\ns_add_u32 s{s_t0}, s{s_t0}, {b}")
        else:
            S(f"s_add_u32 s{s_t0}, s{s_t0}, 4")
        ffn_addr(g, VWA + b, s_t0, NCH, 0)
        S(f"v_add_u32 v{VWA + 3 + b}, 0x10000, v{VWA + b}\nv_add_u32 v{VWA + 6 + b}, 0x20000, v{VWA + b}")
    phi_load(g)
    if light:
        S(f"s_lshr_b32 s{s_t1}, s{s_m4}, 2\ns_add_u32 m0, s{s_t1}, {MISC + 12288}\ns_mov_b32 s{s_t0}, 0")
        S(dma(VL16, sGW, s_t0, 0), tag="gw")
        S(f"s_add_u32 s15, s{s_t1}, {MISC + 12288}\nv_lshlrev_b32 v{VWA + 10}, 4, v{VT + 2}")
    for u in lq.take(4):
        S.extend(u)
    consts(g)
    pb_setup(g)
    act_base(g)
    phi_read(g)
    g.stamp()
    S.wait(vm_tag="A0")
    S("s_barrier")
    if not light:
        set_ready(g)
    g.stamp()

    xa = lambda ks, s: 8 * ks + 4 * s

    def reads1(ks):
        j, kk = ks // 4, ks % 4
        fw = VFR + 8 * (ks % 2)
        o = WR[j % 4] - WR[0] + kk * 4096
        xr = [f"ds_read_b128 {ar(xa(ks, s), 4)}, v{(VXA, VXB)[s] + kk} offset:{XR[j % 4]}" for s in range(2)]
        wr = [[f"ds_read_b64_tr_b16 {vr(fw + 4 * b + 2 * t, 2)}, v{VKA} offset:{o + 512 * b + 1024 * t}" for t in range(2)] for b in range(2)]
        return wr[0] + [xr[0], xr[1]] + wr[1]

    K = 1024
    if light:
        FR = [128 * K, 0, 64 * K, 16 * K, 80 * K, 32 * K, 96 * K, 48 * K]
        grp = [112 * K] + FR
        order = [("F", j) for j in range(8)] + [("W", i) for i in range(9)]
    else:
        FR = [0, 64 * K, 24 * K, 88 * K] * 2
        grp = [128 * K, 48 * K, 112 * K, 0, 64 * K, 16 * K, 32 * K, 80 * K, 96 * K]
        order = [("W", 0)] + [("F", j) for j in range(4)] + [("W", 1), ("W", 2)] + [("F", j) for j in range(4, 8)] + [("W", i) for i in range(3, 9)]
    for what, j in order:
        if what == "W":
            add_w2(g, j, grp[j])
            continue
        f = FR[j]
        add_rows(g, f"F{j}", VG, NCH, sG, 2752, s_fb, s_o2, s_m6, f, (f, f + FS), newkb=j)
        add_rows(g, f"F{j}", VU, NCH, sU, 2752, s_fb, s_o2, s_m6, f + NCH * 1024, None, newso=False)
    for r in reads1(0):
        S(r)
    KA_, VA_ = ACC, ACC + 32
    for ks in range(32):
        j, kk = ks // 4, ks % 4
        fw = VFR + 8 * (ks % 2)
        mf = [mfma(KA_ + 16 * s, vr(fw, 4), ar(xa(ks, s), 4), ks > 0) for s in range(2)] + \
             [mfma(VA_ + 16 * s, ar(xa(ks, s), 4), vr(fw + 4, 4), ks > 0) for s in range(2)]
        bar = None
        if kk == 3:
            bar = (f"A{j + 1}" if j < 7 else None, [(XR[j % 4], XR[j % 4] + 16384), (WR[j % 4], WR[j % 4] + 16384)])
        nl = 4 if ks < 4 else 2
        if ks == 16:
            g.poll_issue(VPD, VFLAG, sDBG, "0")
        if ks == 28:
            g.poll_check(VPD, VFLAG, sDBG, "0", 1)
        kstep(g, mf, reads1(ks + 1) if ks < 31 else [], nl, barrier=bar, wait0=False)
    g.stamp()
    KB = VFR
    VB = VFR + 16
    PH = VFR + 32
    PK = ACC + 64
    E0, E1 = ACC, ACC + 16
    TR0, TR1 = ACC + 32, ACC + 48
    M0, M1 = VT, VT + 2
    main = []
    for s in range(2):
        for h in range(2):
            for i in range(4):
                main.append(f"v_cvt_pk_bf16_f32 v{KB + 8 * s + 4 * h + i}, v{KA_ + 16 * s + 8 * h + 2 * i}, v{KA_ + 16 * s + 8 * h + 2 * i + 1}")
            main.append(mfma(PK + 16 * (2 * s + h), vr(VPHI, 4), vr(KB + 8 * s + 4 * h, 4), False))
    for s in range(2):
        for i in range(8):
            main.append(f"v_cvt_pk_bf16_f32 v{VB + 8 * s + i}, v{VA_ + 16 * s + 2 * i}, v{VA_ + 16 * s + 2 * i + 1}")
    PT = KB
    D0, D1 = PK, PK + 16
    ZA = [VT + 4, VT + 6]

    def after(s):
        L = []
        for h, TR in enumerate((TR0, TR1)):
            for i in range(8):
                L.append(f"v_cvt_pk_bf16_f32 v{PT + 8 * h + i}, v{TR + 2 * i}, v{TR + 2 * i + 1}")
            for jj in range(2):
                L.append(mfma((D0, D1)[h], vr(PT + 8 * h + 4 * jj, 4), vr(VB + 8 * s + 4 * jj, 4), s > 0 or jj > 0))
            for i in range(8):
                if s == 0 and i == 0:
                    continue
                a = vr(TR, 2) if (s == 0 and i == 1) else vr(ZA[h], 2)
                L.append(f"v_pk_add_f32 {vr(ZA[h], 2)}, {a}, {vr(TR + 2 * i, 2)}")
        return L

    for s in range(2):
        a = softmax_inst(PK + 16 * (2 * s), E0, M0, PH)
        b = softmax_inst(PK + 16 * (2 * s + 1) + 8, E1, M1, PH + 8)
        sm = zipl(a, b)
        if s == 1:
            sm = sm[:26] + after(0) + sm[26:]
        main += sm
        for h, TR in enumerate((TR0, TR1)):
            for jj in range(2):
                main.append(mfma(TR, vr(PH + 8 * h + 4 * jj, 4), vr(VID + 4 * jj, 4), jj > 0))
    weave(S, I(main), lq, 72)
    XCH = MISC + 4096
    jct(g, s_t3)
    S(f"""s_lshl_b32 s{s_o0}, s{s_t3}, 4
s_add_u32 s{s_o0}, s{s_o0}, s{s_tb}
s_lshl_b32 s{s_kb}, s{s_o0}, 7
s_add_u32 s{s_kb}, s{s_kb}, {ZP}
s_lshl_b32 s{s_o0}, s{s_o0}, 10
s_add_u32 s{s_o0}, s{s_o0}, {KVP}
s_lshl_b32 s{s_t3}, s{s_t3}, 5
s_add_u32 s{s_t3}, s{s_t3}, s{s_tb}
s_lshl_b32 s{s_t3}, s{s_t3}, 2
s_add_u32 s{s_t3}, s{s_t3}, {KVF}""")
    S.extend(I(after(1)))
    S(f"""v_add_f32 v{ZA[0]}, v{ZA[0]}, v{ZA[0] + 1}
v_add_f32 v{ZA[1]}, v{ZA[1]}, v{ZA[1] + 1}
v_permlane32_swap_b32 v{ZA[0]}, v{ZA[1]}
v_add_f32 v{ZA[0]}, v{ZA[0]}, v{ZA[1]}""")
    S(f"""s_cmp_eq_u32 s{s_th}, 1
s_cselect_b64 s[{s_mk1}:{s_mk1 + 1}], -1, 0
s_lshr_b32 s{s_t0}, s{s_m4}, 1
s_add_u32 s{s_t0}, s{s_t0}, {XCH}
v_add_u32 v{VT + 8}, s{s_t0}, v{VL16}
s_xor_b32 s{s_t0}, s{s_t0}, 2048
v_add_u32 v{VT + 9}, s{s_t0}, v{VL16}
s_lshl_b32 s{s_t0}, s{s_w}, 8
s_add_u32 s{s_t0}, s{s_t0}, {MISC}
v_lshl_add_u32 v{VT}, v{VL}, 2, s{s_t0}
v_xor_b32 v{VT + 1}, 0x100, v{VT}""")
    for i in range(16):
        S(f"v_cndmask_b32 v{D0 + i}, v{D0 + i}, v{D1 + i}, s[{s_mk0}:{s_mk0 + 1}]")
    for i in range(8):
        S(f"v_cndmask_b32 v{D1 + i}, v{D0 + 8 + i}, v{D0 + i}, s[{s_mk1}:{s_mk1 + 1}]")
    S(f"ds_write_b128 v{VT + 8}, {vr(D1, 4)}\nds_write_b128 v{VT + 8}, {vr(D1 + 4, 4)} offset:1024\nds_write_b32 v{VT}, v{ZA[0]}")
    for i in range(8):
        S(f"v_cndmask_b32 v{D0 + i}, v{D0 + i}, v{D0 + 8 + i}, s[{s_mk1}:{s_mk1 + 1}]")
    assert lq.issued("F0")
    S.wait(vm_tag="F0", lgkm0=True)
    S("s_barrier")
    S(f"ds_read_b128 {vr(D1 + 8, 4)}, v{VT + 9}\nds_read_b128 {vr(D1 + 12, 4)}, v{VT + 9} offset:1024\nds_read_b32 v{ZA[1]}, v{VT + 1}")

    NB = 2 if light else 3

    def reads2(ks):
        j, kk = ks // 4, ks % 4
        fw = VFR + 12 * (ks % 2)
        a = FR[j] + kk * NCH * 2048
        st = a // 65536
        o = a - st * 65536
        L = [f"ds_read_b64_tr_b16 {vr(fw + 4 * b + 2 * t, 2)}, v{VWA + 3 * st + b} offset:{o + t * NCH * 256}" for b in range(NB) for t in range(2)]
        if light:
            L.append(f"ds_read_b128 {vr(fw + 8, 4)}, v{VWA + 11} offset:{32 * kk}")
        return L

    def gw_addr(j):
        if light:
            S("\n".join([f"s_add_u32 s{s_t0}, s{s_rot}, {j}", f"s_and_b32 s{s_t0}, s{s_t0}, 7", f"s_lshl_b32 s{s_t0}, s{s_t0}, 7",
                         f"s_add_u32 s{s_t0}, s{s_t0}, s15", f"v_add_u32 v{VWA + 11}, s{s_t0}, v{VWA + 10}"]))

    for i in range(4):
        S(f"v_pk_add_f32 {vr(D0 + 2 * i, 2)}, {vr(D0 + 2 * i, 2)}, {vr(D1 + 8 + 2 * i, 2)}")
    S(f"v_add_f32 v{ZA[0]}, v{ZA[0]}, v{ZA[1]}")
    O = VFR + 40
    for i in range(4):
        S(f"v_cvt_pk_bf16_f32 v{O + i}, v{D0 + 2 * i}, v{D0 + 2 * i + 1}")
    S(f"v_cvt_pk_bf16_f32 v{O + 4}, v{ZA[0]}, v{ZA[0]}\nv_lshlrev_b32 v{O + 5}, 1, v{VL}")
    S(f"buffer_store_dwordx4 {vr(O, 4)}, v{VL16}, {srd(sWS)}, s{s_o0} offen sc1", tag="kst")
    S(f"buffer_store_short v{O + 4}, v{O + 5}, {srd(sWS)}, s{s_kb} offen sc1", tag="kst")
    S(f"s_mov_b32 s{s_qb}, s{s_t3}")
    gw_addr(0)
    for r in reads2(0):
        S(r)
    g.stamp()
    for ks in range(32):
        j, kk = ks // 4, ks % 4
        fw = VFR + 12 * (ks % 2)
        mf = [mfma(ACC + (2 * b + s) * 16, vr(fw + 4 * b, 4), ar(xa(ks, s), 4), ks > 0) for b in range(2) for s in range(2)]
        mf.append(mfma(ACC + 64, vr(fw + 8, 4), ar(xa(ks, 0), 4), ks > 0))
        bar = None
        if kk == 3:
            bar = (f"F{j + 1}" if j < 7 else None, [(FR[j], FR[j] + FS)])
            if j < 7:
                gw_addr(j + 1)
        if ks == 6:
            S.wait(vm_tag="kst")
            flag_store(g, s_qb)
        if ks == 28:
            g.poll_issue(VPD, VPOLL, sWS, "s14")
        kstep(g, mf, reads2(ks + 1) if ks < 31 else [], 2, barrier=bar)
    g.stamp()
    S(f"""s_lshl_b32 s{s_t0}, s{s_ch}, 1
s_add_u32 s{s_t0}, s{s_t0}, s{s_us}
s_lshl_b32 s{s_t0}, s{s_t0}, 11
s_add_u32 s{s_t0}, s{s_t0}, s{s_act}
s_lshl_b32 s{s_t1}, s{s_ch}, 10
s_add_u32 s{s_o0}, s{s_t0}, s{s_t1}
s_xor_b32 s{s_kb}, s{s_o0}, 1024
s_add_u32 s{s_t0}, s{s_us}, 4
s_lshl_b32 s{s_t0}, s{s_t0}, 11
s_add_u32 s{s_t0}, s{s_t0}, s{s_act}
s_add_u32 s{s_fb}, s{s_t0}, s{s_t1}""")
    main = []
    n = 0
    for b in range(2):
        for s in range(2):
            O = VFR + 16 + 4 * (n % 2)
            main += I(gelu_block(ACC + (2 * b + s) * 16, VFR, VFR + 8, O))
            main += I([f"buffer_store_dwordx4 {vr(O, 4)}, v{VL16}, {srd(sWS)}, s{s_o0 if s == 0 else s_kb} offen offset:{2048 * b} sc1"], "hst")
            n += 1
    half = len(main) // 2
    weave(S, main[:half], lq, 60)
    for u in lq.take(100):
        S.extend(u)
    g.poll_check(VPD, VPOLL, sWS, "s14", 0xf)
    add_act(g, 0, 12)
    main = main[half:]
    bf_addr(g, s_t2, 2)
    if not light:
        O = VFR + 16
        main += I(gelu_block(ACC + 64, VFR, VFR + 8, O))
        main += I([f"buffer_store_dwordx4 {vr(O, 4)}, v{VL16}, {srd(sWS)}, s{s_fb} offen sc1"], "hst")
        vf = VFLAG
    else:
        vf = VT + 3
        S(f"""s_lshl_b32 s{s_t0}, s{s_tb}, 1
s_add_u32 s{s_t0}, s{s_t0}, s{s_th}
s_lshl_b32 s{s_t1}, s{s_t0}, 1
s_add_u32 s{s_t1}, s{s_t1}, s{s_ch}
s_lshl_b32 s{s_t1}, s{s_t1}, 7
s_add_u32 s{s_fb}, s{s_t1}, {GATE}
s_lshl_b32 s{s_t0}, s{s_t0}, 9
s_lshl_b32 s{s_t1}, s{s_ch}, 2
s_add_u32 s{s_t0}, s{s_t0}, s{s_t1}
s_add_u32 s{s_t0}, s{s_t0}, {BF + 48 - 128}
s_xor_b32 s{s_t1}, s{s_j}, s{s_th}
s_bitcmp1_b32 s{s_t1}, 0
s_cselect_b32 s{s_t1}, {OOB}, 0
v_mov_b32 v{VT}, {OOB}
v_lshl_add_u32 v{VT + 1}, v{VL}, 2, s{s_t1}
v_cmp_gt_u32 vcc, 32, v{VL}
v_cndmask_b32 v{VT + 2}, v{VT}, v{VT + 1}, vcc
s_add_u32 s{s_t0}, s{s_t0}, s{s_t1}
v_lshl_add_u32 v{VT + 1}, v{VL}, 7, s{s_t0}
v_cmp_gt_u32 vcc, 5, v{VL}
v_cndmask_b32 v{vf}, v{VT}, v{VT + 1}, vcc
v_mov_b32 v{VT + 1}, s{s_t2}
v_cmp_eq_u32 vcc, 0, v{VL}
v_cndmask_b32 v{vf}, v{vf}, v{VT + 1}, vcc
s_mov_b32 s{s_t2}, 0""")
        main += I([f"buffer_store_dword v{ACC + 64}, v{VT + 2}, {srd(sWS)}, s{s_fb} offen sc1"], "hst")
    weave(S, main, lq, 72)
    for u in lq.take(10):
        S.extend(u)
    S.wait(vm_tag="hst")
    flag_store(g, s_t2, vf)
    g.stamp()
    phase_b(g, grp)
    return g


CODE_SZ = {"Q": 24576, "KH": 24576, "KL": 24576}


def build(path, **opt):
    OPT.update(opt)
    gens = [gen_kv(False), gen_kv(True), gen_q()]
    txt = []
    hd = None
    for g in gens:
        t = finalize(g.S, g.kind)
        h, body = t.split("L_split:\n")
        if hd is None:
            hd = h
            txt.append(h)
        assert h == hd
        txt.append(body)
        txt.append("\n".join(g.slow))
        txt.append(".p2align 6")
    hdr = open("gated_mix__linear_kernel_hedgehog__glu_gated_geglu__prompt.s.ref").read().split("; Override launch")[0]
    out = hdr + "; @launch grid=(256,1,1) block=(256,1,1) lds=163840\n"
    out += f""".amdgcn_target "amdgcn-amd-amdhsa--gfx950"
.text
.globl {KN}
.p2align 8
.type {KN},@function
{KN}:
"""
    out += "\n".join(txt)
    out += "\nL_end:\ns_endpgm\n"
    out += ".fill 8192, 4, 0xbf810000\n"
    out += f""".section .rodata,"a"
.p2align 6
.amdhsa_kernel {KN}
  .amdhsa_next_free_vgpr 512
  .amdhsa_next_free_sgpr 102
  .amdhsa_accum_offset 256
  .amdhsa_group_segment_fixed_size 0
  .amdhsa_kernarg_size 96
  .amdhsa_user_sgpr_count 2
  .amdhsa_user_sgpr_kernarg_segment_ptr 1
  .amdhsa_system_sgpr_workgroup_id_x 1
.end_amdhsa_kernel
"""
    open(path, "w").write(out)
    print("wrote", path, len(out), "bytes")


if __name__ == "__main__":
    kw = {}
    path = sys.argv[1] if len(sys.argv) > 1 else "k.s"
    for a in sys.argv[2:]:
        k, v = a.split("=")
        kw[k] = {"0": False, "1": True}.get(v, v)
    build(path, **kw)
```

```python
import re

TRANS = ("v_exp_f32", "v_rcp_f32", "v_log_f32", "v_rsq_f32", "v_sqrt_f32")
VOP3_ONLY = ("v_fma_f32", "v_max3_f32", "v_min3_f32", "v_pk_", "v_cvt_pk_bf16_f32", "v_mul_lo_u32", "v_mad_u32_u24",
             "v_lshl_add_u32", "v_add_lshl_u32", "v_and_or_b32", "v_bfe_u32", "v_add3_u32", "v_lshl_or_b32",
             "v_accvgpr_read", "v_accvgpr_write", "v_mfma", "v_or3_b32", "v_xad_u32", "v_med3", "v_readlane", "v_writelane", "v_perm_b32",
             "v_mbcnt", "v_mul_hi_u32", "v_dot2_f32_bf16", "v_bfi_b32", "v_alignbit")
INLINE_F = {"0.5", "-0.5", "1.0", "-1.0", "2.0", "-2.0", "4.0", "-4.0"}


def regs_of(tok):
    tok = tok.strip()
    tok = tok.lstrip("-")
    if tok.startswith("abs(") or tok.startswith("|"):
        tok = tok.replace("abs(", "").replace(")", "").replace("|", "")
    m = re.fullmatch(r"([vas])(\d+)", tok)
    if m:
        return [(m.group(1), int(m.group(2)))]
    m = re.fullmatch(r"([vas])\[(\d+):(\d+)\]", tok)
    if m:
        return [(m.group(1), i) for i in range(int(m.group(2)), int(m.group(3)) + 1)]
    if tok in ("vcc", "vcc_lo", "vcc_hi"):
        return [("s", "vcc")]
    if tok in ("exec", "exec_lo", "exec_hi"):
        return [("s", "exec")]
    if tok == "m0":
        return [("s", "m0")]
    return []


def is_literal(tok):
    tok = tok.strip()
    if regs_of(tok) or tok in INLINE_F or tok in ("off", "scc"):
        return False
    try:
        v = int(tok, 0)
        return not (-16 <= v <= 64)
    except ValueError:
        pass
    if tok.startswith("L_"):
        return True
    try:
        float(tok)
        return True
    except ValueError:
        return False


class Ins:
    __slots__ = ("text", "op", "kind", "rd", "wr", "size", "tag", "srcc", "promotable", "stdata", "count")

    def __init__(self, text, tag=None, count=True):
        self.text = text
        self.tag = tag
        self.count = count
        self.srcc = []
        self.stdata = []
        self.promotable = False
        t = text.split(";")[0].strip()
        if t.endswith(":") or t.startswith("."):
            self.op, self.kind, self.rd, self.wr, self.size = t, "label", [], [], 0
            return
        parts = t.split(None, 1)
        op = parts[0]
        self.op = op
        rest = parts[1] if len(parts) > 1 else ""
        ops, depth, cur = [], 0, ""
        for c in rest:
            if c in "[(":
                depth += 1
            if c in "])":
                depth -= 1
            if c == "," and depth == 0:
                ops.append(cur)
                cur = ""
            else:
                cur += c
        mods = ""
        if cur.strip():
            last = cur.strip().split(None, 1)
            ops.append(last[0])
            mods = last[1] if len(last) > 1 else ""
        ops = [o.strip() for o in ops]
        R = [regs_of(o) for o in ops]
        flat = lambda xs: [r for x in xs for r in x]
        lit = any(is_literal(o) for o in ops)
        EX = [("s", "exec")]
        if op.startswith("v_mfma"):
            self.kind, self.wr, self.rd, self.srcc, self.size = "mfma", R[0], flat(R[1:]), R[3], 8
        elif op.startswith("ds_read"):
            self.kind, self.wr, self.rd, self.size = "ds", R[0], flat(R[1:]), 8
        elif op.startswith("ds_write"):
            self.kind, self.wr, self.rd, self.size = "ds", [], flat(R), 8
            if "addtid" in op:
                self.rd = self.rd + [("s", "m0")]
        elif op.startswith("buffer_load") or op.startswith("global_load"):
            self.kind, self.size = "vmem", 8
            if re.search(r"\blds\b", mods):
                self.wr, self.rd = [], flat(R) + [("s", "m0")]
            else:
                self.wr, self.rd = R[0], flat(R[1:])
        elif op.startswith("buffer_store") or op.startswith("global_store") or "atomic" in op:
            self.kind, self.wr, self.rd, self.size = "vmem", [], flat(R), 8
            if op.endswith("x4") or op.endswith("x3"):
                self.stdata = R[0] if op.startswith("buffer") else R[1]
        elif op.startswith("s_load") or op in ("s_memtime", "s_memrealtime"):
            self.kind, self.wr, self.rd, self.size = "smem", R[0], flat(R[1:]), 8
        elif op in ("s_waitcnt", "s_nop", "s_barrier", "s_sleep", "s_setprio", "s_endpgm") or op.startswith("s_branch") or op.startswith("s_cbranch"):
            self.kind, self.wr, self.rd, self.size = "sopp", [], [], 4
        elif op.startswith("s_cmp") or op.startswith("s_bitcmp"):
            self.kind, self.wr, self.rd, self.size = "salu", [], flat(R), 8 if lit else 4
        elif op.startswith("s_"):
            self.kind, self.wr, self.rd = "salu", R[0], flat(R[1:])
            self.size = 4 if (op.endswith("k_i32") or op.startswith("s_getreg") or not lit) else 8
            if op.endswith("k_i32") and not op.startswith("s_movk"):
                self.rd = self.rd + R[0]
        elif op.startswith("v_"):
            base = op.replace("_e32", "").replace("_e64", "")
            self.kind = "trans" if base in TRANS else "valu"
            self.wr, self.rd = R[0], flat(R[1:])
            if base.startswith("v_permlane"):
                self.kind = "perm"
                self.wr = self.rd = flat(R)
            if base.startswith("v_fmac") or base.startswith("v_dot2c"):
                self.rd = self.rd + R[0]
            v3 = op.endswith("_e64") or any(base.startswith(p) for p in VOP3_ONLY)
            if not v3:
                if any(o.startswith("-v") or o.startswith("-s") or o.startswith("abs") or o.startswith("|") for o in ops):
                    v3 = True
                if base.startswith("v_cmp") and ops[0] != "vcc":
                    v3 = True
                if base == "v_cndmask_b32" and ops[3] != "vcc":
                    v3 = True
                if len(ops) >= 3 and not base.startswith("v_readfirstlane") and not ops[2].startswith("v"):
                    v3 = True
            self.size = 8 if (v3 or lit) else 4
            if self.size == 4 and not base.startswith("v_readfirstlane") and not op.endswith("_e32"):
                self.promotable = True
        else:
            raise ValueError("unknown instruction: " + text)


class Wait:
    def __init__(self, vm_tag=None, lgkm0=False, vm0=False, rd=(), wr=()):
        self.vm_tag, self.lgkm0, self.vm0 = vm_tag, lgkm0, vm0
        self.rd, self.wr = list(rd), list(wr)
        self.kind, self.op, self.srcc, self.stdata, self.text = "wait", "wait", [], [], ""


class Stream:
    def __init__(self):
        self.items = []

    def __call__(self, text, tag=None, count=True):
        for line in text.split("\n"):
            line = line.strip()
            if line:
                self.items.append(Ins(line, tag, count))

    def wait(self, vm_tag=None, lgkm0=False, vm0=False):
        self.items.append(Wait(vm_tag, lgkm0, vm0))

    def extend(self, other):
        self.items.extend(other.items if isinstance(other, Stream) else other)


def insert_waits(items):
    out = []
    vm_n = 0
    vm_done = 0
    vm_reg = {}
    vm_tag = {}
    ds_n = ds_done = 0
    ds_reg = {}
    smem_pending = set()

    def emit(need_vm, need_ds, lg0=False):
        nonlocal vm_done, ds_done
        parts = []
        if need_vm is not None and need_vm >= vm_done:
            n = min(vm_n - need_vm - 1, 63)
            parts.append(f"vmcnt({n})")
            vm_done = vm_n - n
        if lg0 and (ds_done < ds_n or smem_pending):
            parts.append("lgkmcnt(0)")
            ds_done = ds_n
            smem_pending.clear()
        elif need_ds is not None and need_ds >= ds_done:
            n = min(ds_n - need_ds - 1, 15)
            if smem_pending:
                n = 0
                smem_pending.clear()
            parts.append(f"lgkmcnt({n})")
            ds_done = ds_n - n
        if parts:
            out.append(Ins("s_waitcnt " + " ".join(parts)))

    for it in items:
        if isinstance(it, Wait):
            need = None
            if it.vm0:
                need = vm_n - 1 if vm_n else None
            elif it.vm_tag is not None:
                tags = it.vm_tag if isinstance(it.vm_tag, (list, tuple)) else [it.vm_tag]
                need = max(vm_tag[t] for t in tags)
            emit(need, None, it.lgkm0)
            continue
        if it.kind == "label":
            out.append(it)
            continue
        if it.op == "s_waitcnt":
            m = re.search(r"vmcnt\((\d+)\)", it.text)
            if m:
                vm_done = max(vm_done, vm_n - int(m.group(1)))
            m = re.search(r"lgkmcnt\((\d+)\)", it.text)
            if m:
                if int(m.group(1)) == 0:
                    smem_pending.clear()
                if not smem_pending:
                    ds_done = max(ds_done, ds_n - int(m.group(1)))
            out.append(it)
            continue
        touched = list(it.rd) + list(it.wr)
        nv = max((vm_reg[r] for r in touched if r in vm_reg), default=None)
        nd = max((ds_reg[r] for r in touched if r in ds_reg), default=None)
        lg0 = any(r in smem_pending for r in touched)
        emit(nv, nd, lg0)
        out.append(it)
        if it.kind == "vmem":
            if it.count:
                for r in it.wr:
                    vm_reg[r] = vm_n
                if it.tag is not None:
                    vm_tag[it.tag] = vm_n
                vm_n += 1
            else:
                assert not it.wr
        elif it.kind == "ds":
            for r in it.wr:
                ds_reg[r] = ds_n
            ds_n += 1
        elif it.kind == "smem":
            smem_pending.update(it.wr)
    return out


def states_of(i):
    if i.kind == "label":
        return 0
    if i.op == "s_nop":
        return int(i.text.split()[1]) + 1
    return 1


def need_states(p, c):
    n = 0
    pw, cr, cw = set(p.wr), set(c.rd), set(c.wr)
    pvalu = p.kind in ("valu", "trans", "perm")
    cvalu = c.kind in ("valu", "trans", "perm")
    if p.kind == "mfma":
        passes = 8 if "32x32x16" in p.op else 4
        big = {8: 12, 4: 8}[passes]
        if c.kind == "mfma":
            ab = cr - set(c.srcc) if c.srcc else cr
            srcab = set(c.rd[:8])
            if pw & srcab:
                n = max(n, big)
            if pw & set(c.srcc):
                if not (list(p.wr) == list(c.srcc) and p.op == c.op):
                    n = max(n, big - 2)
            elif pw & cw:
                n = max(n, big - 2)
        elif pw & (cr | cw):
            n = max(n, big)
        if cvalu and set(p.srcc) & cw:
            n = max(n, {8: 7, 4: 3}[passes])
    if pvalu:
        vw = {r for r in pw if r[0] in "va"}
        sw = {r for r in pw if r[0] == "s"}
        if c.kind == "mfma" and vw & cr:
            n = max(n, 2)
        if c.kind == "perm" and vw & cr:
            n = max(n, 2)
        if (c.op.startswith("v_readfirstlane") or c.op.startswith("v_readlane")) and vw & cr:
            n = max(n, 1)
        if p.kind == "trans" and vw & cr and (cvalu or c.kind in ("mfma",)):
            n = max(n, 1)
        if sw & cr:
            if c.kind == "vmem":
                n = max(n, 5)
            elif cvalu:
                n = max(n, 2)
            elif c.kind in ("salu", "smem"):
                n = max(n, 2)
        if ("s", "vcc") in sw and c.op.startswith("s_cbranch_vcc"):
            n = max(n, 2)
    if p.kind == "salu" and ("s", "m0") in pw and ("s", "m0") in cr and c.kind in ("vmem", "ds"):
        n = max(n, 1)
    if p.stdata and set(p.stdata) & cw:
        n = max(n, 2)
    return n


def insert_nops(items):
    out = []
    for c in items:
        if c.kind != "label":
            need = 0
            dist = 0
            for p in reversed(out):
                if dist >= 12:
                    break
                if p.kind != "label":
                    need = max(need, need_states(p, c) - dist)
                dist += states_of(p)
            if need > 0:
                out.append(Ins(f"s_nop {need - 1}"))
        out.append(c)
    return out


def align8(items, start=0):
    pos = start
    last_prom = None
    mis = tot = 0
    for idx, i in enumerate(items):
        if i.kind == "label":
            if i.op.startswith(".p2align"):
                pos = 0
                last_prom = None
            continue
        if i.size == 8:
            tot += 1
            if pos % 8 == 4 and last_prom is not None:
                j = items[last_prom]
                parts = j.text.split(None, 1)
                j.text = parts[0] + "_e64 " + parts[1]
                j.size = 8
                j.promotable = False
                pos += 4
            if pos % 8 == 4:
                mis += 1
            last_prom = None
        elif i.promotable and pos % 8 == 0:
            last_prom = idx
        elif i.promotable and last_prom is None:
            last_prom = idx
        pos += i.size
    return mis, tot, pos


def finalize(stream, name="", verbose=True):
    items = insert_waits(stream.items)
    items = insert_nops(items)
    mis, tot, size = align8(items)
    if verbose:
        from collections import Counter
        c = Counter(i.kind for i in items)
        nops = sum(states_of(i) for i in items if i.op == "s_nop")
        print(f"[{name}] {len(items)} instrs, ~{size} bytes, misaligned8 {mis}/{tot}, nop states {nops}, {dict(c)}")
    return "\n".join(i.text for i in items)


COST = {"trans": 8, "perm": 8, "mfma": 8, "ds": 10, "vmem": 16, "label": 0}


def cost_of(i):
    if isinstance(i, Wait):
        return 4
    return COST.get(i.kind, 4)


def sched(items, vm_lat=0, mfma_busy0=0, tries=60):
    n = len(items)
    preds = [[] for _ in range(n)]
    lastw, readers = {}, {}
    chain = None
    for k, c in enumerate(items):
        ordered = isinstance(c, Wait) or c.kind in ("salu", "sopp", "ds", "vmem", "smem", "label")
        if ordered:
            if chain is not None:
                p = items[chain]
                lat = 0
                if isinstance(c, Wait) and c.lgkm0 and not isinstance(p, Wait) and p.kind == "ds":
                    lat = 90
                if not isinstance(p, Wait) and p.op == "s_barrier":
                    lat = 30
                preds[k].append((chain, lat, 0))
            chain = k
        for r in c.rd:
            if r in lastw:
                p = items[lastw[r]]
                st = need_states(p, c)
                lat = {"ds": 110, "vmem": vm_lat}.get(p.kind, 0)
                if p.kind == "mfma" and st:
                    lat = 56
                preds[k].append((lastw[r], lat, st))
        for r in c.wr:
            if r in lastw:
                p = items[lastw[r]]
                st = need_states(p, c)
                preds[k].append((lastw[r], 56 if (p.kind == "mfma" and st) else 0, st))
            for q in readers.get(r, ()):
                if q != k:
                    preds[k].append((q, 0, need_states(items[q], c)))
        for r in c.rd:
            readers.setdefault(r, []).append(k)
        for r in c.wr:
            lastw[r] = k
            readers[r] = []
    succs = [[] for _ in range(n)]
    for k in range(n):
        for p, lat, st in preds[k]:
            succs[p].append((k, lat, st))
    isM = [not isinstance(i, Wait) and i.kind == "mfma" for i in items]
    prio = [0] * n
    for k in range(n - 1, -1, -1):
        own = 32 if isM[k] else cost_of(items[k])
        prio[k] = own + max((prio[s] + max(lat, 4 * st) for s, lat, st in succs[k]), default=0)
    isP = [not isinstance(i, Wait) and i.op.startswith("v_pk_") for i in items]
    import random
    rnd = random.Random(1)

    def run(noise, fill):
        pr = [p + rnd.uniform(0, noise) for p in prio]
        npred = [len(p) for p in preds]
        ready = [k for k in range(n) if npred[k] == 0]
        tdone, sidx = [0] * n, [0] * n
        t, s, mf_free, pk_free = 0, 0, mfma_busy0, mfma_busy0 + 10
        out = []
        while ready:
            ats = {}
            for k in ready:
                at = t
                for p, lat, st in preds[k]:
                    at = max(at, tdone[p] + lat, t + 4 * (st - (s - sidx[p] - 1)))
                if isM[k]:
                    at = max(at, mf_free)
                if isP[k]:
                    at = max(at, pk_free)
                ats[k] = at - t
            now = [k for k in ready if ats[k] == 0]
            if now:
                filler = sum(cost_of(items[k]) for k in now if not isM[k] and not isP[k])
                pks = [k for k in now if isP[k]]
                ms = [k for k in now if isM[k]]
                if ms and (filler >= fill or not pks):
                    cand = ms
                elif pks and any(isM[k] for k in ready):
                    cand = pks
                else:
                    cand = [k for k in now if not isM[k]]
                k = max(cand, key=lambda q: (pr[q], -q))
            else:
                k = min(ready, key=lambda q: (ats[q], -pr[q]))
            ready.remove(k)
            wait = ats[k]
            t += wait
            s += wait // 4
            if isM[k]:
                mf_free, pk_free = t + 32, t + 42
            t += cost_of(items[k])
            tdone[k] = t
            sidx[k] = s
            if isinstance(items[k], Wait) or items[k].kind != "label":
                s += 1
            out.append(items[k])
            for q, _, _ in succs[k]:
                npred[q] -= 1
                if npred[q] == 0:
                    ready.append(q)
        assert len(out) == n
        return out, t
    best = None
    for it in range(tries):
        r = run(0 if it < 4 else rnd.choice((20, 60, 150, 400)), (0, 16, 32, 48)[it % 4])
        if best is None or r[1] < best[1]:
            best = r
    return best
```

```python
import sys
import struct
from ab import Stream, Ins, Wait, finalize, sched, cost_of

KN = "gated_mix__linear_kernel_hedgehog__glu_gated_geglu__prompt_kernel"
OPT = dict(stamps=False, fine=False, rot="tb", codepf=True, diag=None, drop=None, touch=True, mix=True, kc1=4, kc2=13, outfl="", pubk=0, kvp=1, kvc=3, kvpub=7, qev=52, stage_age=7, s1stop=26, kvdelay=80, kvev=80)

ACT = 0
KVP = 0x780000
ZP = 0x800000
GATE = 0x810000
FLG = 0x820000
STAMP = 0x840000
WS_SIZE = 0x860000
OOB = 0x7ff00000

sX, sQKV, sG, sU, sWO, sWD, sWS, sOUT, sPHI, sGW, sDBG = [28 + 4 * i for i in range(11)]
s_tb, s_j, s_w, s_th, s_ch, s_tt, s_ct, s_rot = range(72, 80)
s_xb, s_qb, s_fb, s_kb = 80, 81, 82, 83
s_o0, s_o1, s_o2 = 84, 85, 86
s_m4, s_m8, s_m6 = 87, 88, 89
s_t0, s_t1, s_t2, s_t3 = 90, 91, 92, 93
s_act, s_us, s_spin, s_pt = 94, 95, 96, 97
s_mk0, s_mk1 = 98, 100
s_pb = 4
s_stamp = 26


def srd(r):
    return f"s[{r}:{r + 3}]"


def vr(a, n=1):
    return f"v{a}" if n == 1 else f"v[{a}:{a + n - 1}]"


def ar(a, n=1):
    return f"a{a}" if n == 1 else f"a[{a}:{a + n - 1}]"


def f32(x):
    return "0x%08x" % struct.unpack("<I", struct.pack("<f", x))[0]


def mfma(d, a, b, c):
    return f"v_mfma_f32_32x32x16_bf16 {vr(d, 16)}, {a}, {b}, {vr(d, 16) if c else 0}"


class LDS:
    def __init__(self):
        self.busy = [None] * 160

    def free(self, lo, hi):
        return all(self.busy[k] is None for k in range(lo // 1024, (hi + 1023) // 1024))

    def claim(self, lo, hi, tag):
        assert self.free(lo, hi), (lo, hi, tag, self.busy)
        for k in range(lo // 1024, (hi + 1023) // 1024):
            self.busy[k] = tag

    def release(self, lo, hi):
        for k in range(lo // 1024, (hi + 1023) // 1024):
            assert self.busy[k] is not None
            self.busy[k] = None


class Event(Wait):
    def __init__(self, fn, rd=(), wr=()):
        super().__init__(rd=rd, wr=wr)
        self.fn = fn


class LoadQ:
    def __init__(self, lds):
        self.q = []
        self.lds = lds

    def add(self, pre, ins, tag, claim=None, cond=None):
        self.q.append((pre, ins, tag, claim, cond))

    def take(self, n=1):
        out = []
        while n > 0 and self.q:
            pre, ins, tag, claim, cond = self.q[0]
            if cond is not None and not cond():
                break
            if callable(claim):
                got = claim()
                if got is None:
                    break
                pre = got
            elif claim is not None:
                if not self.lds.free(*claim):
                    break
                self.lds.claim(claim[0], claim[1], tag)
            self.q.pop(0)
            out.append([Ins(p) for p in pre] + [Ins(ins, tag)])
            n -= 1
        return out

    def issued(self, tag):
        tags = tag if isinstance(tag, (list, tuple)) else [tag]
        return all(u[2] not in tags for u in self.q)


def scc_live(items):
    live, out = False, [False] * len(items)
    for k in range(len(items) - 1, -1, -1):
        out[k] = live
        i = items[k]
        if isinstance(i, Wait):
            continue
        if i.op.startswith("s_cselect") or i.op.startswith("s_cbranch_scc") or i.op.startswith("s_addc"):
            live = True
        elif i.kind == "salu" and not (i.op.startswith("s_mov") or i.op.startswith("s_mul")):
            live = False
    return out


def weave(g, main, every):
    acc = 0
    live = scc_live(main)
    for it, lv in zip(main, live):
        g.put(it)
        acc += cost_of(it)
        if acc >= every and not lv:
            if g.loads(1):
                acc = 0


DIAG_NAMES = {"Q": ["pro", "a0", "loop", "gelu", "o", "pub", "b0", "b1", "end"],
              "KH": ["pro", "a0", "seg1", "kv", "loop", "pub", "b0", "b1", "end"],
              "KL": ["pro", "a0", "seg1", "kv", "loop", "pub", "b0", "b1", "end"]}


class Gen:
    def __init__(self, kind):
        self.kind = kind
        self.S = Stream()
        self.slow = []
        self.lds = LDS()
        self.lq = LoadQ(self.lds)
        self.nstamp = 0
        self.npoll = 0
        self.w2addr = {}
        self.w2cand = []
        self.staged = 0
        self.pend_rel = []
        self.bdone = -1

    def vm_tags(self):
        return [i.tag for i in self.S.items if isinstance(i, Ins) and i.kind == "vmem" and i.count]

    def complete(self, tag):
        if not self.lq.issued(tag):
            return False
        n, last, done = 0, {}, -1
        for i in self.S.items:
            if isinstance(i, Wait):
                if i.vm_tag is not None:
                    tags = i.vm_tag if isinstance(i.vm_tag, (list, tuple)) else [i.vm_tag]
                    done = max(done, max(last[t] for t in tags))
            elif i.kind == "vmem" and i.count:
                last[i.tag] = n
                n += 1
        return tag in last and last[tag] <= done

    def loads(self, n):
        u = self.lq.take(n)
        for x in u:
            self.S.extend(x)
        return len(u)

    def force(self, tag):
        while not self.lq.issued(tag):
            assert self.loads(1), ("cannot issue", tag, self.lq.q[0], self.lds.busy)

    def put(self, it):
        if isinstance(it, Event):
            it.fn()
            return
        if isinstance(it, Wait):
            if it.vm_tag is not None:
                self.force(it.vm_tag)
            self.S.items.append(it)
            if it.lgkm0:
                for lo, hi in self.pend_rel:
                    self.lds.release(lo, hi)
                self.pend_rel = []
            return
        self.S.items.append(it)

    def wait(self, vm_tag=None, lgkm0=False):
        self.put(Wait(vm_tag, lgkm0))

    def stamp(self):
        if OPT["diag"]:
            a, b, mult, unit = OPT["diag"].split(":")
            ins = "s_memrealtime" if unit == "r" else "s_memtime"
            names = DIAG_NAMES[self.kind]
            nm = names[self.nstamp]
            self.nstamp += 1
            if nm == a:
                self.S(f"{ins} s[18:19]\ns_waitcnt lgkmcnt(0)")
            if nm == b:
                self.S(f"{ins} s[20:21]\ns_waitcnt lgkmcnt(0)")
        if OPT["stamps"]:
            S = self.S
            S(f"s_memtime s[{s_stamp}:{s_stamp + 1}]")
            S("s_waitcnt lgkmcnt(0)")
            S(f"v_writelane_b32 v{VST}, s{s_stamp}, {self.nstamp}")
            self.nstamp += 1

    def poll_issue(self, vaddr, srdr, soff):
        return [Ins(f"buffer_load_dword v{VPD}, v{vaddr}, {srd(srdr)}, {soff} offen sc1", "poll")]

    def poll_check(self, vaddr, srdr, soff, mask, stage=1, sleep=6, first=None):
        k = f"{self.kind}{self.npoll}"
        self.npoll += 1
        pre = f"s_waitcnt vmcnt(0)\n{first}\n" if first else ""
        self.slow.append(f"""L_slow_{k}:
{pre}s_mov_b32 s{s_spin}, 0
L_spin_{k}:
s_sleep {sleep}
buffer_load_dword v{VPD}, v{vaddr}, {srd(srdr)}, {soff} offen sc1
s_add_u32 s{s_spin}, s{s_spin}, 1
s_cmp_ge_u32 s{s_spin}, 0x4000
s_cbranch_scc1 L_back_{k}
s_waitcnt vmcnt(0)
v_cmp_le_u32 vcc, {stage}, v{VPD}
s_nop 1
s_andn2_b32 s{s_pt}, {mask}, vcc_lo
s_cbranch_scc1 L_spin_{k}
s_branch L_back_{k}""")
        br = Ins(f"s_cbranch_scc1 L_slow_{k}")
        br.text += f"\nL_back_{k}:"
        return [Wait("poll", wr=[("v", VPD)])] + I([f"v_cmp_le_u32 vcc, {stage}, v{VPD}", f"s_andn2_b32 s{s_pt}, {mask}, vcc_lo"]) + [br]

    def fs(self):
        return [Event(self.stamp)] if OPT["fine"] == "2" else []

    def puts(self, items):
        for i in items:
            self.put(i)


VL = 1
VX = 2
VQ = 6
VG = 10
VU = 13
VXA = 16
VWA = 20
VW2 = 32
VW2D = 36
VL16 = 38
VL16D = 39
VW2A = 40
VPB = 43
VPOLL = 44
VPD = 45
VFLAG = 46
VONE = 47
VC = 48
VID = 52
VONES = 60
VPHI = 64
VT = 68
VTWO = 77
VPK = 78
VST = 79
VFR = 80
ACC = 128

MISC = 144 * 1024
LOG2E = 1.4426950408889634
GC = 0.7978845608028654


XR = [0, 16384, 32768, 49152]
KWR = [65536, 81920, 98304, 114688]
QWR = [49152, 81920, 114688]


def head(g):
    S = g.S
    if OPT["stamps"]:
        S("s_memrealtime s[98:99]\ns_memtime s[94:95]")
    if OPT["diag"]:
        S(("s_memrealtime" if OPT["diag"].endswith("r") else "s_memtime") + " s[98:99]")
    S(f"""s_cmp_ge_u32 s2, 256
s_cbranch_scc1 L_end
s_load_dwordx16 s[4:19], s[0:1], 0
s_load_dwordx8 s[20:27], s[0:1], 64
v_lshrrev_b32 v{VT}, 6, v0
v_and_b32 v{VL}, 63, v0
s_and_b32 s{s_t0}, s2, 7
s_lshr_b32 s{s_t1}, s2, 3
v_readfirstlane_b32 s{s_w}, v{VT}
s_and_b32 s{s_tb}, s{s_t0}, 1
s_lshl_b32 s{s_tb}, s{s_tb}, 3
s_and_b32 s{s_ct}, s{s_t1}, 7
s_add_u32 s{s_tb}, s{s_tb}, s{s_ct}
s_lshr_b32 s{s_t2}, s{s_t1}, 3
s_and_b32 s{s_j}, s{s_t0}, 6
s_lshr_b32 s{s_t3}, s{s_t2}, 1
s_add_u32 s{s_j}, s{s_j}, s{s_t3}
s_lshl_b32 s{s_m4}, s{s_w}, 12""")
    code_prefetch(g)
    rot = OPT["rot"]
    if rot == "none":
        S(f"s_mov_b32 s{s_rot}, 0")
    elif rot == "full":
        S(f"s_lshl_b32 s{s_rot}, s{s_t2}, 1\ns_add_u32 s{s_rot}, s{s_rot}, s{s_ct}\ns_add_u32 s{s_rot}, s{s_rot}, s{s_t0}")
    elif rot in ("tb", "tbx"):
        S(f"""s_mul_i32 s{s_rot}, s{s_t3}, 3
s_add_u32 s{s_rot}, s{s_rot}, 1
s_bitcmp1_b32 s{s_t2}, 0
s_cselect_b32 s{s_rot}, s{s_rot}, 0
s_add_u32 s{s_rot}, s{s_rot}, s{s_ct}""")
        if rot == "tbx":
            S(f"s_add_u32 s{s_rot}, s{s_rot}, s{s_t0}")
    S(f"""v_lshrrev_b32 v{VT + 3}, 3, v{VL}
v_lshrrev_b32 v{VT + 2}, 4, v{VL}
v_xor_b32 v{VT + 1}, v{VT + 2}, v{VL}
v_and_b32 v{VT + 1}, 7, v{VT + 1}
v_lshl_add_u32 v{VT + 3}, v{VT}, 5, v{VT + 3}
v_lshlrev_b32 v{VT + 3}, 10, v{VT + 3}
v_lshl_add_u32 v{VX}, v{VT + 1}, 4, v{VT + 3}
v_xor_b32 v{VX + 1}, 64, v{VX}
v_add_u32 v{VX + 1}, 7168, v{VX + 1}
v_add_u32 v{VX + 2}, 14336, v{VX}
v_add_u32 v{VX + 3}, 14336, v{VX + 1}
s_lshl_b32 s{s_xb}, s{s_tb}, 17
s_lshl_b32 s{s_qb}, s{s_j}, 7
s_mov_b32 s{sX + 2}, {2048 * 1024}
s_mov_b32 s{sX + 3}, 0x20000
s_mov_b32 s{sQKV + 2}, {512 * 3072}
s_mov_b32 s{sQKV + 3}, 0x20000""")
    S(f"""v_bfe_u32 v{VT + 3}, v{VL}, 2, 2
v_lshl_add_u32 v{VT + 3}, v{VT}, 4, v{VT + 3}
v_mul_u32_u24 v{VT + 3}, 3, v{VT + 3}
v_lshrrev_b32 v{VT + 4}, 5, v{VL}
v_add3_u32 v{VT + 3}, v{VT + 3}, v{VT + 4}, 1
v_and_b32 v{VT + 4}, 1, v{VT + 2}
v_lshl_add_u32 v{VT + 3}, v{VT + 3}, 4, v{VT + 4}
v_and_b32 v{VT + 4}, 3, v{VL}
v_lshl_add_u32 v{VT + 3}, v{VT + 3}, 2, v{VT + 4}
v_lshlrev_b32 v{VQ}, 4, v{VT + 3}""")
    for i in range(1, 4):
        S(f"v_add_u32 v{VQ + i}, {i * (4 * 3072 - 1024)}, v{VQ}")
    add_x(g, 0, XR[0])
    u = g.lq.take(4)
    S.extend(u[0][:-1])
    S("s_waitcnt lgkmcnt(0)")
    S(f"s_mov_b64 s[{sX}:{sX + 1}], s[4:5]\ns_bitcmp1_b32 s{s_t2}, 0")
    S.extend(u[0][-1:] + u[1] + u[2] + u[3])
    S("s_cbranch_scc0 L_KV0\nL_m1:")
    if g.kind == "Q":
        add_x(g, 1, XR[1])
        add_x(g, 2, XR[2])
        g.loads(8)
        S("s_branch L_Q")
    else:
        S(f"L_KV0:\ns_mov_b64 s[{sQKV}:{sQKV + 1}], s[6:7]")
        add_kv(g, 0)
        add_x(g, 1, XR[1])
        g.loads(8)
        S(f"s_cmp_ge_u32 s{s_j}, 6\ns_cbranch_scc1 L_KL")
    S("L_m2:\n.p2align 3")
    if g.kind != "KH":
        S(f"L_{g.kind}:")
    if OPT["stamps"] or OPT["diag"]:
        S("s_mov_b32 s3, s98")
    if OPT["stamps"]:
        S(f"v_mov_b32 v{VST}, 0\nv_writelane_b32 v{VST}, s94, 0")
        S("s_memtime s[94:95]\ns_waitcnt lgkmcnt(0)")
        S(f"v_writelane_b32 v{VST}, s94, 1")
        g.nstamp = 2
    S(f"""s_and_b32 s{s_th}, s{s_w}, 1
s_lshr_b32 s{s_ch}, s{s_w}, 1
v_lshlrev_b32 v{VL16}, 4, v{VL}
s_and_b32 s{s_t0}, s2, 7
s_lshl_b32 s{s_tt}, s{s_t0}, 2""")
    if OPT["mix"]:
        S(f"s_and_b32 s{s_t0}, s{s_ct}, 1\ns_xor_b32 s{s_t0}, s{s_t0}, s{s_t2}\ns_add_u32 s{s_tt}, s{s_tt}, s{s_t0}")
    else:
        S(f"s_add_u32 s{s_tt}, s{s_tt}, s{s_t2}")


def add_kv(g, j):
    w = KWR[j % 4]
    add_rows(g, f"K{j}", VQ, 4, sQKV, 3072, s_qb, s_o1, s_m4, w, (w, w + 16384), newkb=j)


def mk_srds(g, which):
    S = g.S
    tab = {sX: (4, 2048 * 1024), sQKV: (6, 512 * 3072), sPHI: (8, 32 * 512), sWO: (10, 512 * 1024), sG: (14, 512 * 2752),
           sU: (16, 512 * 2752), sWD: (18, 1376 * 1024), sGW: (20, 1024), sOUT: (22, 2048 * 1024), sDBG: (24, 256), sWS: (26, WS_SIZE)}
    for r in which:
        p, n = tab[r]
        S(f"s_mov_b64 s[{r}:{r + 1}], s[{p}:{p + 1}]\ns_mov_b32 s{r + 2}, {n}\ns_mov_b32 s{r + 3}, 0x20000")


def quad_parts(g):
    g.S(f"""v_bfe_u32 v{VT}, v{VL}, 2, 2
v_and_b32 v{VT + 1}, 3, v{VL}
v_lshlrev_b32 v{VT + 1}, 4, v{VT + 1}
v_lshrrev_b32 v{VT + 2}, 4, v{VL}""")


def voff_n2(g, dst, n, stride, wave_rows):
    S = g.S
    S(f"""v_lshrrev_b32 v{VT + 3}, 5, v{VL}
v_lshl_add_u32 v{VT + 3}, v{VT + 3}, 2, v{VT}""")
    if wave_rows:
        S(f"s_lshl_b32 s{s_t0}, s{s_w}, 4\nv_add_u32 v{VT + 3}, s{s_t0}, v{VT + 3}")
    S(f"""v_mul_u32_u24 v{VT + 3}, {stride}, v{VT + 3}
v_and_b32 v{VT + 4}, 1, v{VT + 2}
v_lshl_add_u32 v{VT + 4}, v{VT + 4}, 6, v{VT + 1}
v_add_u32 v{dst}, v{VT + 3}, v{VT + 4}""")
    for i in range(1, n):
        S(f"v_add_u32 v{dst + i}, {i * (8 * stride - 1024)}, v{dst}")


def voff_ffn3(g):
    S = g.S
    S(f"""s_lshl_b32 s{s_t0}, s{s_w}, 4
v_add_u32 v{VT + 5}, s{s_t0}, v{VT}
v_mul_u32_u24 v{VT + 5}, 2752, v{VT + 5}
v_lshl_add_u32 v{VT + 6}, v{VT + 2}, 6, v{VT + 1}
s_movk_i32 s{s_t0}, 10816
v_add_u32 v{VT + 5}, v{VT + 5}, v{VT + 6}""")
    for i in range(3):
        S(f"""v_add_u32 v{VT + 3}, {i + 1}, v{VT + 2}
v_lshrrev_b32 v{VT + 3}, 2, v{VT + 3}
v_mad_u32_u24 v{VG + i}, v{VT + 3}, s{s_t0}, v{VT + 5}""")
        if i:
            S(f"v_add_u32 v{VG + i}, {157 * 64 * i}, v{VG + i}")
        S(f"v_xor_b32 v{VU + i}, 32, v{VG + i}")


def unit_start(S, dst, jreg, isq, tmp):
    S(f"s_lshr_b32 s{dst}, {jreg}, 1\ns_mul_i32 s{dst}, s{dst}, 22\ns_and_b32 s{tmp}, {jreg}, 1")
    if isq:
        S(f"s_mul_i32 s{tmp}, s{tmp}, 6\ns_add_u32 s{dst}, s{dst}, s{tmp}\ns_cmp_ge_u32 {jreg}, 6\ns_cselect_b32 s{tmp}, 8, 10\ns_add_u32 s{dst}, s{dst}, s{tmp}")
    else:
        S(f"s_mul_i32 s{tmp}, s{tmp}, 5\ns_add_u32 s{dst}, s{dst}, s{tmp}\ns_cmp_eq_u32 {jreg}, 7\ns_cselect_b32 s{tmp}, 1, 0\ns_sub_u32 s{dst}, s{dst}, s{tmp}")


def kb_pre(j):
    return [f"s_add_u32 s{s_kb}, s{s_rot}, {j}", f"s_and_b32 s{s_kb}, s{s_kb}, 7"]


def dma(v, r, so, imm):
    return f"buffer_load_dwordx4 v{v}, {srd(r)}, s{so} offen" + (f" offset:{imm}" if imm else "") + " lds"


def add_x(g, j, base):
    for i in range(4):
        pre = []
        if i == 0:
            pre = kb_pre(j) + [f"s_lshl_b32 s{s_o0}, s{s_kb}, 7", f"s_add_u32 m0, s{s_m4}, {base}", f"s_add_u32 s{s_o0}, s{s_o0}, s{s_xb}"]
        g.lq.add(pre, dma(VX + i, sX, s_o0, 1024 * i), f"X{j}", (base, base + 16384) if i == 0 else None)


def add_rows(g, tag, v0, n, r, stride, sbase, so, mreg, mbase, claim, newkb=None, newso=True):
    for i in range(n):
        pre = []
        if i == 0:
            if newkb is not None:
                pre += kb_pre(newkb)
            if newso:
                pre += [f"s_mul_i32 s{so}, s{s_kb}, {64 * stride}", f"s_add_u32 m0, s{mreg}, {mbase}", f"s_add_u32 s{so}, s{so}, s{sbase}"]
            else:
                pre += [f"s_add_u32 m0, s{mreg}, {mbase}"]
        g.lq.add(pre, dma(v0 + i, r, so, 1024 * i), tag, claim if i == 0 else None)


def misc_setup(g):
    S = g.S
    S(f"""v_bfe_u32 v{VT}, v{VL}, 2, 2
v_and_b32 v{VT + 1}, 3, v{VL}
v_lshlrev_b32 v{VT + 1}, 3, v{VT + 1}
v_lshl_add_u32 v{VPB}, v{VT}, 6, v{VT + 1}
v_lshrrev_b32 v{VT + 2}, 5, v{VL}
v_bfe_u32 v{VT + 3}, v{VL}, 4, 1
v_and_b32 v{VT + 4}, 31, v{VL}
v_bfe_u32 v{VT + 5}, v{VL}, 1, 3
v_xor_b32 v{VT + 5}, v{VT + 5}, v{VT + 2}
v_lshlrev_b32 v{VT + 5}, 4, v{VT + 5}
v_lshl_add_u32 v{VT + 5}, v{VT + 4}, 7, v{VT + 5}
s_lshl_b32 s{s_t0}, s{s_th}, 13
v_add_u32 v{VXA}, s{s_t0}, v{VT + 5}
v_xor_b32 v{VXA + 1}, 32, v{VXA}
v_xor_b32 v{VXA + 2}, 64, v{VXA}
v_xor_b32 v{VXA + 3}, 0x60, v{VXA}""")
    S(f"""v_lshl_add_u32 v{VT + 6}, v{VT + 3}, 5, v{VPB}
v_lshl_add_u32 v{VW2A}, v{VT + 2}, 9, v{VT + 6}
v_add_u32 v{VW2A}, s{s_m4}, v{VW2A}
v_add_u32 v{VW2A + 1}, 0x10000, v{VW2A}
v_add_u32 v{VW2A + 2}, 0x20000, v{VW2A}""")


def consts(g):
    S = g.S
    S(f"""v_mov_b32 v{VC}, {f32(-2 * LOG2E * GC * 0.044715)}
v_mov_b32 v{VC + 1}, {f32(-2 * LOG2E * GC)}
v_mov_b32 v{VC + 2}, {f32(LOG2E)}
v_mov_b32 v{VC + 3}, {f32(1e-6)}
v_mov_b32 v{VONE}, 1
v_mov_b32 v{VTWO}, 2
v_mov_b32 v{VT}, {OOB}
v_lshlrev_b32 v{VT + 1}, 2, v{VL}
s_mov_b64 s[18:19], 15
s_mov_b64 s[20:21], 1
v_cndmask_b32 v{VPK}, v{VT}, v{VT + 1}, s[18:19]
v_cndmask_b32 v{VFLAG}, v{VT}, v{VT + 1}, s[20:21]
s_mov_b32 s{s_mk0}, 0xffff0000
s_mov_b32 s{s_mk0 + 1}, 0xffff0000""")
    if g.kind == "Q":
        for i in range(4):
            S(f"v_mov_b32 v{VONES + i}, 0x3f803f80")
    S(f"""v_lshrrev_b32 v{VT}, 5, v{VL}
v_bfe_u32 v{VT + 1}, v{VL}, 1, 4
v_lshlrev_b32 v{VT}, 1, v{VT}
v_sub_u32 v{VT}, v{VT + 1}, v{VT}
v_and_b32 v{VT + 1}, 1, v{VL}
v_lshlrev_b32 v{VT + 1}, 4, v{VT + 1}
v_mov_b32 v{VT + 2}, 0x3f80
v_lshlrev_b32 v{VT + 2}, v{VT + 1}, v{VT + 2}""")
    for jj in range(2):
        for d in range(4):
            S(f"v_cmp_eq_u32 s[{18 + 2 * d}:{19 + 2 * d}], {8 * jj + 4 * (d >> 1) + (d & 1)}, v{VT}")
        for d in range(4):
            S(f"v_cndmask_b32 v{VID + 4 * jj + d}, 0, v{VT + 2}, s[{18 + 2 * d}:{19 + 2 * d}]")


def phi_load(g):
    S = g.S
    S(f"""s_lshl_b32 s{s_t0}, s{s_j}, 1
s_add_u32 s{s_t0}, s{s_t0}, s{s_ch}
s_lshl_b32 s{s_t0}, s{s_t0}, 10
s_lshr_b32 s{s_t1}, s{s_m4}, 2
s_add_u32 m0, s{s_t1}, {MISC}""")
    S(dma(VL16, sPHI, s_t0, 0), tag="phi")


def phi_read(g):
    return lines(f"""v_lshrrev_b32 v{VT}, 5, v{VL}
v_bfe_u32 v{VT + 1}, v{VL}, 2, 2
v_lshl_add_u32 v{VT}, v{VT}, 2, v{VT + 1}
v_lshlrev_b32 v{VT}, 5, v{VT}
v_and_b32 v{VT + 1}, 3, v{VL}
v_lshl_add_u32 v{VT}, v{VT + 1}, 3, v{VT}
v_bfe_u32 v{VT + 1}, v{VL}, 4, 1
v_lshl_add_u32 v{VT}, v{VT + 1}, 9, v{VT}
s_lshr_b32 s{s_t1}, s{s_m4}, 2
s_add_u32 s{s_t1}, s{s_t1}, {MISC}
v_add_u32 v{VT}, s{s_t1}, v{VT}""") + [Wait("phi")] + lines(f"ds_read_b64_tr_b16 {vr(VPHI, 2)}, v{VT}\nds_read_b64_tr_b16 {vr(VPHI + 2, 2)}, v{VT} offset:256")


def zero_flags(g):
    S = g.S
    S(f"""s_cmp_lg_u32 s{s_ct}, 0
s_cbranch_scc1 L_nz_{g.kind}
s_and_b32 s{s_t0}, s2, 1
s_lshr_b32 s{s_t1}, s2, 6
s_add_u32 s{s_t0}, s{s_t0}, s{s_t1}
s_lshl_b32 s{s_t0}, s{s_t0}, 2
s_add_u32 s{s_t0}, s{s_t0}, s{s_w}
s_lshl_b32 s{s_t0}, s{s_t0}, 13
s_add_u32 s{s_t0}, s{s_t0}, {FLG}
v_mov_b32 v{VT}, 0
v_lshlrev_b32 v{VT + 1}, 7, v{VL}""")
    S(f"buffer_store_dword v{VT}, v{VT + 1}, {srd(sWS)}, s{s_t0} offen sc1", count=False)
    S(f"L_nz_{g.kind}:")


def set_ready(g):
    S = g.S
    S(f"""s_or_b32 s{s_t0}, s{s_ct}, s{s_w}
s_cbranch_scc1 L_nr_{g.kind}
s_and_b32 s{s_t0}, s2, 1
s_lshr_b32 s{s_t1}, s2, 6
s_add_u32 s{s_t0}, s{s_t0}, s{s_t1}
s_lshl_b32 s{s_t0}, s{s_t0}, 2""")
    S(f"buffer_store_dword v{VONE}, v{VFLAG}, {srd(sDBG)}, s{s_t0} offen sc1", count=False)
    S(f"L_nr_{g.kind}:")


def code_prefetch(g):
    if not OPT["codepf"]:
        return
    lines_ = CODE_SZ // 128 // 32
    g.S(f"""s_getpc_b64 s[{s_mk1}:{s_mk1 + 1}]
L_pc:
s_lshl_b32 s{s_kb}, s{s_ct}, 2
s_add_u32 s{s_kb}, s{s_kb}, s{s_w}
s_mul_i32 s{s_kb}, s{s_kb}, {lines_ * 128}
s_cmp_ge_u32 s{s_j}, 6
s_cselect_b32 s{s_o0}, L_KL-L_pc, 0
s_bitcmp1_b32 s{s_t2}, 0
s_cselect_b32 s{s_o0}, L_Q-L_pc, s{s_o0}
s_add_u32 s{s_kb}, s{s_kb}, s{s_o0}
v_lshl_add_u32 v{VT + 1}, v{VL}, 7, s{s_kb}
s_mov_b64 exec, {(1 << lines_) - 1}
global_load_dword v{VPD}, v{VT + 1}, s[{s_mk1}:{s_mk1 + 1}]
s_mov_b64 exec, -1""")


def gelu_block(acc, T, Y, O):
    L = []
    P = range(4)
    p = lambda b, i: vr(b + 2 * i, 2)
    L += [f"v_pk_mul_f32 {p(T, i)}, {p(acc, i)}, {p(acc, i)}" for i in P]
    L += [f"v_pk_fma_f32 {p(T, i)}, {p(T, i)}, {vr(VC, 2)}, {vr(VC, 2)} op_sel:[0,0,1] op_sel_hi:[1,0,1]" for i in P]
    L += [f"v_pk_mul_f32 {p(T, i)}, {p(T, i)}, {p(acc, i)}" for i in P]
    for i in P:
        L += [f"v_exp_f32 v{T + 2 * i}, v{T + 2 * i}", f"v_exp_f32 v{T + 2 * i + 1}, v{T + 2 * i + 1}", f"v_pk_mul_f32 {p(Y, i)}, {p(acc, i)}, {p(acc + 8, i)}"]
    L += [f"v_pk_add_f32 {p(T, i)}, {p(T, i)}, 1.0 op_sel_hi:[1,0]" for i in P]
    L += [f"v_rcp_f32 v{T + i}, v{T + i}" for i in range(8)]
    L += [f"v_pk_mul_f32 {p(Y, i)}, {p(Y, i)}, {p(T, i)}" for i in P]
    L += [f"v_cvt_pk_bf16_f32 v{O + i}, v{Y + 2 * i}, v{Y + 2 * i + 1}" for i in P]
    return L


def softmax_inst(P, E, M, O):
    L = []
    p = lambda b, i: vr(b + 2 * i, 2)
    a, b = M, M + 1
    L += [f"v_max3_f32 v{a}, v{P}, v{P + 1}, v{P + 2}", f"v_max3_f32 v{b}, -v{P}, -v{P + 1}, -v{P + 2}",
          f"v_max3_f32 v{a}, v{a}, v{P + 3}, v{P + 4}", f"v_max3_f32 v{b}, v{b}, -v{P + 3}, -v{P + 4}",
          f"v_max3_f32 v{a}, v{a}, v{P + 5}, v{P + 6}", f"v_max3_f32 v{b}, v{b}, -v{P + 5}, -v{P + 6}",
          f"v_max_f32 v{a}, v{a}, v{P + 7}", f"v_max_f32 v{b}, v{b}, -v{P + 7}",
          f"v_permlane32_swap_b32 v{a}, v{b}",
          f"v_max_f32 v{a}, v{a}, v{b}",
          f"v_mul_f32 v{b}, -v{a}, v{VC + 2}",
          f"v_mul_f32 v{a}, -v{a}, v{VC + 2}",
          f"v_permlane32_swap_b32 v{a}, v{b}"]
    for i in range(4):
        L += [f"v_pk_fma_f32 {p(E, i)}, {p(P, i)}, {vr(VC + 2, 2)}, {vr(M, 2)} op_sel_hi:[1,0,0]"]
    for i in range(4):
        L += [f"v_pk_fma_f32 {p(E + 8, i)}, {p(P, i)}, {vr(VC + 2, 2)}, {vr(M, 2)} op_sel:[0,0,1] op_sel_hi:[1,0,1] neg_lo:[1,0,0] neg_hi:[1,0,0]"]
    L += [f"v_exp_f32 v{E + i}, v{E + i}" for i in range(16)]
    L += [f"v_pk_add_f32 {p(P, 0)}, {p(E, 0)}, {p(E, 1)}", f"v_pk_add_f32 {p(P, 1)}, {p(E, 2)}, {p(E, 3)}",
          f"v_pk_add_f32 {p(P, 2)}, {p(E + 8, 0)}, {p(E + 8, 1)}", f"v_pk_add_f32 {p(P, 3)}, {p(E + 8, 2)}, {p(E + 8, 3)}",
          f"v_pk_add_f32 {p(P, 0)}, {p(P, 0)}, {p(P, 1)}", f"v_pk_add_f32 {p(P, 2)}, {p(P, 2)}, {p(P, 3)}",
          f"v_add_f32 v{a}, v{P}, v{P + 1}", f"v_add_f32 v{b}, v{P + 4}, v{P + 5}",
          f"v_permlane32_swap_b32 v{a}, v{b}",
          f"v_add_f32 v{a}, v{a}, v{b}",
          f"v_rcp_f32 v{a}, v{a}",
          f"v_mov_b32 v{b}, v{a}",
          f"v_permlane32_swap_b32 v{a}, v{b}"]
    L += [f"v_pk_mul_f32 {p(E, i)}, {p(E, i)}, {vr(M, 2)} op_sel_hi:[1,0]" for i in range(4)]
    L += [f"v_pk_mul_f32 {p(E + 8, i)}, {p(E + 8, i)}, {vr(M, 2)} op_sel:[0,1] op_sel_hi:[1,1]" for i in range(4)]
    L += [f"v_cvt_pk_bf16_f32 v{O + i}, v{E + 2 * i}, v{E + 2 * i + 1}" for i in range(8)]
    return L


def zipl(*ls):
    out = []
    n = max(len(l) for l in ls)
    for i in range(n):
        for l in ls:
            if i < len(l):
                out.append(l[i])
    return out


def I(lines, tag=None):
    return [Ins(x, tag) if isinstance(x, str) else x for x in lines]


def kstep(g, mf, reads, nload, rd_per_gap=2, barrier=None, wait0=True, extra=()):
    S = g.S
    reads = list(reads)
    extra = list(extra)
    if wait0 or barrier is not None:
        g.wait(lgkm0=True)
    n = len(mf)
    first_ld = min((len(reads) + rd_per_gap - 1) // rd_per_gap, n - 1)
    left = nload
    for i, m in enumerate(mf):
        S(m)
        if i == 0 and barrier is not None:
            tag, rel = barrier
            if tag is not None:
                g.wait(vm_tag=tag)
            S("s_barrier")
            if OPT["fine"] is True:
                g.stamp()
            for lo, hi in rel:
                g.lds.release(lo, hi)
        k = rd_per_gap if i < n - 1 else len(reads)
        for r in reads[:k]:
            S(r)
        reads = reads[k:]
        if i >= first_ld:
            gaps = n - i
            if left > 0:
                t = (left + gaps - 1) // gaps
                g.loads(t)
                left -= t
            t = (len(extra) + gaps - 1) // gaps
            g.puts(extra[:t])
            extra = extra[t:]


W2GRP = {}


def pb_setup(g):
    S = g.S
    tab = lambda v: hex(sum(x << (8 * i) for i, x in enumerate(v)))
    S(f"""s_lshl_b32 s{s_t1}, s{s_w}, 3
s_or_b32 s{s_t1}, s{s_t1}, 0x80000
s_bfe_u32 s4, {tab([10, 16, 32, 38])}, s{s_t1}
s_bfe_u32 s5, {tab([54, 60, 74, 80])}, s{s_t1}
s_bfe_u32 s6, {tab([0, 5, 22, 27])}, s{s_t1}
s_bfe_u32 s7, {tab([44, 49, 66, 70])}, s{s_t1}""")
    S(f"s_mul_i32 s{s_t0}, s{s_tt}, 118\ns_lshl_b32 s{s_t2}, s{s_ct}, 7")
    for i in range(4):
        S(f"s_add_u32 s{8 + i}, s{4 + i}, s{s_t0}\ns_lshl_b32 s{8 + i}, s{8 + i}, 11\ns_lshl_b32 s{4 + i}, s{4 + i}, 14\ns_add_u32 s{4 + i}, s{4 + i}, s{s_t2}")
    S(f"""s_lshl_b32 s{s_t1}, s{s_w}, 2
s_add_u32 s12, s{s_t1}, s{s_t0}
s_add_u32 s12, s12, 86
s_lshl_b32 s12, s12, 11
s_lshl_b32 s13, s{s_w}, 16
s_add_u32 s13, s13, s{s_t2}
s_lshr_b32 s14, s{s_tt}, 1
s_lshl_b32 s14, s14, 2
s_and_b32 s{s_t0}, s{s_tt}, 1
s_add_u32 s14, s14, s{s_t0}
s_lshl_b32 s14, s14, 7
s_add_u32 s14, s14, {FLG}
s_add_u32 s16, s14, 0x10000
s_add_u32 s{s_t0}, s{s_t0}, 6
v_and_b32 v{VT}, 2, v{VL}
v_lshl_add_u32 v{VT}, v{VT}, 1, s{s_w}
v_mov_b32 v{VT + 1}, s{s_t0}
s_mov_b64 s[18:19], 15
s_mov_b64 s[20:21], 63
v_and_b32 v{VT + 2}, 1, v{VL}
v_lshlrev_b32 v{VT + 2}, 8, v{VT + 2}
v_cndmask_b32 v{VT}, v{VT + 1}, v{VT}, s[18:19]
v_lshl_add_u32 v{VT}, v{VT}, 13, v{VT + 2}
v_mov_b32 v{VT + 1}, {OOB}
v_cndmask_b32 v{VPOLL}, v{VT + 1}, v{VT}, s[20:21]""")
    quad_parts(g)
    voff_n2(g, VW2, 4, 1024, False)
    S(f"""s_cmp_ge_u32 s{s_w}, 2
s_cselect_b32 s{s_t0}, {OOB}, 0
v_add_u32 v{VW2D}, s{s_t0}, v{VW2 + 2}
v_add_u32 v{VW2D + 1}, s{s_t0}, v{VW2 + 3}
v_add_u32 v{VL16D}, s{s_t0}, v{VL16}""")


PB_K = [("QH", p, i) for p in range(2) for i in range(6)] + \
       [("KH", 0, 0), ("KH", 0, 1), ("KH", 0, 2), ("KH", 0, 3), ("KH", 0, 4), ("KH", 1, 4), ("KH", 1, 0), ("KH", 1, 1), ("KH", 1, 2), ("KH", 1, 3)] + \
       [("O", p, i) for p in range(2) for i in range(4)]
W2_ORDER = [11, 12, 13, 14, 0, 1] + list(range(2, 11))
NSTAGE = 6


def w2_src(k):
    part, p, i = PB_K[k]
    if part == "QH":
        return sWD, 4 + p, i * 16384
    if part == "KH":
        return sWD, 6 + p, i * 16384
    return sWO, 13, p * 262144 + i * 16384


def act_src(k):
    part, p, i = PB_K[k]
    if part == "QH":
        return 8 + p, i * 2048
    if part == "KH":
        return 10 + p, i * 2048
    return 12, p * 16 * 2048 + i * 2048


def add_w2(g, n):
    grp = W2_ORDER[n]
    k = 2 * grp
    r, sb, off = w2_src(k)
    tag = f"W{grp}"

    def claim():
        for a in g.w2cand():
            if g.lds.free(a, a + 16384):
                g.lds.claim(a, a + 16384, tag)
                g.w2addr[grp] = a
                return [f"s_add_u32 m0, s{s_m4}, {a}", f"s_add_u32 s{s_o1}, s{sb}, {off}"]
        return None
    g.lq.add(None, dma(VW2, r, s_o1, 0), tag, claim)
    g.lq.add([], dma(VW2 + 1, r, s_o1, 1024), tag)
    if PB_K[k + 1] == ("KH", 1, 4):
        r2, sb2, off2 = w2_src(k + 1)
        g.lq.add([f"s_add_u32 s{s_o1}, s{sb2}, {off2 - 16384}"], dma(VW2D, r2, s_o1, 2048), tag)
        g.lq.add([], dma(VW2D + 1, r2, s_o1, 3072), tag)
    else:
        g.lq.add([], dma(VW2 + 2, r, s_o1, 2048), tag)
        g.lq.add([], dma(VW2 + 3, r, s_o1, 3072), tag)


def w2_reads(g, k, dst):
    a = g.w2addr[k // 2] + (k % 2) * 2048
    base, off = VW2A + a // 65536, a % 65536
    return [f"ds_read_b64_tr_b16 {dst(4 * c + 2 * t)}, v{base} offset:{off + 256 * c + 1024 * t}" for c in range(2) for t in range(2)]


def stage_moves(g, nk, dead=256, force=False):
    L = []
    while nk > 0 and g.staged < 2 * NSTAGE:
        n, kk = g.staged // 2, g.staged % 2
        grp = W2_ORDER[n]
        if 8 * g.staged + 8 > dead:
            break
        if not g.complete(f"W{grp}"):
            if not force:
                break
            g.wait(vm_tag=f"W{grp}")
        b = 8 * g.staged
        L += I(w2_reads(g, 2 * grp + kk, lambda o: ar(b + o, 2)))
        if kk == 1:
            a = g.w2addr[grp]
            L.append(Event(lambda a=a: g.pend_rel.append((a, a + 16384))))
        g.staged += 1
        nk -= 1
    return L


def stage_event(g, nk):
    def fn():
        g.wait(lgkm0=True)
        g.puts(stage_moves(g, nk, force=True))
    return Event(fn)


def areg(k, sub):
    return 96 + 8 * (k % 20) + 4 * sub


def add_act(g, k0, k1, subs=None):
    def ld(k, sub, imm, pre):
        va = VL16D if PB_K[k] == ("KH", 1, 4) else VL16
        g.lq.add(pre, f"buffer_load_dwordx4 {ar(areg(k, sub), 4)}, v{va}, {srd(sWS)}, s{s_o2} offen" + (f" offset:{imm}" if imm else "") + " sc1",
                 f"act{k}_{sub}", cond=(lambda: g.bdone >= k - 20))
    k = k0
    while k < k1:
        sb, off = act_src(k)
        two = k + 1 < k1 and act_src(k + 1) == (sb, off + 2048)
        first = True
        for kk in range(2 if two else 1):
            for sub in (range(2) if subs is None else subs):
                ld(k + kk, sub, 2048 * kk + 1024 * sub, [f"s_add_u32 s{s_o2}, s{sb}, {off}"] if first else [])
                first = False
        k += 2 if two else 1


def phase_b(g, publish):
    S = g.S
    AB, AA = ACC, ACC + 64
    VGT = VT
    assert g.staged == 2 * NSTAGE
    staged = {W2_ORDER[n]: n for n in range(NSTAGE)}

    def frag(k, c):
        if k // 2 in staged:
            return ar(16 * staged[k // 2] + 8 * (k % 2) + 4 * c, 4)
        return vr(VFR + 8 * (k % 2) + 4 * c, 4)

    def reads(k):
        if k >= 22 or k // 2 in staged:
            return []
        fb = VFR + 8 * (k % 2)
        return w2_reads(g, k, lambda o: vr(fb + o, 2))

    kc1, kc2, pubk = int(OPT["kc1"]), int(OPT["kc2"]), int(OPT["pubk"])
    g.force("W10")
    g.loads(12)
    g.stamp()
    VRW, VRR, VOUT = VFR + 16, VFR + 20, VFR + 22
    setup = I(f"""v_and_b32 v{VT + 4}, 15, v{VL}
v_lshlrev_b32 v{VT + 4}, 8, v{VT + 4}
v_bfe_u32 v{VT + 5}, v{VL}, 4, 1
v_lshl_add_u32 v{VT + 4}, v{VT + 5}, 14, v{VT + 4}
v_lshrrev_b32 v{VT + 5}, 5, v{VL}
v_xor_b32 v{VT + 5}, v{VT + 5}, v{VL}
v_and_b32 v{VT + 5}, 7, v{VT + 5}
v_lshl_add_u32 v{VT + 4}, v{VT + 5}, 4, v{VT + 4}
v_add_u32 v{VRW}, s{s_m4}, v{VT + 4}
v_xor_b32 v{VRW + 1}, 32, v{VRW}
v_xor_b32 v{VRW + 2}, 64, v{VRW}
v_xor_b32 v{VRW + 3}, 0x60, v{VRW}
v_lshrrev_b32 v{VT + 4}, 3, v0
v_and_b32 v{VT + 5}, 7, v0
v_lshlrev_b32 v{VT + 6}, 10, v{VT + 4}
v_lshl_add_u32 v{VOUT}, v{VT + 5}, 4, v{VT + 6}
v_lshlrev_b32 v{VT + 5}, 1, v{VT + 5}
v_and_b32 v{VT + 6}, 7, v{VT + 4}
v_xor_b32 v{VT + 5}, v{VT + 5}, v{VT + 6}
v_and_b32 v{VT + 6}, 15, v{VT + 4}
v_lshlrev_b32 v{VT + 6}, 8, v{VT + 6}
v_lshl_add_u32 v{VT + 5}, v{VT + 5}, 4, v{VT + 6}
v_lshrrev_b32 v{VT + 4}, 4, v{VT + 4}
v_lshl_add_u32 v{VRR}, v{VT + 4}, 14, v{VT + 5}
v_xor_b32 v{VRR + 1}, 16, v{VRR}
v_and_b32 v{VT + 7}, 31, v{VL}
v_lshlrev_b32 v{VT + 7}, 2, v{VT + 7}
s_lshl_b32 s{s_t0}, s{s_tt}, 16
s_lshl_b32 s{s_t1}, s{s_ct}, 7
s_add_u32 s{s_t0}, s{s_t0}, s{s_t1}
s_add_u32 s{s_t1}, s{s_t0}, 32768
s_lshl_b32 s{s_t3}, s{s_tt}, 8
s_add_u32 s{s_t3}, s{s_t3}, {GATE}""".split("\n"))
    g.puts(setup)
    gate = I(f"""v_mul_f32 v{VGT}, -v{VGT}, v{VC + 2}
v_mul_f32 v{VGT + 1}, -v{VGT + 1}, v{VC + 2}
v_exp_f32 v{VGT}, v{VGT}
v_exp_f32 v{VGT + 1}, v{VGT + 1}
v_add_f32 v{VGT}, 1.0, v{VGT}
v_add_f32 v{VGT + 1}, 1.0, v{VGT + 1}
v_rcp_f32 v{VGT}, v{VGT}
v_rcp_f32 v{VGT + 1}, v{VGT + 1}
v_sub_f32 v{VGT + 2}, 1.0, v{VGT}
v_sub_f32 v{VGT + 3}, 1.0, v{VGT + 1}""".split("\n"))
    for k in range(22):
        if k == pubk:
            g.puts(publish)
        if k == max(kc1 - 4, pubk):
            g.puts(g.poll_issue(VPOLL, sWS, "s14"))
        if k == kc2 - 4:
            g.puts(g.poll_issue(VPOLL, sWS, "s16"))
        if k == kc1:
            g.puts(g.poll_check(VPOLL, sWS, "s14", 0x3f, 2))
            g.lq.add([], f"buffer_load_dword v{VGT}, v{VT + 7}, {srd(sWS)}, s{s_t3} offen sc1", "gate")
            g.lq.add([], f"buffer_load_dword v{VGT + 1}, v{VT + 7}, {srd(sWS)}, s{s_t3} offen offset:128 sc1", "gate")
            add_act(g, 12, 22)
        if k == kc2:
            g.puts(g.poll_check(VPOLL, sWS, "s16", 0xf, 2))
            add_act(g, 22, 30, [0])
            add_act(g, 22, 30, [1])
        if k in (1, 4, 5, 12, 14, 21):
            g.puts(g.fs())
        g.force(f"act{k}_1")
        mf = [mfma(AB + 32 * s + 16 * c, frag(k, c), ar(areg(k, s), 4), k > 0) for s in range(2) for c in range(2)]
        rd = reads(k + 1)
        if reads(k):
            g.wait(lgkm0=True)
        for i, m in enumerate(mf):
            S(m)
            if i == 0 and rd and (k + 1) % 2 == 0:
                g.wait(vm_tag=f"W{(k + 1) // 2}")
            if i < 2:
                for r in rd[2 * i:2 * i + 2]:
                    S(r)
                if not rd:
                    g.loads(1)
            else:
                if i == 3:
                    g.bdone = k
                g.loads(2 if i == 2 else 1)
                if k == 20:
                    g.puts(gate[5 * (i - 2):5 * (i - 1)])
    scale = [f"v_mul_f32 v{AB + 32 * s + i}, v{AB + 32 * s + i}, v{VGT + 2 + s}" for s in range(2) for i in range(32)]

    def comb(s):
        L = []
        for c in range(2):
            for q in range(4):
                b = 32 * s + 16 * c + 4 * q
                if s == 0:
                    u = [f"v_fmac_f32 v{AB + b + i}, v{AA + b + i}, v{VGT}" for i in range(4)]
                else:
                    u = [f"v_pk_fma_f32 {vr(AB + b + 2 * i, 2)}, {vr(AA + b + 2 * i, 2)}, {vr(VGT, 2)}, {vr(AB + b + 2 * i, 2)} op_sel:[0,1,0] op_sel_hi:[1,1,1]" for i in range(2)]
                L.append(u + [f"ds_write_b128 v{VRW + q}, {vr(AB + b, 4)} offset:{s * 32768 + c * 128}"])
        return L
    c0 = comb(0)
    for s in range(2):
        n = 0
        for k in range(22, 30):
            g.force(f"act{k}_{s}")
            for c in range(2):
                S(mfma(AA + 32 * s + 16 * c, frag(k, c), ar(areg(k, s), 4), k > 22))
                g.loads(1)
                if (s == 0 and n >= 2) or (s == 1 and n < 3):
                    for x in scale[:4]:
                        S(x)
                    scale = scale[4:]
                if s == 1 and n >= 3 and c0 and (n % 2 == 1 or n >= 12):
                    for x in c0.pop(0):
                        S(x)
                n += 1
    assert not g.lq.q and not scale and not c0
    g.stamp()
    R0, R1 = AA, AB

    def rds(h, R):
        return [f"ds_read_b128 {vr(R + 8 * wv + 4 * q, 4)}, v{VRR + q} offset:{wv * 4096 + h * 32768}" for wv in range(4) for q in range(2)]

    def fin(h, b):
        L = [f"v_pk_add_f32 {vr(b + 2 * i, 2)}, {vr(b + 2 * i, 2)}, {vr(b + 8 + 2 * i, 2)}" for i in range(4)]
        L += [f"v_pk_add_f32 {vr(b + 16 + 2 * i, 2)}, {vr(b + 16 + 2 * i, 2)}, {vr(b + 24 + 2 * i, 2)}" for i in range(4)]
        L += [f"v_pk_add_f32 {vr(b + 2 * i, 2)}, {vr(b + 2 * i, 2)}, {vr(b + 16 + 2 * i, 2)}" for i in range(4)]
        L += [f"v_cvt_pk_bf16_f32 v{b + 8 + i}, v{b + 2 * i}, v{b + 2 * i + 1}" for i in range(4)]
        L += [f"buffer_store_dwordx4 {vr(b + 8, 4)}, v{VOUT}, {srd(sOUT)}, s{s_t0 + h} offen {OPT['outfl']}".strip()]
        return L
    g.wait(lgkm0=True)
    S("s_barrier")
    for x in rds(0, R0):
        S(x)
    for u in comb(1):
        for x in u:
            S(x)
    for x in fin(0, R0):
        S(x)
    g.wait(lgkm0=True)
    S("s_barrier")
    for x in rds(1, R1) + fin(1, R1):
        S(x)
    finish(g)


def finish(g):
    S = g.S
    if OPT["diag"]:
        a, b, mult, unit = OPT["diag"].split(":")
        S.wait(vm0=True)
        g.stamp()
        if a == "entry":
            S("s_mov_b32 s18, s3")
        if b == "karg":
            S("s_mov_b32 s20, s23")
        S(f"s_sub_u32 s22, s20, s18\ns_mul_i32 s22, s22, {mult}")
        if unit == "c":
            S("s_lshr_b32 s22, s22, 4")
        S(f"""s_min_u32 s22, s22, 20000
s_memrealtime s[24:25]
s_waitcnt lgkmcnt(0)
L_dg_{g.kind}:
s_memrealtime s[26:27]
s_waitcnt lgkmcnt(0)
s_sub_u32 s26, s26, s24
s_cmp_lt_u32 s26, s22
s_cbranch_scc1 L_dg_{g.kind}""")
    if OPT["stamps"]:
        S.wait(vm0=True)
        g.stamp()
        S(f"""s_memrealtime s[{s_stamp}:{s_stamp + 1}]
s_waitcnt lgkmcnt(0)
v_writelane_b32 v{VST}, s{s_stamp}, 30
v_writelane_b32 v{VST}, s3, 31
s_lshl_b32 s{s_t0}, s2, 2
s_add_u32 s{s_t0}, s{s_t0}, s{s_w}
s_lshl_b32 s{s_t0}, s{s_t0}, 7
s_add_u32 s{s_t0}, s{s_t0}, {STAMP}
v_lshlrev_b32 v{VT}, 2, v{VL}
s_mov_b64 exec, 0xffffffff
buffer_store_dword v{VST}, v{VT}, {srd(sWS)}, s{s_t0} offen""")
    S("s_endpgm")


def publish(tag, stage):
    return [Wait(tag), Ins(f"buffer_store_dword v{VONE if stage == 1 else VTWO}, v{VFLAG}, {srd(sWS)}, s17 offen sc1", "flag")]


def own_flag(g):
    g.S(f"""s_lshl_b32 s17, s{s_j}, 4
s_add_u32 s17, s17, s{s_tb}
s_lshl_b32 s17, s17, 2
s_add_u32 s17, s17, s{s_w}
s_lshl_b32 s17, s17, 7
s_add_u32 s17, s17, {FLG + (0x10000 if g.kind == "Q" else 0)}""")


def act_base(g):
    g.S(f"s_lshl_b32 s{s_act}, s{s_tb}, 1\ns_add_u32 s{s_act}, s{s_act}, s{s_th}\ns_mul_i32 s{s_act}, s{s_act}, {118 * 2048}")


def jct(g, dst):
    g.S(f"s_lshl_b32 s{dst}, s{s_j}, 1\ns_add_u32 s{dst}, s{dst}, s{s_ch}\ns_lshl_b32 s{dst}, s{dst}, 1\ns_add_u32 s{dst}, s{dst}, s{s_th}")


def ffn_common(g, n):
    g.S(f"""v_lshl_add_u32 v{VT + 8}, v{VT + 3}, 1, v{VT + 2}
v_mul_u32_u24 v{VT + 8}, {n * 512}, v{VT + 8}
v_add_u32 v{VT + 8}, v{VT + 8}, v{VT + 6}""")


def ffn_addr(g, dst, idx, base):
    g.S(f"""s_lshr_b32 s{s_t1}, s{idx}, 1
s_lshl_b32 s{s_t1}, s{s_t1}, 8
s_and_b32 s{s_t2}, s{idx}, 1
s_lshl_b32 s{s_t2}, s{s_t2}, 5""")
    if base:
        g.S(f"s_add_u32 s{s_t1}, s{s_t1}, {base}")
    g.S(f"v_xor_b32 v{dst}, s{s_t2}, v{VT + 8}\nv_add_u32 v{dst}, s{s_t1}, v{dst}")


def lines(txt):
    return I([x.strip() for x in txt.split("\n") if x.strip()])


def gen_q():
    g = Gen("Q")
    S, lq = g.S, g.lq
    head(g)
    WR = QWR
    quad_parts(g)
    voff_n2(g, VQ, 2, 3072, True)
    voff_ffn3(g)
    unit_start(S, s_us, f"s{s_j}", True, s_t0)
    S(f"s_lshl_b32 s{s_fb}, s{s_us}, 5\ns_lshl_b32 s{s_m8}, s{s_w}, 13")
    mk_srds(g, [sG, sU])
    S(f"s_mov_b64 s[{sQKV}:{sQKV + 1}], s[6:7]")

    def add_w(j):
        w = WR[j % 3]
        add_rows(g, f"K{j}", VQ, 2, sQKV, 3072, s_qb, s_o1, s_m8, w, (w, w + 32768), newkb=j if j < 3 else None)
        add_rows(g, f"K{j}", VG, 3, sG, 2752, s_fb, s_o2, s_m8, w + 2048, None)
        add_rows(g, f"K{j}", VU, 3, sU, 2752, s_fb, s_o2, s_m8, w + 5120, None, newso=False)
    for j in range(8):
        if j >= 3:
            add_x(g, j, XR[j % 3])
        add_w(j)
    g.loads(8)
    mk_srds(g, [sWS, sPHI, sDBG, sWO, sWD, sOUT])
    phi_load(g)
    misc_setup(g)
    S(f"""v_lshl_add_u32 v{VWA}, v{VT + 2}, 10, v{VT + 6}
s_lshl_b32 s{s_t0}, s{s_ch}, 8
s_add_u32 s{s_t0}, s{s_t0}, {WR[0]}
v_add_u32 v{VWA}, s{s_t0}, v{VWA}""")
    ffn_common(g, 3)
    S(f"s_mul_i32 s{s_t0}, s{s_ch}, 3")
    for b in range(3):
        if b:
            S(f"s_add_u32 s{s_t0}, s{s_t0}, 1")
        ffn_addr(g, VWA + 1 + b, s_t0, WR[0] + 2048)
    for b in range(4):
        S(f"v_add_u32 v{VWA + 4 + b}, 0x10000, v{VWA + b}")
    consts(g)
    pb_setup(g)
    act_base(g)
    own_flag(g)
    jct(g, s_t3)
    S(f"s_lshl_b32 s15, s{s_j}, 6\ns_add_u32 s15, s15, s{s_w}\ns_lshl_b32 s15, s15, 7\ns_add_u32 s15, s15, {FLG}")
    g.loads(8)
    g.stamp()
    g.wait(vm_tag="K0")
    S("s_barrier")
    g.stamp()

    def reads(ks):
        j, kk = ks // 4, ks % 4
        buf = ks % 2
        fx, fw = VFR + 8 * buf, VFR + 16 + 16 * buf
        o = WR[j % 3] - WR[0] + kk * 8192
        st = 4 if o >= 65536 else 0
        o %= 65536
        xr = [f"ds_read_b128 {vr(fx + 4 * s, 4)}, v{VXA + kk} offset:{XR[j % 3] + 4096 * s}" for s in range(2)]
        wr = [[f"ds_read_b64_tr_b16 {vr(fw + 4 * b + 2 * t, 2)}, v{VWA + st + b} offset:{o + t * (512 if b == 0 else 768)}" for t in range(2)] for b in range(4)]
        return [xr[0], xr[1]] + wr[0] + wr[1] + wr[2] + wr[3]

    for r in reads(0):
        S(r)
    g.w2cand = lambda: [16384 * i for i in range(9)]
    for n in range(6):
        add_w2(g, n)
    PA = 192
    ZR = VFR + 40
    for ks in range(32):
        j, kk = ks // 4, ks % 4
        buf = ks % 2
        fx, fw = VFR + 8 * buf, VFR + 16 + 16 * buf
        mf = [mfma(ACC + (2 * b + s) * 16, vr(fw + 4 * b, 4), vr(fx + 4 * s, 4), ks > 0) for b in range(4) for s in range(2)]
        bar = None
        if kk == 3:
            bar = ([f"X{j + 1}", f"K{j + 1}"] if j < 7 else None, [(XR[j % 3], XR[j % 3] + 16384), (WR[j % 3], WR[j % 3] + 32768)])
        ex = []
        if ks == 10:
            ex = g.poll_issue(VPK, sDBG, "0")
        if ks == 18:
            ex = g.poll_check(VPK, sDBG, "0", 0xf, 1, 16) + lines(f"""v_lshlrev_b32 v{VPK}, 9, v{VL}
v_cmp_gt_u32 vcc, 16, v{VL}
v_cndmask_b32 v{VPK}, v{VPOLL}, v{VPK}, vcc""")
        if ks == 31:
            ex = [Event(lambda: g.puts(stage_moves(g, 3, force=True)))]
        if ks == 18:
            g.puts(ex)
            ex = []
        if ks in (4, 5, 6):
            ex = phi_read(g)[5 * (ks - 4):5 * (ks - 3)]
        kstep(g, mf, reads(ks + 1) if ks < 31 else [], 3, barrier=bar, extra=ex)
    g.stamp()
    S(f"s_lshl_b32 s{s_xb}, s{s_t3}, 14\ns_add_u32 s{s_xb}, s{s_xb}, {KVP}\ns_lshl_b32 s{s_qb}, s{s_t3}, 11\ns_add_u32 s{s_qb}, s{s_qb}, {ZP}")
    def add_partials():
        rest = lq.q
        k = 0
        while k < len(rest) and rest[k][0] is not None:
            k += 1
        lq.q = rest[:k]
        for i in range(2):
            lq.add([], f"buffer_load_dwordx4 {vr(ZR + 4 * i, 4)}, v{VL16}, {srd(sWS)}, s{s_qb} offen offset:{1024 * i} sc1", "zl")
        for t in range(16):
            pre = [f"s_add_u32 s{s_xb}, s{s_xb}, 4096"] if (t % 4 == 0 and t) else []
            lq.add(pre, f"buffer_load_dwordx4 {ar(PA + 4 * t, 4)}, v{VL16}, {srd(sWS)}, s{s_xb} offen offset:{1024 * (t % 4)} sc1", "pl")
        lq.q += rest[k:]
    for n in range(6, 15):
        add_w2(g, n)
    kvp, kvc = int(OPT["kvp"]), int(OPT["kvc"])
    if kvp < 0:
        g.puts(g.poll_issue(VPK, sWS, "s15"))
    S(f"""s_mul_i32 s{s_t0}, s{s_ch}, 3
s_add_u32 s{s_t0}, s{s_t0}, s{s_us}
s_lshl_b32 s{s_t0}, s{s_t0}, 11
s_add_u32 s{s_o0}, s{s_t0}, s{s_act}
s_add_u32 s{s_kb}, s{s_o0}, 4096""")
    QB = VFR + 24
    PQ = ACC + 32
    main = []
    for b in range(3):
        for s in range(2):
            n = 2 * b + s
            O = VFR + 16 + 4 * (n % 2)
            main += I(gelu_block(ACC + (2 * (b + 1) + s) * 16, VFR, VFR + 8, O))
            so, off = (s_o0, n * 1024) if n < 4 else (s_kb, (n - 4) * 1024)
            main += I([f"buffer_store_dwordx4 {vr(O, 4)}, v{VL16}, {srd(sWS)}, s{so} offen offset:{off} sc1"], "hst")
            main += g.fs()
            if n in (1, 3):
                main.append(stage_event(g, 3))
                main += g.fs()
            if n == kvp:
                main += g.poll_issue(VPK, sWS, "s15")
            if n == kvc:
                main += g.poll_check(VPK, sWS, "s15", 0xffff) + [Event(add_partials)] + g.fs()
            if n == 4:
                for s2 in range(2):
                    for h in range(2):
                        for i in range(4):
                            main += I([f"v_cvt_pk_bf16_f32 v{QB + 8 * s2 + 4 * h + i}, v{ACC + 16 * s2 + 8 * h + 2 * i}, v{ACC + 16 * s2 + 8 * h + 2 * i + 1}"])
                        main += I([mfma(PQ + 16 * (2 * s2 + h), vr(VPHI, 4), vr(QB + 8 * s2 + 4 * h, 4), False)])
    weave(g, main, int(OPT['qev']))
    g.stamp()
    E0, E1 = ACC + 96, ACC + 112
    PH = ACC
    M0, M1 = VT, VT + 2
    PS, ZA = VFR, VFR + 16
    KA = VFR + 32
    PX = VT + 4
    VA0, VA1, VA2 = VX, VX + 1, VX + 2
    sm = [zipl(softmax_inst(PQ + 16 * (2 * s), E0, M0, PH + 16 * s), softmax_inst(PQ + 16 * (2 * s + 1) + 8, E1, M1, PH + 16 * s + 8)) for s in range(2)]
    ZF = VQ
    VA3 = VX + 3
    PX = PS
    ND = [[PQ, PQ + 16], [VFR + 16, E0]]
    sm0, sm1 = I(sm[0]), I(sm[1])
    mark = lambda L, k: L[k].wr[:1]
    r = [stage_event(g, 3)] + lines(f"""s_lshr_b32 s{s_t0}, s{s_m4}, 1
s_add_u32 s{s_t0}, s{s_t0}, {MISC + 4096}
v_add_u32 v{VA0}, s{s_t0}, v{VL16}
v_lshrrev_b32 v{VA1}, 5, v{VL}
v_lshlrev_b32 v{VA1}, 10, v{VA1}
v_bfe_u32 v{VA2}, v{VL}, 2, 2
v_lshl_add_u32 v{VA1}, v{VA2}, 7, v{VA1}
v_bfe_u32 v{VA2}, v{VL}, 4, 1
v_lshl_add_u32 v{VA1}, v{VA2}, 5, v{VA1}
v_and_b32 v{VA2}, 3, v{VL}
v_lshl_add_u32 v{VA1}, v{VA2}, 3, v{VA1}
v_add_u32 v{VA1}, s{s_t0}, v{VA1}
s_lshr_b32 s{s_t1}, s{s_m4}, 2
s_add_u32 s{s_t1}, s{s_t1}, {MISC + 12288}
v_add_u32 v{VA3}, s{s_t1}, v{VL16}
v_and_b32 v{VA2}, 0xfffffbff, v{VA3}
s_lshl_b32 s{s_t2}, s{s_j}, 1
s_add_u32 s{s_t2}, s{s_t2}, s{s_ch}
s_lshl_b32 s{s_t2}, s{s_t2}, 12
s_add_u32 s{s_t2}, s{s_t2}, {86 * 2048}
s_add_u32 s{s_o0}, s{s_t2}, s{s_act}""")
    r += sm0
    r, t1 = sched(r)
    weave(g, r, int(OPT["qev"]))
    g.puts(g.fs() + publish("hst", 1) + g.fs())
    r = [Wait("pl", wr=[("a", PA + i) for i in range(64)] + [("v", ZR + i) for i in range(8)])] + g.fs()
    r += lines(f"ds_write_b128 v{VA0}, {vr(ZR, 4)}\nds_write_b128 v{VA0}, {vr(ZR + 4, 4)} offset:1024")
    r += [Wait(lgkm0=True)]
    r += I([f"ds_read_b64_tr_b16 {vr(ZF + 4 * h + 2 * t, 2)}, v{VA1} offset:{64 * h + 512 * t}" for h in range(2) for t in range(2)])
    r += I([mfma(PS, vr(VID, 4), ar(PA + 4 * t, 4), t > 0) for t in range(16)])
    for h in range(2):
        r += I([mfma(ZA, vr(ZF + 4 * h, 4), vr(VONES, 4), False)])
        r += I([f"v_cvt_pk_bf16_f32 v{KA + 8 * h + i}, v{ZA + 2 * i}, v{ZA + 2 * i + 1}" for i in range(8)])
    r += I([f"v_cvt_pk_bf16_f32 v{PS + 8 + i}, v{PS + 2 * i}, v{PS + 2 * i + 1}" for i in range(4)])
    r += I([f"ds_write_b128 v{VA3}, {vr(PS + 8, 4)}"])
    r += [Event(lambda: (g.force("W10"), g.puts(g.poll_issue(VPOLL, sWS, "s16"))))]
    r += [Wait(lgkm0=True)] + lines(f"s_barrier\nds_read_b128 {vr(PX, 4)}, v{VA2}\nds_read_b128 {vr(PX + 4, 4)}, v{VA2} offset:1024")
    r += I([f"v_cndmask_b32 v{KA + i}, v{PX + i}, v{KA + i}, s[{s_mk0}:{s_mk0 + 1}]" for i in range(8)])
    r += I([f"v_cndmask_b32 v{KA + 8 + i}, v{KA + 8 + i}, v{PX + i}, s[{s_mk0}:{s_mk0 + 1}]" for i in range(8)])

    def out(s):
        L = []
        for h in range(2):
            for jj in range(2):
                L += I([mfma(ND[s][h], vr(KA + 8 * h + 4 * jj, 4), vr(PH + 16 * s + 8 * h + 4 * jj, 4), jj > 0)])
        for h in range(2):
            d = ND[s][h]
            num, den = (d, d + 8) if h == 0 else (d + 8, d)
            O = den + 4
            L += I([f"v_add_f32 v{den}, v{den}, v{VC + 3}", f"v_rcp_f32 v{den}, v{den}"])
            if s == 0:
                L += I([f"v_mul_f32 v{num + i}, v{num + i}, v{den}" for i in range(8)])
            else:
                L += I([f"v_pk_mul_f32 {vr(num + 2 * i, 2)}, {vr(num + 2 * i, 2)}, {vr(den, 2)} op_sel_hi:[1,0]" for i in range(4)])
            L += I([f"v_cvt_pk_bf16_f32 v{O + i}, v{num + 2 * i}, v{num + 2 * i + 1}" for i in range(4)])
            L += I([f"buffer_store_dwordx4 {vr(O, 4)}, v{VL16}, {srd(sWS)}, s{s_o0} offen offset:{2048 * h + 1024 * s} sc1"], "ost")
        return L
    r += sm1 + out(0) + out(1)
    r, t2 = sched(r, tries=200)
    print("Q sched est", t1, t2)
    weave(g, r, int(OPT["qev"]))
    g.stamp()
    pub = publish("ost", 2)
    g.puts(g.poll_check(VPOLL, sWS, "s16", 0xf, first=pub[1].text))
    add_act(g, 0, 12)
    g.stamp()
    phase_b(g, pub)
    return g


def gen_kv(light):
    g = Gen("KL" if light else "KH")
    S, lq = g.S, g.lq
    head(g)
    NCH = 2 if light else 3
    FS = NCH * 8192
    WR = KWR
    mk_srds(g, [sWS, sG, sU, sPHI, sDBG, sWO, sWD, sOUT, sGW])
    if light:
        zero_flags(g)
    add_kv(g, 1)
    for j in range(2, 8):
        add_x(g, j, XR[j % 4])
        add_kv(g, j)
    quad_parts(g)
    if light:
        voff_n2(g, VG, 2, 2752, True)
        S(f"v_xor_b32 v{VU}, 32, v{VG}\nv_xor_b32 v{VU + 1}, 32, v{VG + 1}")
    else:
        voff_ffn3(g)
    unit_start(S, s_us, f"s{s_j}", False, s_t0)
    S(f"s_lshr_b32 s{s_fb}, s{s_us}, 1\ns_lshl_b32 s{s_fb}, s{s_fb}, 6\ns_mul_i32 s{s_m6}, s{s_w}, {NCH * 2048}")
    misc_setup(g)
    VXB = VFR + 44
    S(f"s_lshl_b32 s{s_t0}, s{s_ch}, 12")
    for i in range(4):
        S(f"v_add_u32 v{VXA + i}, s{s_t0}, v{VXA + i}\nv_xor_b32 v{VXB + i}, 0x1000, v{VXA + i}")
    VKA = VWA + 9
    S(f"""v_lshl_add_u32 v{VKA}, v{VT + 2}, 11, v{VT + 6}
s_lshl_b32 s{s_t0}, s{s_ch}, 8
s_add_u32 s{s_t0}, s{s_t0}, {WR[0]}
v_add_u32 v{VKA}, s{s_t0}, v{VKA}""")
    ffn_common(g, NCH)
    S(f"s_and_b32 s{s_t3}, s{s_us}, 1\ns_lshl_b32 s{s_t0}, s{s_ch}, 1\ns_add_u32 s{s_t0}, s{s_t0}, s{s_t3}")
    for b in range(2 if light else 3):
        if b == 1:
            S(f"s_add_u32 s{s_t0}, s{s_t0}, 1")
        if b == 2:
            S(f"s_add_u32 s{s_t0}, s{s_t3}, 4")
        ffn_addr(g, VWA + b, s_t0, 0)
        S(f"v_add_u32 v{VWA + 3 + b}, 0x10000, v{VWA + b}")
        if light:
            S(f"v_add_u32 v{VWA + 6 + b}, 0x20000, v{VWA + b}")
    if light:
        S(f"v_lshlrev_b32 v{VWA + 10}, 4, v{VT + 2}")
    consts(g)
    pb_setup(g)
    act_base(g)
    own_flag(g)
    VTW = VFR + 40
    if OPT["touch"]:
        S(f"""s_and_b32 s{s_t0}, s2, 63
s_lshr_b32 s{s_t1}, s2, 7
s_lshl_b32 s{s_t1}, s{s_t1}, 6
s_add_u32 s{s_t0}, s{s_t0}, s{s_t1}
s_lshl_b32 s{s_t0}, s{s_t0}, 2
s_add_u32 s{s_t0}, s{s_t0}, s{s_w}
s_mul_i32 s{s_t1}, s{s_t0}, {22 * 128}
s_lshl_b32 s{s_t0}, s{s_t0}, 10
v_mov_b32 v{VT}, {OOB}
v_lshl_add_u32 v{VT + 1}, v{VL}, 7, s{s_t1}
s_mov_b64 s[18:19], 0x3fffff
s_mov_b64 s[20:21], 0xff
v_lshl_add_u32 v{VT + 2}, v{VL}, 7, s{s_t0}
v_cndmask_b32 v{VTW}, v{VT}, v{VT + 1}, s[18:19]
v_cndmask_b32 v{VTW + 1}, v{VT}, v{VT + 2}, s[20:21]""")
        lq.add([], f"buffer_load_dword v{VTW + 2}, v{VTW + 1}, {srd(sWO)}, 0 offen", "touch")
        lq.add([], f"buffer_load_dword v{VTW + 3}, v{VTW}, {srd(sWD)}, 0 offen", "touch")
    g.stamp()
    phi_load(g)
    if light:
        S(f"s_lshr_b32 s{s_t1}, s{s_m4}, 2\ns_add_u32 m0, s{s_t1}, {MISC + 12288}\ns_mov_b32 s{s_t0}, 0")
        S(dma(VL16, sGW, s_t0, 0), tag="gw")
        S(f"s_add_u32 s15, s{s_t1}, {MISC + 12288}")
    g.loads(4)
    g.wait(vm_tag=["X0", "K0"])
    S("s_barrier")
    g.stamp()

    xa = lambda ks, s: 8 * ks + 4 * s

    def reads1(ks):
        j, kk = ks // 4, ks % 4
        fw = VFR + 8 * (ks % 2)
        o = WR[j % 4] - WR[0] + kk * 4096
        xr = [f"ds_read_b128 {ar(xa(ks, s), 4)}, v{(VXA, VXB)[s] + kk} offset:{XR[j % 4]}" for s in range(2)]
        wr = [[f"ds_read_b64_tr_b16 {vr(fw + 4 * b + 2 * t, 2)}, v{VKA} offset:{o + 512 * b + 1024 * t}" for t in range(2)] for b in range(2)]
        return wr[0] + [xr[0], xr[1]] + wr[1]

    K = 1024
    if light:
        FR = [128 * K, 0, 64 * K, 16 * K, 80 * K, 32 * K, 96 * K, 48 * K]
        order = [("F", j) for j in range(8)] + [("W", i) for i in range(15)]
        g.w2cand = lambda: [16 * K * i for i in range(9)]
    else:
        FR = [0, 64 * K, 24 * K, 88 * K] * 2
        order = [("W", 0), ("F", 0), ("F", 1), ("F", 2), ("F", 3), ("W", 1), ("W", 2), ("F", 4), ("W", 3), ("F", 5), ("F", 6), ("F", 7)] + [("W", i) for i in range(4, 15)]
        g.w2cand = lambda: [128 * K, 48 * K, 112 * K] + ([16 * K * i for i in range(9)] if lq.issued("F7") else [])
    for what, j in order:
        if what == "W":
            add_w2(g, j)
            continue
        f = FR[j]
        add_rows(g, f"F{j}", VG, NCH, sG, 2752, s_fb, s_o2, s_m6, f, (f, f + FS), newkb=j)
        add_rows(g, f"F{j}", VU, NCH, sU, 2752, s_fb, s_o2, s_m6, f + NCH * 1024, None, newso=False)
    for r in reads1(0):
        S(r)
    KA_, VA_ = ACC, ACC + 32
    XCH = MISC + 4096
    VA0, VA1, VA2, VA3 = VX, VX + 1, VX + 2, VX + 3
    late = phi_read(g) + lines(f"""s_lshl_b32 s{s_t3}, s{s_j}, 2
s_add_u32 s{s_t3}, s{s_t3}, s{s_w}
s_lshl_b32 s{s_o0}, s{s_t3}, 4
s_add_u32 s{s_o0}, s{s_o0}, s{s_tb}
s_lshl_b32 s{s_xb}, s{s_o0}, 7
s_add_u32 s{s_xb}, s{s_xb}, {ZP}
s_lshl_b32 s{s_o0}, s{s_o0}, 10
s_add_u32 s{s_o0}, s{s_o0}, {KVP}
s_sub_u32 s{s_mk1}, 0, s{s_th}
s_mov_b32 s{s_mk1 + 1}, s{s_mk1}
s_lshr_b32 s{s_t0}, s{s_m4}, 1
s_add_u32 s{s_t0}, s{s_t0}, {XCH}
v_add_u32 v{VA0}, s{s_t0}, v{VL16}
v_xor_b32 v{VA1}, 0x800, v{VA0}
s_lshl_b32 s{s_t1}, s{s_w}, 8
s_add_u32 s{s_t1}, s{s_t1}, {MISC}
v_lshl_add_u32 v{VA2}, v{VL}, 2, s{s_t1}
v_xor_b32 v{VA3}, 0x100, v{VA2}""")
    for ks in range(32):
        j, kk = ks // 4, ks % 4
        fw = VFR + 8 * (ks % 2)
        mf = [mfma(KA_ + 16 * s, vr(fw, 4), ar(xa(ks, s), 4), ks > 0) for s in range(2)] + \
             [mfma(VA_ + 16 * s, ar(xa(ks, s), 4), vr(fw + 4, 4), ks > 0) for s in range(2)]
        bar = None
        if kk == 3:
            bar = ([f"X{j + 1}", f"K{j + 1}"] if j < 7 else None, [(XR[j % 4], XR[j % 4] + 16384), (WR[j % 4], WR[j % 4] + 16384)])
        nl = 4 if ks < 4 else 0 if ks >= int(OPT['s1stop']) else 2
        if ks == 4 and light:
            set_ready(g)
        ex = []
        if ks >= 26:
            assert lq.issued("X7")
            ex, late = late[:6], late[6:]
        kstep(g, mf, reads1(ks + 1) if ks < 31 else [], nl, barrier=bar, wait0=False, extra=ex)
    assert not late
    g.stamp()
    KB = VFR
    VB = VFR + 16
    PH = VFR + 32
    PK = ACC + 64
    E0, E1 = ACC, ACC + 16
    TR0, TR1 = ACC + 32, ACC + 48
    M0, M1 = VT, VT + 2
    main = []
    for s in range(2):
        for h in range(2):
            for i in range(4):
                main.append(f"v_cvt_pk_bf16_f32 v{KB + 8 * s + 4 * h + i}, v{KA_ + 16 * s + 8 * h + 2 * i}, v{KA_ + 16 * s + 8 * h + 2 * i + 1}")
            main.append(mfma(PK + 16 * (2 * s + h), vr(VPHI, 4), vr(KB + 8 * s + 4 * h, 4), False))
    for s in range(2):
        for i in range(8):
            main.append(f"v_cvt_pk_bf16_f32 v{VB + 8 * s + i}, v{VA_ + 16 * s + 2 * i}, v{VA_ + 16 * s + 2 * i + 1}")
    PT = KB
    D0, D1 = PK, PK + 16
    ZA = [VT + 4, VT + 6]
    for s in range(2):
        main += zipl(softmax_inst(PK + 16 * (2 * s), E0, M0, PH), softmax_inst(PK + 16 * (2 * s + 1) + 8, E1, M1, PH + 8))
        for h, TR in enumerate((TR0, TR1)):
            for jj in range(2):
                main.append(mfma(TR, vr(PH + 8 * h + 4 * jj, 4), vr(VID + 4 * jj, 4), jj > 0))
        for h, TR in enumerate((TR0, TR1)):
            for i in range(8):
                main.append(f"v_cvt_pk_bf16_f32 v{PT + 8 * h + i}, v{TR + 2 * i}, v{TR + 2 * i + 1}")
            for jj in range(2):
                main.append(mfma((D0, D1)[h], vr(PT + 8 * h + 4 * jj, 4), vr(VB + 8 * s + 4 * jj, 4), s > 0 or jj > 0))
            for i in range(8):
                if s == 0 and i == 0:
                    continue
                a = vr(TR, 2) if (s == 0 and i == 1) else vr(ZA[h], 2)
                main.append(f"v_pk_add_f32 {vr(ZA[h], 2)}, {a}, {vr(TR + 2 * i, 2)}")
    main += f"""v_add_f32 v{ZA[0]}, v{ZA[0]}, v{ZA[0] + 1}
v_add_f32 v{ZA[1]}, v{ZA[1]}, v{ZA[1] + 1}
v_permlane32_swap_b32 v{ZA[0]}, v{ZA[1]}
v_add_f32 v{ZA[0]}, v{ZA[0]}, v{ZA[1]}""".split("\n")
    SN, KP = E0, E0 + 8
    main += [f"v_cndmask_b32 v{D0 + i}, v{D0 + i}, v{D1 + i}, s[{s_mk0}:{s_mk0 + 1}]" for i in range(16)]
    main += [f"v_cndmask_b32 v{SN + i}, v{D0 + 8 + i}, v{D0 + i}, s[{s_mk1}:{s_mk1 + 1}]" for i in range(8)]
    main += [f"ds_write_b32 v{VA2}, v{ZA[0]}", f"ds_write_b128 v{VA0}, {vr(SN, 4)}", f"ds_write_b128 v{VA0}, {vr(SN + 4, 4)} offset:1024"]
    KPR = VFR + 24
    main += [f"v_cndmask_b32 v{KPR + i}, v{D0 + i}, v{D0 + 8 + i}, s[{s_mk1}:{s_mk1 + 1}]" for i in range(8)]
    main, t1 = sched(I(main))
    print(g.kind, "kv sched est", t1)
    d0 = int(OPT["kvdelay"])
    g.puts(main[:d0])
    weave(g, main[d0:], int(OPT["kvev"]))
    g.puts(g.poll_issue(VPK, sDBG, "0"))
    g.wait(vm_tag="F0", lgkm0=True)
    S("s_barrier")

    NB = 2 if light else 3

    def reads2(ks):
        j, kk = ks // 4, ks % 4
        fw = VFR + 12 * (ks % 2)
        a = FR[j] + kk * NCH * 2048
        st = a // 65536
        o = a - st * 65536
        L = [f"ds_read_b64_tr_b16 {vr(fw + 4 * b + 2 * t, 2)}, v{VWA + 3 * st + b} offset:{o + t * NCH * 256}" for b in range(NB) for t in range(2)]
        if light:
            L.append(f"ds_read_b128 {vr(fw + 8, 4)}, v{VWA + 11} offset:{32 * kk}")
        return L

    def gw_addr(j):
        if light:
            S("\n".join([f"s_add_u32 s{s_t0}, s{s_rot}, {j}", f"s_and_b32 s{s_t0}, s{s_t0}, 7", f"s_lshl_b32 s{s_t0}, s{s_t0}, 7",
                         f"s_add_u32 s{s_t0}, s{s_t0}, s15", f"v_add_u32 v{VWA + 11}, s{s_t0}, v{VWA + 10}"]))

    gw_addr(0)
    for r in reads2(0):
        S(r)
    RCV, O = VFR + 32, VFR + 40
    S(f"ds_read_b128 {vr(RCV, 4)}, v{VA1}\nds_read_b128 {vr(RCV + 4, 4)}, v{VA1} offset:1024\nds_read_b32 v{ZA[1]}, v{VA3}")
    fin = I([f"v_add_f32 v{KPR + i}, v{KPR + i}, v{RCV + i}" for i in range(8)])
    fin += I([f"v_add_f32 v{ZA[0]}, v{ZA[0]}, v{ZA[1]}", f"v_lshlrev_b32 v{O + 5}, 1, v{VL}"])
    fin += I([f"v_cvt_pk_bf16_f32 v{O + i}, v{KPR + 2 * i}, v{KPR + 2 * i + 1}" for i in range(4)])
    fin += I([f"v_cvt_pk_bf16_f32 v{O + 4}, v{ZA[0]}, v{ZA[0]}"])
    fin += I([f"buffer_store_dwordx4 {vr(O, 4)}, v{VL16}, {srd(sWS)}, s{s_o0} offen sc1",
              f"buffer_store_short v{O + 4}, v{O + 5}, {srd(sWS)}, s{s_xb} offen sc1"], "kst")
    g.stamp()
    seen = {}
    for ks in range(32):
        j, kk = ks // 4, ks % 4
        fw = VFR + 12 * (ks % 2)
        mf = [mfma(ACC + (2 * b + s) * 16, vr(fw + 4 * b, 4), ar(xa(ks, s), 4), ks > 0) for b in range(2) for s in range(2)]
        mf.append(mfma(ACC + 64, vr(fw + 8, 4), ar(xa(ks, 0), 4), ks > 0))
        bar = None
        if kk == 3:
            bar = (f"F{j + 1}" if j < 7 else None, [(FR[j], FR[j] + FS)])
            if j < 7:
                gw_addr(j + 1)
        ex = []
        if ks < 2:
            ex = fin[9 * ks:9 * ks + 9]
        if ks == int(OPT['kvpub']):
            g.puts(g.poll_check(VPK, sDBG, "0", 0xf, 1, 16))
            ex = publish("kst", 1)
        rd = reads2(ks + 1) if ks < 31 else []
        for n in range(NSTAGE):
            if n not in seen and lq.issued(f"W{W2_ORDER[n]}"):
                seen[n] = ks
        old = g.staged < 2 * NSTAGE and ks - seen.get(g.staged // 2, 99) >= int(OPT["stage_age"])
        ex = [Event(lambda ks=ks, old=old: g.puts(stage_moves(g, 1, dead=8 * ks, force=old)))] + ex
        kstep(g, mf, rd, 0 if ks < 2 else 2, barrier=bar, extra=ex)
    g.stamp()
    print(g.kind, "staged in seg2:", g.staged, "queue left", len(lq.q))
    S(f"""s_lshl_b32 s{s_t0}, s{s_ch}, 1
s_add_u32 s{s_t0}, s{s_t0}, s{s_us}
s_lshl_b32 s{s_t0}, s{s_t0}, 11
s_add_u32 s{s_t0}, s{s_t0}, s{s_act}
s_lshl_b32 s{s_t1}, s{s_ch}, 10
s_add_u32 s{s_o0}, s{s_t0}, s{s_t1}
s_xor_b32 s{s_kb}, s{s_o0}, 1024
s_add_u32 s{s_t0}, s{s_us}, 4
s_lshl_b32 s{s_t0}, s{s_t0}, 11
s_add_u32 s{s_t0}, s{s_t0}, s{s_act}
s_add_u32 s{s_fb}, s{s_t0}, s{s_t1}""")
    main = []
    if light:
        S(f"""s_lshl_b32 s{s_t0}, s{s_tb}, 1
s_add_u32 s{s_t0}, s{s_t0}, s{s_th}
s_lshl_b32 s{s_t1}, s{s_t0}, 1
s_add_u32 s{s_t1}, s{s_t1}, s{s_ch}
s_lshl_b32 s{s_t1}, s{s_t1}, 7
s_add_u32 s{s_fb}, s{s_t1}, {GATE}
s_xor_b32 s{s_t1}, s{s_j}, s{s_th}
s_bitcmp1_b32 s{s_t1}, 0
s_cselect_b32 s{s_t1}, {OOB}, 0
v_mov_b32 v{VT}, {OOB}
v_lshl_add_u32 v{VT + 1}, v{VL}, 2, s{s_t1}
v_cmp_gt_u32 vcc, 32, v{VL}
v_cndmask_b32 v{VT + 2}, v{VT}, v{VT + 1}, vcc""")
        main += I([f"buffer_store_dword v{ACC + 64}, v{VT + 2}, {srd(sWS)}, s{s_fb} offen sc1"], "hst")
    blocks = [(ACC + (2 * b + s) * 16, s_o0 if s == 0 else s_kb, 2048 * b) for b in range(2) for s in range(2)]
    if not light:
        blocks.append((ACC + 64, s_fb, 0))
    for n, (acc, so, off) in enumerate(blocks):
        O = VFR + 16 + 4 * (n % 2)
        main += I(gelu_block(acc, VFR, VFR + 8, O))
        main += I([f"buffer_store_dwordx4 {vr(O, 4)}, v{VL16}, {srd(sWS)}, s{so} offen offset:{off} sc1"], "hst")
        main += g.fs()
        main.append(stage_event(g, 4))
    weave(g, main, 64)
    g.wait(lgkm0=True)
    g.loads(8)
    g.puts(g.fs() + publish("hst", 2) + g.fs())
    g.force("W10")
    g.puts(g.fs())
    g.puts(g.poll_issue(VPOLL, sWS, "s16"))
    g.puts(g.poll_check(VPOLL, sWS, "s16", 0xf))
    add_act(g, 0, 12)
    g.stamp()
    phase_b(g, [])
    return g


CODE_SZ = 20480


def build(path, **opt):
    OPT.update(opt)
    gens = [gen_kv(False), gen_kv(True), gen_q()]
    parts = {}
    for g in gens:
        if OPT["drop"]:
            d = OPT["drop"]
            keep = []
            for it in g.S.items:
                if isinstance(it, Wait):
                    if "vm" in d and it.vm_tag is not None:
                        it = Wait(None, it.lgkm0, False)
                    keep.append(it)
                    continue
                if "vm" in d and it.kind == "vmem" and f"v{VST}," not in it.text:
                    continue
                if ("vm" in d or "poll" in d) and "L_slow" in it.text:
                    it = Ins(it.text.split("\n")[1])
                if "st" in d.split(",") and it.kind == "vmem" and "store" in it.op and f"v{VST}," not in it.text:
                    it = Ins(f"buffer_load_dword v{VPD}, v{VFLAG}, {srd(sDBG)}, 0 offen", it.tag, True) if it.tag else None
                    if it is None:
                        continue
                if "plain" in d and it.kind == "vmem" and "store" in it.op and it.tag in ("hst", "ost"):
                    it = Ins(it.text.replace(" sc1", ""), it.tag)
                if "nt" in d.split(",") and it.kind == "vmem" and "store" in it.op and it.tag in ("hst", "ost"):
                    it = Ins(it.text.replace(" sc1", " sc1 nt"), it.tag)
                if "nopl" in d and it.tag in ("pl", "zl"):
                    it = Ins(it.text.replace(f"v{VL16},", f"v{VFLAG},"), it.tag)
                if "now2" in d and it.tag and it.tag[0] == "W" and it.kind == "vmem":
                    it = Ins("buffer_load_dwordx4 v%d, %s" % (VFLAG, it.text.split(",", 1)[1]), it.tag)
                if "mf" in d and it.kind == "mfma":
                    continue
                if "ds" in d and it.kind == "ds":
                    continue
                if "va" in d and (it.kind in ("trans", "perm") or it.op.startswith("v_pk_") or it.op.startswith("v_cvt_pk") or it.op.startswith("v_max")):
                    continue
                keep.append(it)
            g.S.items = keep
        t = finalize(g.S, g.kind)
        h, rest = t.split("L_m1:\n")
        blk, body = rest.split("L_m2:\n")
        parts[g.kind] = (h, blk, body + "\n" + "\n".join(g.slow) + "\n.p2align 6")
    assert parts["KH"][0] == parts["KL"][0] == parts["Q"][0] and parts["KH"][1] == parts["KL"][1]
    txt = [parts["Q"][0], parts["Q"][1], parts["KH"][1], parts["KH"][2], parts["KL"][2], parts["Q"][2]]
    hdr = open("gated_mix__linear_kernel_hedgehog__glu_gated_geglu__prompt.s.ref").read().split("; Override launch")[0]
    out = hdr + "; @launch grid=(256,1,1) block=(256,1,1) lds=163840\n"
    out += f""".amdgcn_target "amdgcn-amd-amdhsa--gfx950"
.text
.globl {KN}
.p2align 8
.type {KN},@function
{KN}:
"""
    out += "\n".join(txt)
    out += "\nL_end:\ns_endpgm\n"
    out += ".fill 8192, 4, 0xbf810000\n"
    out += f""".section .rodata,"a"
.p2align 6
.amdhsa_kernel {KN}
  .amdhsa_next_free_vgpr 512
  .amdhsa_next_free_sgpr 102
  .amdhsa_accum_offset 256
  .amdhsa_group_segment_fixed_size 0
  .amdhsa_kernarg_size 96
  .amdhsa_user_sgpr_count 2
  .amdhsa_user_sgpr_kernarg_segment_ptr 1
  .amdhsa_system_sgpr_workgroup_id_x 1
.end_amdhsa_kernel
"""
    open(path, "w").write(out)
    print("wrote", path, len(out), "bytes")


if __name__ == "__main__":
    kw = {}
    path = sys.argv[1] if len(sys.argv) > 1 else "k.s"
    for a in sys.argv[2:]:
        k, v = a.split("=")
        kw[k] = {"0": False, "1": True}.get(v, v)
    build(path, **kw)
```

```python
import sys
import struct
from ab import Stream, Ins, Wait, finalize, sched, cost_of

KN = "gated_mix__linear_kernel_hedgehog__glu_gated_geglu__prompt_kernel"
OPT = dict(stamps=False, fine=False, rot="tb", codepf=True, diag=None, drop=None, touch=True, mix=True, kc1=4, kc2=13, outfl="", pubk=0, zfull=False, w0=True, first=6, kvp=0, kvc=3, redearly=False, drole='', wsoff=0, qst='5', kst='x', hpub=700, qhp=600, kvpub=7, qev=52, stage_age=7, s1stop=26, kvdelay=80, kvev=80)

ACT = 0
KVP = 0x780000
ZP = 0x800000
GATE = 0x810000
FLG = 0x820000
STAMP = 0x840000
WS_SIZE = 0x860000
OOB = 0x7ff00000

sX, sQKV, sG, sU, sWO, sWD, sWS, sOUT, sPHI, sGW, sDBG = [28 + 4 * i for i in range(11)]
s_tb, s_j, s_w, s_th, s_ch, s_tt, s_ct, s_rot = range(72, 80)
s_xb, s_qb, s_fb, s_kb = 80, 81, 82, 83
s_o0, s_o1, s_o2 = 84, 85, 86
s_m4, s_m8, s_m6 = 87, 88, 89
s_t0, s_t1, s_t2, s_t3 = 90, 91, 92, 93
s_act, s_us, s_spin, s_pt = 94, 95, 96, 97
s_mk0, s_mk1 = 98, 100
s_pb = 4
s_stamp = 26


def srd(r):
    return f"s[{r}:{r + 3}]"


def vr(a, n=1):
    return f"v{a}" if n == 1 else f"v[{a}:{a + n - 1}]"


def ar(a, n=1):
    return f"a{a}" if n == 1 else f"a[{a}:{a + n - 1}]"


def f32(x):
    return "0x%08x" % struct.unpack("<I", struct.pack("<f", x))[0]


def mfma(d, a, b, c):
    return f"v_mfma_f32_32x32x16_bf16 {vr(d, 16)}, {a}, {b}, {vr(d, 16) if c else 0}"


class LDS:
    def __init__(self):
        self.busy = [None] * 160

    def free(self, lo, hi):
        return all(self.busy[k] is None for k in range(lo // 1024, (hi + 1023) // 1024))

    def claim(self, lo, hi, tag):
        assert self.free(lo, hi), (lo, hi, tag, self.busy)
        for k in range(lo // 1024, (hi + 1023) // 1024):
            self.busy[k] = tag

    def release(self, lo, hi):
        for k in range(lo // 1024, (hi + 1023) // 1024):
            assert self.busy[k] is not None
            self.busy[k] = None


class Event(Wait):
    def __init__(self, fn, rd=(), wr=()):
        super().__init__(rd=rd, wr=wr)
        self.fn = fn


class LoadQ:
    def __init__(self, lds):
        self.q = []
        self.lds = lds

    def add(self, pre, ins, tag, claim=None, cond=None):
        self.q.append((pre, ins, tag, claim, cond))

    def take(self, n=1):
        out = []
        while n > 0 and self.q:
            pre, ins, tag, claim, cond = self.q[0]
            if cond is not None and not cond():
                break
            if callable(claim):
                got = claim()
                if got is None:
                    break
                pre = got
            elif claim is not None:
                if not self.lds.free(*claim):
                    break
                self.lds.claim(claim[0], claim[1], tag)
            self.q.pop(0)
            out.append([Ins(p) for p in pre] + [Ins(ins, tag)])
            n -= 1
        return out

    def issued(self, tag):
        tags = tag if isinstance(tag, (list, tuple)) else [tag]
        return all(u[2] not in tags for u in self.q)


def scc_live(items):
    live, out = False, [False] * len(items)
    for k in range(len(items) - 1, -1, -1):
        out[k] = live
        i = items[k]
        if isinstance(i, Wait):
            continue
        if i.op.startswith("s_cselect") or i.op.startswith("s_cbranch_scc") or i.op.startswith("s_addc"):
            live = True
        elif i.kind == "salu" and not (i.op.startswith("s_mov") or i.op.startswith("s_mul")):
            live = False
    return out


def weave(g, main, every):
    acc = 0
    live = scc_live(main)
    for it, lv in zip(main, live):
        g.put(it)
        acc += cost_of(it)
        if acc >= every and not lv:
            if g.loads(1):
                acc = 0


DIAG_NAMES = {"Q": ["pro", "a0", "loop", "gelu", "o", "pub", "b0", "b1", "end"],
              "KH": ["pro", "a0", "seg1", "kv", "loop", "pub", "b0", "b1", "end"],
              "KL": ["pro", "a0", "seg1", "kv", "loop", "pub", "b0", "b1", "end"]}


class Gen:
    def __init__(self, kind):
        self.kind = kind
        self.S = Stream()
        self.slow = []
        self.lds = LDS()
        self.lq = LoadQ(self.lds)
        self.nstamp = 0
        self.npoll = 0
        self.w2addr = {}
        self.w2cand = []
        self.staged = 0
        self.pend_rel = []
        self.bdone = -1

    def vm_tags(self):
        return [i.tag for i in self.S.items if isinstance(i, Ins) and i.kind == "vmem" and i.count]

    def complete(self, tag):
        if not self.lq.issued(tag):
            return False
        n, last, done = 0, {}, -1
        for i in self.S.items:
            if isinstance(i, Wait):
                if i.vm_tag is not None:
                    tags = i.vm_tag if isinstance(i.vm_tag, (list, tuple)) else [i.vm_tag]
                    done = max(done, max(last[t] for t in tags))
            elif i.kind == "vmem" and i.count:
                last[i.tag] = n
                n += 1
        return tag in last and last[tag] <= done

    def loads(self, n):
        u = self.lq.take(n)
        for x in u:
            self.S.extend(x)
        return len(u)

    def force(self, tag):
        while not self.lq.issued(tag):
            assert self.loads(1), ("cannot issue", tag, self.lq.q[0], self.lds.busy)

    def put(self, it):
        if isinstance(it, Event):
            it.fn()
            return
        if isinstance(it, Wait):
            if it.vm_tag is not None:
                self.force(it.vm_tag)
            self.S.items.append(it)
            if it.lgkm0:
                for lo, hi in self.pend_rel:
                    self.lds.release(lo, hi)
                self.pend_rel = []
            return
        self.S.items.append(it)

    def wait(self, vm_tag=None, lgkm0=False):
        self.put(Wait(vm_tag, lgkm0))

    def stamp(self):
        if OPT["diag"]:
            a, b, mult, unit = OPT["diag"].split(":")
            ins = "s_memrealtime" if unit == "r" else "s_memtime"
            names = DIAG_NAMES[self.kind]
            nm = names[self.nstamp]
            self.nstamp += 1
            if nm == a:
                self.S(f"{ins} s[18:19]\ns_waitcnt lgkmcnt(0)")
            if nm == b:
                self.S(f"{ins} s[20:21]\ns_waitcnt lgkmcnt(0)")
        if OPT["stamps"]:
            S = self.S
            S(f"s_memtime s[{s_stamp}:{s_stamp + 1}]")
            S("s_waitcnt lgkmcnt(0)")
            S(f"v_writelane_b32 v{VST}, s{s_stamp}, {self.nstamp}")
            self.nstamp += 1

    def poll_issue(self, vaddr, srdr, soff):
        return [Ins(f"buffer_load_dword v{VPD}, v{vaddr}, {srd(srdr)}, {soff} offen sc1", "poll")]

    def poll_check(self, vaddr, srdr, soff, mask, stage=1, sleep=6, first=None):
        k = f"{self.kind}{self.npoll}"
        self.npoll += 1
        pre = f"s_waitcnt vmcnt(0)\n{first}\n" if first else ""
        self.slow.append(f"""L_slow_{k}:
{pre}s_mov_b32 s{s_spin}, 0
L_spin_{k}:
s_sleep {sleep}
buffer_load_dword v{VPD}, v{vaddr}, {srd(srdr)}, {soff} offen sc1
s_add_u32 s{s_spin}, s{s_spin}, 1
s_cmp_ge_u32 s{s_spin}, 0x4000
s_cbranch_scc1 L_back_{k}
s_waitcnt vmcnt(0)
v_cmp_le_u32 vcc, {stage}, v{VPD}
s_nop 1
s_andn2_b32 s{s_pt}, {mask}, vcc_lo
s_cbranch_scc1 L_spin_{k}
s_branch L_back_{k}""")
        br = Ins(f"s_cbranch_scc1 L_slow_{k}")
        br.text += f"\nL_back_{k}:"
        return [Wait("poll", wr=[("v", VPD)])] + I([f"v_cmp_le_u32 vcc, {stage}, v{VPD}", f"s_andn2_b32 s{s_pt}, {mask}, vcc_lo"]) + [br]

    def fs(self):
        return [Event(self.stamp)] if OPT["fine"] == "2" else []

    def puts(self, items):
        for i in items:
            self.put(i)


VL = 1
VX = 2
VQ = 6
VG = 10
VU = 13
VXA = 16
VWA = 20
VW2 = 32
VW2D = 36
VL16 = 38
VL16D = 39
VW2A = 40
VPB = 43
VPOLL = 44
VPD = 45
VFLAG = 46
VONE = 47
VC = 48
VID = 52
VONES = 60
VPHI = 64
VT = 68
VTWO = 77
VPK = 78
VST = 79
VFR = 80
ACC = 128

MISC = 144 * 1024
LOG2E = 1.4426950408889634
GC = 0.7978845608028654


XR = [0, 16384, 32768, 49152]
KWR = [65536, 81920, 98304, 114688]
QWR = [49152, 81920, 114688]


def head(g):
    S = g.S
    if OPT["stamps"]:
        S("s_memrealtime s[98:99]\ns_memtime s[94:95]")
    if OPT["diag"]:
        S(("s_memrealtime" if OPT["diag"].endswith("r") else "s_memtime") + " s[98:99]")
    S(f"""s_cmp_ge_u32 s2, 256
s_cbranch_scc1 L_end
s_load_dwordx16 s[4:19], s[0:1], 0
s_load_dwordx8 s[20:27], s[0:1], 64
v_lshrrev_b32 v{VT}, 6, v0
v_and_b32 v{VL}, 63, v0
s_and_b32 s{s_t0}, s2, 7
s_lshr_b32 s{s_t1}, s2, 3
v_readfirstlane_b32 s{s_w}, v{VT}
s_and_b32 s{s_tb}, s{s_t0}, 1
s_lshl_b32 s{s_tb}, s{s_tb}, 3
s_and_b32 s{s_ct}, s{s_t1}, 7
s_add_u32 s{s_tb}, s{s_tb}, s{s_ct}
s_lshr_b32 s{s_t2}, s{s_t1}, 3
s_and_b32 s{s_j}, s{s_t0}, 6
s_lshr_b32 s{s_t3}, s{s_t2}, 1
s_add_u32 s{s_j}, s{s_j}, s{s_t3}
s_lshl_b32 s{s_m4}, s{s_w}, 12""")
    code_prefetch(g)
    rot = OPT["rot"]
    if rot == "none":
        S(f"s_mov_b32 s{s_rot}, 0")
    elif rot == "full":
        S(f"s_lshl_b32 s{s_rot}, s{s_t2}, 1\ns_add_u32 s{s_rot}, s{s_rot}, s{s_ct}\ns_add_u32 s{s_rot}, s{s_rot}, s{s_t0}")
    elif rot in ("tb", "tbx"):
        S(f"""s_mul_i32 s{s_rot}, s{s_t3}, 3
s_add_u32 s{s_rot}, s{s_rot}, 1
s_bitcmp1_b32 s{s_t2}, 0
s_cselect_b32 s{s_rot}, s{s_rot}, 0
s_add_u32 s{s_rot}, s{s_rot}, s{s_ct}""")
        if rot == "tbx":
            S(f"s_add_u32 s{s_rot}, s{s_rot}, s{s_t0}")
    S(f"""s_lshl_b32 s{s_rot}, s{s_rot}, 7
s_lshl_b32 s{s_xb}, s{s_tb}, 7
v_lshrrev_b32 v{VT + 3}, 3, v{VL}
v_lshrrev_b32 v{VT + 2}, 4, v{VL}
v_xor_b32 v{VT + 1}, v{VT + 2}, v{VL}
v_and_b32 v{VT + 1}, 7, v{VT + 1}
v_lshl_add_u32 v{VT + 3}, v{VT}, 5, v{VT + 3}
v_add_lshl_u32 v{VT + 3}, v{VT + 3}, s{s_xb}, 10
v_lshl_add_u32 v{VX}, v{VT + 1}, 4, v{VT + 3}
v_xor_b32 v{VX + 1}, 64, v{VX}
v_add_u32 v{VX + 1}, 7168, v{VX + 1}
v_add_u32 v{VX + 2}, 14336, v{VX}
v_add_u32 v{VX + 3}, 14336, v{VX + 1}
s_lshl_b32 s{s_qb}, s{s_j}, 7
s_mov_b32 s{sX + 2}, {2048 * 1024}
s_mov_b32 s{sX + 3}, 0x20000
s_mov_b32 s{sQKV + 2}, {512 * 3072}
s_mov_b32 s{sQKV + 3}, 0x20000""")
    S(f"""v_bfe_u32 v{VT + 3}, v{VL}, 2, 2
v_lshl_add_u32 v{VT + 3}, v{VT}, 4, v{VT + 3}
v_mul_u32_u24 v{VT + 3}, 3, v{VT + 3}
v_lshrrev_b32 v{VT + 4}, 5, v{VL}
v_add3_u32 v{VT + 3}, v{VT + 3}, v{VT + 4}, 1
v_and_b32 v{VT + 4}, 1, v{VT + 2}
v_lshl_add_u32 v{VT + 3}, v{VT + 3}, 4, v{VT + 4}
v_and_b32 v{VT + 4}, 3, v{VL}
v_lshl_add_u32 v{VT + 3}, v{VT + 3}, 2, v{VT + 4}
v_lshl_add_u32 v{VQ}, v{VT + 3}, 4, s{s_qb}""")
    for i in range(1, 4):
        S(f"v_add_u32 v{VQ + i}, {i * (4 * 3072 - 1024)}, v{VQ}")
    add_x(g, 0, XR[0])
    u = g.lq.take(4)
    S.extend(u[0][:-1])
    S("s_waitcnt lgkmcnt(0)")
    S(f"s_mov_b64 s[{sX}:{sX + 1}], s[4:5]\ns_bitcmp1_b32 s{s_t2}, 0")
    S.extend(u[0][-1:] + u[1] + u[2] + u[3])
    S("s_cbranch_scc0 L_KV0\nL_m1:")
    if g.kind == "Q":
        add_x(g, 1, XR[1])
        add_x(g, 2, XR[2])
        g.loads(int(OPT["first"]))
        S("s_branch L_Q")
    else:
        S(f"L_KV0:\ns_mov_b64 s[{sQKV}:{sQKV + 1}], s[6:7]")
        add_kv(g, 0)
        add_x(g, 1, XR[1])
        g.loads(int(OPT["first"]))
        S(f"s_cmp_ge_u32 s{s_j}, 6\ns_cbranch_scc1 L_KL")
    S("L_m2:\n.p2align 3")
    if g.kind != "KH":
        S(f"L_{g.kind}:")
    if OPT["stamps"] or OPT["diag"]:
        S("s_mov_b32 s3, s98")
    if OPT["stamps"]:
        S(f"v_mov_b32 v{VST}, 0\nv_writelane_b32 v{VST}, s94, 0")
        S("s_memtime s[94:95]\ns_waitcnt lgkmcnt(0)")
        S(f"v_writelane_b32 v{VST}, s94, 1")
        g.nstamp = 2
    S(f"""s_and_b32 s{s_th}, s{s_w}, 1
s_lshr_b32 s{s_ch}, s{s_w}, 1
v_lshlrev_b32 v{VL16}, 4, v{VL}
s_and_b32 s{s_t0}, s2, 7
s_lshl_b32 s{s_tt}, s{s_t0}, 2""")
    if OPT["mix"]:
        S(f"s_and_b32 s{s_t0}, s{s_ct}, 1\ns_xor_b32 s{s_t0}, s{s_t0}, s{s_t2}\ns_add_u32 s{s_tt}, s{s_tt}, s{s_t0}")
    else:
        S(f"s_add_u32 s{s_tt}, s{s_tt}, s{s_t2}")


def add_kv(g, j):
    w = KWR[j % 4]
    add_rows(g, f"K{j}", VQ, 4, sQKV, 3072, s_o1, s_m4, w, (w, w + 16384))


def mk_srds(g, which):
    S = g.S
    tab = {sX: (4, 2048 * 1024), sQKV: (6, 512 * 3072), sPHI: (8, 32 * 512), sWO: (10, 512 * 1024), sG: (14, 512 * 2752),
           sU: (16, 512 * 2752), sWD: (18, 1376 * 1024), sGW: (20, 1024), sOUT: (22, 2048 * 1024), sDBG: (24, 256), sWS: (26, WS_SIZE)}
    for r in which:
        p, n = tab[r]
        if r == sWS and int(OPT["wsoff"]):
            S(f"s_add_u32 s{r}, s{p}, {int(OPT['wsoff']) << 20}\ns_addc_u32 s{r + 1}, s{p + 1}, 0\ns_mov_b32 s{r + 2}, {n}\ns_mov_b32 s{r + 3}, 0x20000")
            continue
        S(f"s_mov_b64 s[{r}:{r + 1}], s[{p}:{p + 1}]\ns_mov_b32 s{r + 2}, {n}\ns_mov_b32 s{r + 3}, 0x20000")


def quad_parts(g):
    g.S(f"""v_bfe_u32 v{VT}, v{VL}, 2, 2
v_and_b32 v{VT + 1}, 3, v{VL}
v_lshlrev_b32 v{VT + 1}, 4, v{VT + 1}
v_lshrrev_b32 v{VT + 2}, 4, v{VL}""")


def voff_n2(g, dst, n, stride, wave_rows, base=None):
    S = g.S
    S(f"""v_lshrrev_b32 v{VT + 3}, 5, v{VL}
v_lshl_add_u32 v{VT + 3}, v{VT + 3}, 2, v{VT}""")
    if wave_rows:
        S(f"s_lshl_b32 s{s_t0}, s{s_w}, 4\nv_add_u32 v{VT + 3}, s{s_t0}, v{VT + 3}")
    S(f"""v_mul_u32_u24 v{VT + 3}, {stride}, v{VT + 3}
v_and_b32 v{VT + 4}, 1, v{VT + 2}
v_lshl_add_u32 v{VT + 4}, v{VT + 4}, 6, v{VT + 1}
v_add3_u32 v{dst}, v{VT + 3}, v{VT + 4}, {"s%d" % base if base else 0}""")
    for i in range(1, n):
        S(f"v_add_u32 v{dst + i}, {i * (8 * stride - 1024)}, v{dst}")


def voff_ffn3(g):
    S = g.S
    S(f"""s_lshl_b32 s{s_t0}, s{s_w}, 4
v_add_u32 v{VT + 5}, s{s_t0}, v{VT}
v_mul_u32_u24 v{VT + 5}, 2752, v{VT + 5}
v_lshl_add_u32 v{VT + 6}, v{VT + 2}, 6, v{VT + 1}
s_movk_i32 s{s_t0}, 10816
v_add3_u32 v{VT + 5}, v{VT + 5}, v{VT + 6}, s{s_fb}""")
    for i in range(3):
        S(f"""v_add_u32 v{VT + 3}, {i + 1}, v{VT + 2}
v_lshrrev_b32 v{VT + 3}, 2, v{VT + 3}
v_mad_u32_u24 v{VG + i}, v{VT + 3}, s{s_t0}, v{VT + 5}""")
        if i:
            S(f"v_add_u32 v{VG + i}, {157 * 64 * i}, v{VG + i}")
        S(f"v_xor_b32 v{VU + i}, 32, v{VG + i}")


def unit_start(S, dst, jreg, isq, tmp):
    S(f"s_lshr_b32 s{dst}, {jreg}, 1\ns_mul_i32 s{dst}, s{dst}, 22\ns_and_b32 s{tmp}, {jreg}, 1")
    if isq:
        S(f"s_mul_i32 s{tmp}, s{tmp}, 6\ns_add_u32 s{dst}, s{dst}, s{tmp}\ns_cmp_ge_u32 {jreg}, 6\ns_cselect_b32 s{tmp}, 8, 10\ns_add_u32 s{dst}, s{dst}, s{tmp}")
    else:
        S(f"s_mul_i32 s{tmp}, s{tmp}, 5\ns_add_u32 s{dst}, s{dst}, s{tmp}\ns_cmp_eq_u32 {jreg}, 7\ns_cselect_b32 s{tmp}, 1, 0\ns_sub_u32 s{dst}, s{dst}, s{tmp}")


def kb_pre(j, reg):
    return [f"s_add_u32 s{reg}, s{s_rot}, {128 * j}", f"s_and_b32 s{reg}, s{reg}, 0x380"]


def dma(v, r, so, imm):
    return f"buffer_load_dwordx4 v{v}, {srd(r)}, s{so} offen" + (f" offset:{imm}" if imm else "") + " lds"


def add_x(g, j, base):
    for i in range(4):
        pre = []
        if i == 0:
            pre = [f"s_add_u32 m0, s{s_m4}, {base}"] + kb_pre(j, s_o0)
        g.lq.add(pre, dma(VX + i, sX, s_o0, 1024 * i), f"X{j}", (base, base + 16384) if i == 0 else None)


def add_rows(g, tag, v0, n, r, stride, so, mreg, mbase, claim, newkb=None, newso=True, kreg=s_o0):
    for i in range(n):
        pre = []
        if i == 0:
            if newkb is not None:
                pre += kb_pre(newkb, kreg)
            pre += [f"s_add_u32 m0, s{mreg}, {mbase}"]
            if newso:
                pre += [f"s_mul_i32 s{so}, s{kreg}, {stride // 2}"]
        g.lq.add(pre, dma(v0 + i, r, so, 1024 * i), tag, claim if i == 0 else None)


def misc_setup(g):
    S = g.S
    S(f"""v_bfe_u32 v{VT}, v{VL}, 2, 2
v_and_b32 v{VT + 1}, 3, v{VL}
v_lshlrev_b32 v{VT + 1}, 3, v{VT + 1}
v_lshl_add_u32 v{VPB}, v{VT}, 6, v{VT + 1}
v_lshrrev_b32 v{VT + 2}, 5, v{VL}
v_bfe_u32 v{VT + 3}, v{VL}, 4, 1
v_and_b32 v{VT + 4}, 31, v{VL}
v_bfe_u32 v{VT + 5}, v{VL}, 1, 3
v_xor_b32 v{VT + 5}, v{VT + 5}, v{VT + 2}
v_lshlrev_b32 v{VT + 5}, 4, v{VT + 5}
v_lshl_add_u32 v{VT + 5}, v{VT + 4}, 7, v{VT + 5}
s_lshl_b32 s{s_t0}, s{s_th}, 13
v_add_u32 v{VXA}, s{s_t0}, v{VT + 5}
v_xor_b32 v{VXA + 1}, 32, v{VXA}
v_xor_b32 v{VXA + 2}, 64, v{VXA}
v_xor_b32 v{VXA + 3}, 0x60, v{VXA}""")
    S(f"""v_lshl_add_u32 v{VT + 6}, v{VT + 3}, 5, v{VPB}
v_lshl_add_u32 v{VW2A}, v{VT + 2}, 9, v{VT + 6}
v_add_u32 v{VW2A}, s{s_m4}, v{VW2A}
v_add_u32 v{VW2A + 1}, 0x10000, v{VW2A}
v_add_u32 v{VW2A + 2}, 0x20000, v{VW2A}""")


def consts(g):
    S = g.S
    S(f"""v_mov_b32 v{VC}, {f32(-2 * LOG2E * GC * 0.044715)}
v_mov_b32 v{VC + 1}, {f32(-2 * LOG2E * GC)}
v_mov_b32 v{VC + 2}, {f32(LOG2E)}
v_mov_b32 v{VC + 3}, {f32(1e-6)}
v_mov_b32 v{VONE}, 1
v_mov_b32 v{VTWO}, 2
v_mov_b32 v{VT}, {OOB}
v_lshlrev_b32 v{VT + 1}, 2, v{VL}
s_mov_b64 s[18:19], 15
s_mov_b64 s[20:21], 1
v_cndmask_b32 v{VPK}, v{VT}, v{VT + 1}, s[18:19]
v_cndmask_b32 v{VFLAG}, v{VT}, v{VT + 1}, s[20:21]
s_mov_b32 s{s_mk0}, 0xffff0000
s_mov_b32 s{s_mk0 + 1}, 0xffff0000""")
    if g.kind == "Q":
        for i in range(4):
            S(f"v_mov_b32 v{VONES + i}, 0x3f803f80")
    S(f"""v_lshrrev_b32 v{VT}, 5, v{VL}
v_bfe_u32 v{VT + 1}, v{VL}, 1, 4
v_lshlrev_b32 v{VT}, 1, v{VT}
v_sub_u32 v{VT}, v{VT + 1}, v{VT}
v_and_b32 v{VT + 1}, 1, v{VL}
v_lshlrev_b32 v{VT + 1}, 4, v{VT + 1}
v_mov_b32 v{VT + 2}, 0x3f80
v_lshlrev_b32 v{VT + 2}, v{VT + 1}, v{VT + 2}""")
    for jj in range(2):
        for d in range(4):
            S(f"v_cmp_eq_u32 s[{18 + 2 * d}:{19 + 2 * d}], {8 * jj + 4 * (d >> 1) + (d & 1)}, v{VT}")
        for d in range(4):
            S(f"v_cndmask_b32 v{VID + 4 * jj + d}, 0, v{VT + 2}, s[{18 + 2 * d}:{19 + 2 * d}]")


def phi_load(g):
    S = g.S
    S(f"""s_lshl_b32 s{s_t0}, s{s_j}, 1
s_add_u32 s{s_t0}, s{s_t0}, s{s_ch}
s_lshl_b32 s{s_t0}, s{s_t0}, 10
s_lshr_b32 s{s_t1}, s{s_m4}, 2
s_add_u32 m0, s{s_t1}, {MISC}""")
    S(dma(VL16, sPHI, s_t0, 0), tag="phi")


def phi_read(g):
    return lines(f"""v_lshrrev_b32 v{VT}, 5, v{VL}
v_bfe_u32 v{VT + 1}, v{VL}, 2, 2
v_lshl_add_u32 v{VT}, v{VT}, 2, v{VT + 1}
v_lshlrev_b32 v{VT}, 5, v{VT}
v_and_b32 v{VT + 1}, 3, v{VL}
v_lshl_add_u32 v{VT}, v{VT + 1}, 3, v{VT}
v_bfe_u32 v{VT + 1}, v{VL}, 4, 1
v_lshl_add_u32 v{VT}, v{VT + 1}, 9, v{VT}
s_lshr_b32 s{s_t1}, s{s_m4}, 2
s_add_u32 s{s_t1}, s{s_t1}, {MISC}
v_add_u32 v{VT}, s{s_t1}, v{VT}""") + [Wait("phi")] + lines(f"ds_read_b64_tr_b16 {vr(VPHI, 2)}, v{VT}\nds_read_b64_tr_b16 {vr(VPHI + 2, 2)}, v{VT} offset:256")


def zero_flags(g):
    S = g.S
    S(f"""s_cmp_lg_u32 s{s_ct}, 0
s_cbranch_scc1 L_nz_{g.kind}
s_and_b32 s{s_t0}, s2, 1
s_lshr_b32 s{s_t1}, s2, 6
s_add_u32 s{s_t0}, s{s_t0}, s{s_t1}
s_lshl_b32 s{s_t0}, s{s_t0}, 2
s_add_u32 s{s_t0}, s{s_t0}, s{s_w}
s_lshl_b32 s{s_t0}, s{s_t0}, 13
s_add_u32 s{s_t0}, s{s_t0}, {FLG}
s_add_u32 s{s_t1}, s{s_t0}, 4096
v_mov_b32 v{VFR}, 0
v_mov_b32 v{VFR + 1}, 0
v_mov_b32 v{VFR + 2}, 0
v_mov_b32 v{VFR + 3}, 0""")
    if OPT["zfull"]:
        for i in range(8):
            S(f"buffer_store_dwordx4 {vr(VFR, 4)}, v{VL16}, {srd(sWS)}, s{(s_t0, s_t1)[i // 4]} offen offset:{1024 * (i % 4)} sc1", count=False)
    else:
        S(f"v_lshrrev_b32 v{VT}, 2, v{VL}\nv_lshlrev_b32 v{VT}, 6, v{VT}\nv_add_u32 v{VT}, v{VT}, v{VL16}")
        for i in range(4):
            S(f"buffer_store_dwordx4 {vr(VFR, 4)}, v{VT}, {srd(sWS)}, s{(s_t0, s_t1)[i // 2]} offen offset:{2048 * (i % 2)} sc1", count=False)
    S(f"L_nz_{g.kind}:")


def set_ready(g):
    S = g.S
    S(f"""s_or_b32 s{s_t0}, s{s_ct}, s{s_w}
s_cbranch_scc1 L_nr_{g.kind}
s_and_b32 s{s_t0}, s2, 1
s_lshr_b32 s{s_t1}, s2, 6
s_add_u32 s{s_t0}, s{s_t0}, s{s_t1}
s_lshl_b32 s{s_t0}, s{s_t0}, 2""")
    S(f"buffer_store_dword v{VONE}, v{VFLAG}, {srd(sDBG)}, s{s_t0} offen sc1", count=False)
    S(f"L_nr_{g.kind}:")


def code_prefetch(g):
    if not OPT["codepf"]:
        return
    lines_ = CODE_SZ // 128 // 32
    g.S(f"""s_getpc_b64 s[{s_mk1}:{s_mk1 + 1}]
L_pc:
s_lshl_b32 s{s_kb}, s{s_ct}, 2
s_add_u32 s{s_kb}, s{s_kb}, s{s_w}
s_mul_i32 s{s_kb}, s{s_kb}, {lines_ * 128}
s_cmp_ge_u32 s{s_j}, 6
s_cselect_b32 s{s_o0}, L_KL-L_pc, 0
s_bitcmp1_b32 s{s_t2}, 0
s_cselect_b32 s{s_o0}, L_Q-L_pc, s{s_o0}
s_add_u32 s{s_kb}, s{s_kb}, s{s_o0}
v_lshl_add_u32 v{VT + 1}, v{VL}, 7, s{s_kb}
s_mov_b64 exec, {(1 << lines_) - 1}
global_load_dword v{VPD}, v{VT + 1}, s[{s_mk1}:{s_mk1 + 1}]
s_mov_b64 exec, -1""")


def gelu_block(acc, T, Y, O):
    L = []
    P = range(4)
    p = lambda b, i: vr(b + 2 * i, 2)
    L += [f"v_pk_mul_f32 {p(T, i)}, {p(acc, i)}, {p(acc, i)}" for i in P]
    L += [f"v_pk_fma_f32 {p(T, i)}, {p(T, i)}, {vr(VC, 2)}, {vr(VC, 2)} op_sel:[0,0,1] op_sel_hi:[1,0,1]" for i in P]
    L += [f"v_pk_mul_f32 {p(T, i)}, {p(T, i)}, {p(acc, i)}" for i in P]
    for i in P:
        L += [f"v_exp_f32 v{T + 2 * i}, v{T + 2 * i}", f"v_exp_f32 v{T + 2 * i + 1}, v{T + 2 * i + 1}", f"v_pk_mul_f32 {p(Y, i)}, {p(acc, i)}, {p(acc + 8, i)}"]
    L += [f"v_pk_add_f32 {p(T, i)}, {p(T, i)}, 1.0 op_sel_hi:[1,0]" for i in P]
    L += [f"v_rcp_f32 v{T + i}, v{T + i}" for i in range(8)]
    L += [f"v_pk_mul_f32 {p(Y, i)}, {p(Y, i)}, {p(T, i)}" for i in P]
    L += [f"v_cvt_pk_bf16_f32 v{O + i}, v{Y + 2 * i}, v{Y + 2 * i + 1}" for i in P]
    return L


def softmax_inst(P, E, M, O):
    L = []
    p = lambda b, i: vr(b + 2 * i, 2)
    a, b = M, M + 1
    L += [f"v_max3_f32 v{a}, v{P}, v{P + 1}, v{P + 2}", f"v_max3_f32 v{b}, -v{P}, -v{P + 1}, -v{P + 2}",
          f"v_max3_f32 v{a}, v{a}, v{P + 3}, v{P + 4}", f"v_max3_f32 v{b}, v{b}, -v{P + 3}, -v{P + 4}",
          f"v_max3_f32 v{a}, v{a}, v{P + 5}, v{P + 6}", f"v_max3_f32 v{b}, v{b}, -v{P + 5}, -v{P + 6}",
          f"v_max_f32 v{a}, v{a}, v{P + 7}", f"v_max_f32 v{b}, v{b}, -v{P + 7}",
          f"v_permlane32_swap_b32 v{a}, v{b}",
          f"v_max_f32 v{a}, v{a}, v{b}",
          f"v_mul_f32 v{b}, -v{a}, v{VC + 2}",
          f"v_mul_f32 v{a}, -v{a}, v{VC + 2}",
          f"v_permlane32_swap_b32 v{a}, v{b}"]
    for i in range(4):
        L += [f"v_pk_fma_f32 {p(E, i)}, {p(P, i)}, {vr(VC + 2, 2)}, {vr(M, 2)} op_sel_hi:[1,0,0]"]
    for i in range(4):
        L += [f"v_pk_fma_f32 {p(E + 8, i)}, {p(P, i)}, {vr(VC + 2, 2)}, {vr(M, 2)} op_sel:[0,0,1] op_sel_hi:[1,0,1] neg_lo:[1,0,0] neg_hi:[1,0,0]"]
    L += [f"v_exp_f32 v{E + i}, v{E + i}" for i in range(16)]
    L += [f"v_pk_add_f32 {p(P, 0)}, {p(E, 0)}, {p(E, 1)}", f"v_pk_add_f32 {p(P, 1)}, {p(E, 2)}, {p(E, 3)}",
          f"v_pk_add_f32 {p(P, 2)}, {p(E + 8, 0)}, {p(E + 8, 1)}", f"v_pk_add_f32 {p(P, 3)}, {p(E + 8, 2)}, {p(E + 8, 3)}",
          f"v_pk_add_f32 {p(P, 0)}, {p(P, 0)}, {p(P, 1)}", f"v_pk_add_f32 {p(P, 2)}, {p(P, 2)}, {p(P, 3)}",
          f"v_add_f32 v{a}, v{P}, v{P + 1}", f"v_add_f32 v{b}, v{P + 4}, v{P + 5}",
          f"v_permlane32_swap_b32 v{a}, v{b}",
          f"v_add_f32 v{a}, v{a}, v{b}",
          f"v_rcp_f32 v{a}, v{a}",
          f"v_mov_b32 v{b}, v{a}",
          f"v_permlane32_swap_b32 v{a}, v{b}"]
    L += [f"v_pk_mul_f32 {p(E, i)}, {p(E, i)}, {vr(M, 2)} op_sel_hi:[1,0]" for i in range(4)]
    L += [f"v_pk_mul_f32 {p(E + 8, i)}, {p(E + 8, i)}, {vr(M, 2)} op_sel:[0,1] op_sel_hi:[1,1]" for i in range(4)]
    L += [f"v_cvt_pk_bf16_f32 v{O + i}, v{E + 2 * i}, v{E + 2 * i + 1}" for i in range(8)]
    return L


def zipl(*ls):
    out = []
    n = max(len(l) for l in ls)
    for i in range(n):
        for l in ls:
            if i < len(l):
                out.append(l[i])
    return out


def I(lines, tag=None):
    return [Ins(x, tag) if isinstance(x, str) else x for x in lines]


def gcost(i):
    if isinstance(i, Event):
        return 0
    if isinstance(i, Wait):
        return 4
    return {"ds": 8, "vmem": 16, "trans": 8, "perm": 8}.get(i.kind, 4)


def kstep(g, mf, reads, nload, barrier=None, wait0=True, extra=(), late_reads=None):
    S = g.S
    if wait0 or barrier is not None:
        g.wait(lgkm0=True)
    n = len(mf)
    fill = None
    for i, m in enumerate(mf):
        S(m)
        budget = 24
        if i == 0:
            if barrier is not None:
                tag, rel = barrier
                if tag is not None:
                    g.wait(vm_tag=tag)
                S("s_barrier")
                if OPT["fine"] is True:
                    g.stamp()
                for lo, hi in rel:
                    g.lds.release(lo, hi)
                budget = 16
            fill = I(reads)
            if late_reads is not None:
                fill += late_reads()
            for u in g.lq.take(nload):
                fill += u
            fill += list(extra)
        if i == n - 1:
            g.puts(fill)
            break
        left = sum(gcost(x) for x in fill)
        over = max(0, left - 24 * (n - i) + 4) // (n - i)
        budget += over
        while fill and gcost(fill[0]) <= budget + 3:
            budget -= gcost(fill[0])
            g.put(fill.pop(0))


W2GRP = {}


def pb_setup(g):
    S = g.S
    tab = lambda v: hex(sum(x << (8 * i) for i, x in enumerate(v)))
    S(f"""s_lshl_b32 s{s_t1}, s{s_w}, 3
s_or_b32 s{s_t1}, s{s_t1}, 0x80000
s_bfe_u32 s4, {tab([10, 16, 32, 38])}, s{s_t1}
s_bfe_u32 s5, {tab([54, 60, 74, 80])}, s{s_t1}
s_bfe_u32 s6, {tab([0, 5, 22, 27])}, s{s_t1}
s_bfe_u32 s7, {tab([44, 49, 66, 70])}, s{s_t1}""")
    S(f"s_mul_i32 s{s_t0}, s{s_tt}, 118\ns_lshl_b32 s{s_t2}, s{s_ct}, 7")
    for i in range(4):
        S(f"s_add_u32 s{8 + i}, s{4 + i}, s{s_t0}\ns_lshl_b32 s{8 + i}, s{8 + i}, 11\ns_lshl_b32 s{4 + i}, s{4 + i}, 14\ns_add_u32 s{4 + i}, s{4 + i}, s{s_t2}")
    S(f"""s_lshl_b32 s{s_t1}, s{s_w}, 2
s_add_u32 s12, s{s_t1}, s{s_t0}
s_add_u32 s12, s12, 86
s_lshl_b32 s12, s12, 11
s_lshl_b32 s13, s{s_w}, 16
s_add_u32 s13, s13, s{s_t2}
s_lshr_b32 s14, s{s_tt}, 1
s_lshl_b32 s14, s14, 2
s_and_b32 s{s_t0}, s{s_tt}, 1
s_add_u32 s14, s14, s{s_t0}
s_lshl_b32 s14, s14, 7
s_add_u32 s14, s14, {FLG}
s_add_u32 s16, s14, 0x10000
s_add_u32 s{s_t0}, s{s_t0}, 6
v_and_b32 v{VT}, 2, v{VL}
v_lshl_add_u32 v{VT}, v{VT}, 1, s{s_w}
v_mov_b32 v{VT + 1}, s{s_t0}
s_mov_b64 s[18:19], 15
s_mov_b64 s[20:21], 63
v_and_b32 v{VT + 2}, 1, v{VL}
v_lshlrev_b32 v{VT + 2}, 8, v{VT + 2}
v_cndmask_b32 v{VT}, v{VT + 1}, v{VT}, s[18:19]
v_lshl_add_u32 v{VT}, v{VT}, 13, v{VT + 2}
v_mov_b32 v{VT + 1}, {OOB}
v_cndmask_b32 v{VPOLL}, v{VT + 1}, v{VT}, s[20:21]""")
    quad_parts(g)
    voff_n2(g, VW2, 4, 1024, False)
    S(f"""s_cmp_ge_u32 s{s_w}, 2
s_cselect_b32 s{s_t0}, {OOB}, 0
v_add_u32 v{VW2D}, s{s_t0}, v{VW2 + 2}
v_add_u32 v{VW2D + 1}, s{s_t0}, v{VW2 + 3}
v_add_u32 v{VL16D}, s{s_t0}, v{VL16}""")


PB_K = [("QH", p, i) for p in range(2) for i in range(6)] + \
       [("KH", 0, 0), ("KH", 0, 1), ("KH", 0, 2), ("KH", 0, 3), ("KH", 0, 4), ("KH", 1, 4), ("KH", 1, 0), ("KH", 1, 1), ("KH", 1, 2), ("KH", 1, 3)] + \
       [("O", p, i) for p in range(2) for i in range(4)]
W2_ORDER = [11, 12, 13, 14, 0, 1] + list(range(2, 11))
NSTAGE = 6


def w2_src(k):
    part, p, i = PB_K[k]
    if part == "QH":
        return sWD, 4 + p, i * 16384
    if part == "KH":
        return sWD, 6 + p, i * 16384
    return sWO, 13, p * 262144 + i * 16384


def act_src(k):
    part, p, i = PB_K[k]
    if part == "QH":
        return 8 + p, i * 2048
    if part == "KH":
        return 10 + p, i * 2048
    return 12, p * 16 * 2048 + i * 2048


def add_w2(g, n):
    grp = W2_ORDER[n]
    k = 2 * grp
    r, sb, off = w2_src(k)
    tag = f"W{grp}"

    def claim():
        for a in g.w2cand():
            if g.lds.free(a, a + 16384):
                g.lds.claim(a, a + 16384, tag)
                g.w2addr[grp] = a
                return [f"s_add_u32 m0, s{s_m4}, {a}", f"s_add_u32 s{s_o1}, s{sb}, {off}"]
        return None
    g.lq.add(None, dma(VW2, r, s_o1, 0), tag, claim)
    g.lq.add([], dma(VW2 + 1, r, s_o1, 1024), tag)
    if PB_K[k + 1] == ("KH", 1, 4):
        r2, sb2, off2 = w2_src(k + 1)
        g.lq.add([f"s_add_u32 s{s_o1}, s{sb2}, {off2 - 16384}"], dma(VW2D, r2, s_o1, 2048), tag)
        g.lq.add([], dma(VW2D + 1, r2, s_o1, 3072), tag)
    else:
        g.lq.add([], dma(VW2 + 2, r, s_o1, 2048), tag)
        g.lq.add([], dma(VW2 + 3, r, s_o1, 3072), tag)


def w2_reads(g, k, dst):
    a = g.w2addr[k // 2] + (k % 2) * 2048
    base, off = VW2A + a // 65536, a % 65536
    return [f"ds_read_b64_tr_b16 {dst(4 * c + 2 * t)}, v{base} offset:{off + 256 * c + 1024 * t}" for c in range(2) for t in range(2)]


def stage_moves(g, nk, dead=256, force=False):
    L = []
    while nk > 0 and g.staged < 2 * NSTAGE:
        n, kk = g.staged // 2, g.staged % 2
        grp = W2_ORDER[n]
        if 8 * g.staged + 8 > dead:
            break
        if not g.complete(f"W{grp}"):
            if not force:
                break
            g.wait(vm_tag=f"W{grp}")
        b = 8 * g.staged
        L += I(w2_reads(g, 2 * grp + kk, lambda o: ar(b + o, 2)))
        if kk == 1:
            a = g.w2addr[grp]
            L.append(Event(lambda a=a: g.pend_rel.append((a, a + 16384))))
        g.staged += 1
        nk -= 1
    return L


def stage_event(g, nk):
    def fn():
        g.wait(lgkm0=True)
        g.puts(stage_moves(g, nk, force=True))
    return Event(fn)


def areg(k, sub):
    return 96 + 8 * (k % 20) + 4 * sub


def add_act(g, k0, k1, subs=None):
    def ld(k, sub, imm, pre):
        va = VL16D if PB_K[k] == ("KH", 1, 4) else VL16
        g.lq.add(pre, f"buffer_load_dwordx4 {ar(areg(k, sub), 4)}, v{va}, {srd(sWS)}, s{s_o2} offen" + (f" offset:{imm}" if imm else "") + " sc1",
                 f"act{k}_{sub}", cond=(lambda: g.bdone >= k - 20))
    k = k0
    while k < k1:
        sb, off = act_src(k)
        two = k + 1 < k1 and act_src(k + 1) == (sb, off + 2048)
        first = True
        for kk in range(2 if two else 1):
            for sub in (range(2) if subs is None else subs):
                ld(k + kk, sub, 2048 * kk + 1024 * sub, [f"s_add_u32 s{s_o2}, s{sb}, {off}"] if first else [])
                first = False
        k += 2 if two else 1


def phase_b(g, publish):
    S = g.S
    AB, AA = ACC, ACC + 64
    VGT = VT
    assert g.staged == 2 * NSTAGE
    staged = {W2_ORDER[n]: n for n in range(NSTAGE)}

    def frag(k, c):
        if k // 2 in staged:
            return ar(16 * staged[k // 2] + 8 * (k % 2) + 4 * c, 4)
        return vr(VFR + 8 * (k % 2) + 4 * c, 4)

    def reads(k):
        if k >= 22 or k // 2 in staged:
            return []
        fb = VFR + 8 * (k % 2)
        return w2_reads(g, k, lambda o: vr(fb + o, 2))

    kc1, kc2, pubk = int(OPT["kc1"]), int(OPT["kc2"]), int(OPT["pubk"])
    g.force("W10")
    g.loads(12)
    g.stamp()
    VRW, VRR, VOUT = VFR + 16, VFR + 20, VFR + 22
    setup = I(f"""v_and_b32 v{VT + 4}, 15, v{VL}
v_lshlrev_b32 v{VT + 4}, 8, v{VT + 4}
v_bfe_u32 v{VT + 5}, v{VL}, 4, 1
v_lshl_add_u32 v{VT + 4}, v{VT + 5}, 14, v{VT + 4}
v_lshrrev_b32 v{VT + 5}, 5, v{VL}
v_xor_b32 v{VT + 5}, v{VT + 5}, v{VL}
v_and_b32 v{VT + 5}, 7, v{VT + 5}
v_lshl_add_u32 v{VT + 4}, v{VT + 5}, 4, v{VT + 4}
v_add_u32 v{VRW}, s{s_m4}, v{VT + 4}
v_xor_b32 v{VRW + 1}, 32, v{VRW}
v_xor_b32 v{VRW + 2}, 64, v{VRW}
v_xor_b32 v{VRW + 3}, 0x60, v{VRW}
v_lshrrev_b32 v{VT + 4}, 3, v0
v_and_b32 v{VT + 5}, 7, v0
v_lshlrev_b32 v{VT + 6}, 10, v{VT + 4}
v_lshl_add_u32 v{VOUT}, v{VT + 5}, 4, v{VT + 6}
v_lshlrev_b32 v{VT + 5}, 1, v{VT + 5}
v_and_b32 v{VT + 6}, 7, v{VT + 4}
v_xor_b32 v{VT + 5}, v{VT + 5}, v{VT + 6}
v_and_b32 v{VT + 6}, 15, v{VT + 4}
v_lshlrev_b32 v{VT + 6}, 8, v{VT + 6}
v_lshl_add_u32 v{VT + 5}, v{VT + 5}, 4, v{VT + 6}
v_lshrrev_b32 v{VT + 4}, 4, v{VT + 4}
v_lshl_add_u32 v{VRR}, v{VT + 4}, 14, v{VT + 5}
v_xor_b32 v{VRR + 1}, 16, v{VRR}
v_and_b32 v{VT + 7}, 31, v{VL}
v_lshlrev_b32 v{VT + 7}, 2, v{VT + 7}
s_lshl_b32 s{s_t0}, s{s_tt}, 16
s_lshl_b32 s{s_t1}, s{s_ct}, 7
s_add_u32 s{s_t0}, s{s_t0}, s{s_t1}
s_add_u32 s{s_t1}, s{s_t0}, 32768
s_lshl_b32 s{s_t3}, s{s_tt}, 8
s_add_u32 s{s_t3}, s{s_t3}, {GATE}""".split("\n"))
    g.puts(setup)
    gate = I(f"""v_mul_f32 v{VGT}, -v{VGT}, v{VC + 2}
v_mul_f32 v{VGT + 1}, -v{VGT + 1}, v{VC + 2}
v_exp_f32 v{VGT}, v{VGT}
v_exp_f32 v{VGT + 1}, v{VGT + 1}
v_add_f32 v{VGT}, 1.0, v{VGT}
v_add_f32 v{VGT + 1}, 1.0, v{VGT + 1}
v_rcp_f32 v{VGT}, v{VGT}
v_rcp_f32 v{VGT + 1}, v{VGT + 1}
v_sub_f32 v{VGT + 2}, 1.0, v{VGT}
v_sub_f32 v{VGT + 3}, 1.0, v{VGT + 1}""".split("\n"))
    for k in range(22):
        if k == pubk:
            g.puts(publish)
        if k == max(kc1 - 4, pubk):
            g.puts(g.poll_issue(VPOLL, sWS, "s14"))
        if k == kc2 - 4:
            g.puts(g.poll_issue(VPOLL, sWS, "s16"))
        if k == kc1:
            g.puts(g.poll_check(VPOLL, sWS, "s14", 0x3f, 2))
            g.lq.add([], f"buffer_load_dword v{VGT}, v{VT + 7}, {srd(sWS)}, s{s_t3} offen sc1", "gate")
            g.lq.add([], f"buffer_load_dword v{VGT + 1}, v{VT + 7}, {srd(sWS)}, s{s_t3} offen offset:128 sc1", "gate")
            add_act(g, 12, 22)
        if k == kc2:
            g.puts(g.poll_check(VPOLL, sWS, "s16", 0xf, 2))
            add_act(g, 22, 30, [0])
            add_act(g, 22, 30, [1])
        if k in (1, 4, 5, 12, 14, 21):
            g.puts(g.fs())
        g.force(f"act{k}_1")
        mf = [mfma(AB + 32 * s + 16 * c, frag(k, c), ar(areg(k, s), 4), k > 0) for s in range(2) for c in range(2)]
        rd = reads(k + 1)
        if reads(k):
            g.wait(lgkm0=True)
        for i, m in enumerate(mf):
            S(m)
            if i == 0 and rd and (k + 1) % 2 == 0:
                g.wait(vm_tag=f"W{(k + 1) // 2}")
            if i < 2:
                for r in rd[2 * i:2 * i + 2]:
                    S(r)
                if not rd:
                    g.loads(1)
            else:
                if i == 3:
                    g.bdone = k
                g.loads(2 if i == 2 else 1)
                if k == 20:
                    g.puts(gate[5 * (i - 2):5 * (i - 1)])
    scale = [f"v_mul_f32 v{AB + 32 * s + i}, v{AB + 32 * s + i}, v{VGT + 2 + s}" for s in range(2) for i in range(32)]

    def comb(s):
        L = []
        for c in range(2):
            for q in range(4):
                b = 32 * s + 16 * c + 4 * q
                if s == 0:
                    u = [f"v_fmac_f32 v{AB + b + i}, v{AA + b + i}, v{VGT}" for i in range(4)]
                else:
                    u = [f"v_pk_fma_f32 {vr(AB + b + 2 * i, 2)}, {vr(AA + b + 2 * i, 2)}, {vr(VGT, 2)}, {vr(AB + b + 2 * i, 2)} op_sel:[0,1,0] op_sel_hi:[1,1,1]" for i in range(2)]
                L.append(u + [f"ds_write_b128 v{VRW + q}, {vr(AB + b, 4)} offset:{s * 32768 + c * 128}"])
        return L
    c0 = comb(0)
    for s in range(2):
        n = 0
        for k in range(22, 30):
            g.force(f"act{k}_{s}")
            for c in range(2):
                S(mfma(AA + 32 * s + 16 * c, frag(k, c), ar(areg(k, s), 4), k > 22))
                g.loads(1)
                if (s == 0 and n >= 2) or (s == 1 and n < 3):
                    for x in scale[:4]:
                        S(x)
                    scale = scale[4:]
                if s == 1 and n >= 3 and c0 and (n % 2 == 1 or n >= 12):
                    for x in c0.pop(0):
                        S(x)
                n += 1
    assert not g.lq.q and not scale and not c0
    g.stamp()
    R0, R1 = AA, AB

    def rds(h, R):
        return [f"ds_read_b128 {vr(R + 8 * wv + 4 * q, 4)}, v{VRR + q} offset:{wv * 4096 + h * 32768}" for wv in range(4) for q in range(2)]

    def fin(h, b):
        L = [f"v_pk_add_f32 {vr(b + 2 * i, 2)}, {vr(b + 2 * i, 2)}, {vr(b + 8 + 2 * i, 2)}" for i in range(4)]
        L += [f"v_pk_add_f32 {vr(b + 16 + 2 * i, 2)}, {vr(b + 16 + 2 * i, 2)}, {vr(b + 24 + 2 * i, 2)}" for i in range(4)]
        L += [f"v_pk_add_f32 {vr(b + 2 * i, 2)}, {vr(b + 2 * i, 2)}, {vr(b + 16 + 2 * i, 2)}" for i in range(4)]
        L += [f"v_cvt_pk_bf16_f32 v{b + 8 + i}, v{b + 2 * i}, v{b + 2 * i + 1}" for i in range(4)]
        L += [f"buffer_store_dwordx4 {vr(b + 8, 4)}, v{VOUT}, {srd(sOUT)}, s{s_t0 + h} offen {OPT['outfl']}".strip()]
        return L
    g.wait(lgkm0=True)
    S("s_barrier")
    for x in rds(0, R0):
        S(x)
    for u in comb(1):
        for x in u:
            S(x)
    for x in fin(0, R0):
        S(x)
    g.wait(lgkm0=True)
    S("s_barrier")
    for x in rds(1, R1) + fin(1, R1):
        S(x)
    finish(g)


def finish(g):
    S = g.S
    if OPT["diag"]:
        a, b, mult, unit = OPT["diag"].split(":")
        S.wait(vm0=True)
        g.stamp()
        if a == "entry":
            S("s_mov_b32 s18, s3")
        if b == "skew":
            S(f"""buffer_load_dword v{VPD}, v{VFLAG}, {srd(sDBG)}, 0 offen offset:64 sc1
s_waitcnt vmcnt(0)
v_readfirstlane_b32 s20, v{VPD}
s_nop 3
s_sub_u32 s21, s20, s18
s_abs_i32 s21, s21
s_add_u32 s20, s18, s21""")
        if OPT["drole"] and g.kind not in OPT["drole"].split(","):
            S("s_mov_b32 s20, s18")
        S(f"s_sub_u32 s22, s20, s18\ns_mul_i32 s22, s22, {mult}")
        if unit == "c":
            S("s_lshr_b32 s22, s22, 4")
        S(f"""s_min_u32 s22, s22, 20000
s_memrealtime s[24:25]
s_waitcnt lgkmcnt(0)
L_dg_{g.kind}:
s_memrealtime s[26:27]
s_waitcnt lgkmcnt(0)
s_sub_u32 s26, s26, s24
s_cmp_lt_u32 s26, s22
s_cbranch_scc1 L_dg_{g.kind}""")
    if OPT["stamps"]:
        S.wait(vm0=True)
        g.stamp()
        S(f"""s_memrealtime s[{s_stamp}:{s_stamp + 1}]
s_waitcnt lgkmcnt(0)
v_writelane_b32 v{VST}, s{s_stamp}, 30
v_writelane_b32 v{VST}, s3, 31
s_lshl_b32 s{s_t0}, s2, 2
s_add_u32 s{s_t0}, s{s_t0}, s{s_w}
s_lshl_b32 s{s_t0}, s{s_t0}, 7
s_add_u32 s{s_t0}, s{s_t0}, {STAMP}
v_lshlrev_b32 v{VT}, 2, v{VL}
s_mov_b64 exec, 0xffffffff
buffer_store_dword v{VST}, v{VT}, {srd(sWS)}, s{s_t0} offen""")
    S("s_endpgm")


def publish(tag, stage):
    return [Wait(tag), Ins(f"buffer_store_dword v{VONE if stage == 1 else VTWO}, v{VFLAG}, {srd(sWS)}, s17 offen sc1", "flag")]


def own_flag(g):
    g.S(f"""s_lshl_b32 s17, s{s_j}, 4
s_add_u32 s17, s17, s{s_tb}
s_lshl_b32 s17, s17, 2
s_add_u32 s17, s17, s{s_w}
s_lshl_b32 s17, s17, 7
s_add_u32 s17, s17, {FLG + (0x10000 if g.kind == "Q" else 0)}""")


def act_base(g):
    g.S(f"s_lshl_b32 s{s_act}, s{s_tb}, 1\ns_add_u32 s{s_act}, s{s_act}, s{s_th}\ns_mul_i32 s{s_act}, s{s_act}, {118 * 2048}")


def jct(g, dst):
    g.S(f"s_lshl_b32 s{dst}, s{s_j}, 1\ns_add_u32 s{dst}, s{dst}, s{s_ch}\ns_lshl_b32 s{dst}, s{dst}, 1\ns_add_u32 s{dst}, s{dst}, s{s_th}")


def ffn_common(g, n):
    g.S(f"""v_lshl_add_u32 v{VT + 8}, v{VT + 3}, 1, v{VT + 2}
v_mul_u32_u24 v{VT + 8}, {n * 512}, v{VT + 8}
v_add_u32 v{VT + 8}, v{VT + 8}, v{VT + 6}""")


def ffn_addr(g, dst, idx, base):
    g.S(f"""s_lshr_b32 s{s_t1}, s{idx}, 1
s_lshl_b32 s{s_t1}, s{s_t1}, 8
s_and_b32 s{s_t2}, s{idx}, 1
s_lshl_b32 s{s_t2}, s{s_t2}, 5""")
    if base:
        g.S(f"s_add_u32 s{s_t1}, s{s_t1}, {base}")
    g.S(f"v_xor_b32 v{dst}, s{s_t2}, v{VT + 8}\nv_add_u32 v{dst}, s{s_t1}, v{dst}")


def lines(txt):
    return I([x.strip() for x in txt.split("\n") if x.strip()])


def gen_q():
    g = Gen("Q")
    S, lq = g.S, g.lq
    head(g)
    WR = QWR
    unit_start(S, s_us, f"s{s_j}", True, s_t0)
    S(f"s_lshl_b32 s{s_fb}, s{s_us}, 5\ns_lshl_b32 s{s_m8}, s{s_w}, 13")
    quad_parts(g)
    voff_n2(g, VQ, 2, 3072, True, s_qb)
    voff_ffn3(g)
    mk_srds(g, [sG, sU])
    S(f"s_mov_b64 s[{sQKV}:{sQKV + 1}], s[6:7]")

    def add_w(j):
        w = WR[j % 3]
        add_rows(g, f"K{j}", VQ, 2, sQKV, 3072, s_o1, s_m8, w, (w, w + 32768), newkb=j if j < 3 else None)
        add_rows(g, f"K{j}", VG, 3, sG, 2752, s_o2, s_m8, w + 2048, None)
        add_rows(g, f"K{j}", VU, 3, sU, 2752, s_o2, s_m8, w + 5120, None, newso=False)
    for j in range(8):
        if j >= 3:
            add_x(g, j, XR[j % 3])
        add_w(j)
    g.force("K0")
    mk_srds(g, [sWS, sPHI, sDBG, sWO, sWD, sOUT])
    phi_load(g)
    misc_setup(g)
    S(f"""v_lshl_add_u32 v{VWA}, v{VT + 2}, 10, v{VT + 6}
s_lshl_b32 s{s_t0}, s{s_ch}, 8
s_add_u32 s{s_t0}, s{s_t0}, {WR[0]}
v_add_u32 v{VWA}, s{s_t0}, v{VWA}""")
    ffn_common(g, 3)
    S(f"s_mul_i32 s{s_t0}, s{s_ch}, 3")
    for b in range(3):
        if b:
            S(f"s_add_u32 s{s_t0}, s{s_t0}, 1")
        ffn_addr(g, VWA + 1 + b, s_t0, WR[0] + 2048)
    for b in range(4):
        S(f"v_add_u32 v{VWA + 4 + b}, 0x10000, v{VWA + b}")
    consts(g)
    pb_setup(g)
    act_base(g)
    own_flag(g)
    jct(g, s_t3)
    S(f"s_lshl_b32 s15, s{s_j}, 6\ns_add_u32 s15, s15, s{s_w}\ns_lshl_b32 s15, s15, 7\ns_add_u32 s15, s15, {FLG}")
    VA0, VA1, VA2, VA3 = VWA + 8, VWA + 9, VWA + 10, VWA + 11
    s_h0, s_h1, s_ob = s_m6, s_kb, s_fb
    S(f"""s_lshl_b32 s{s_xb}, s{s_t3}, 14
s_add_u32 s{s_xb}, s{s_xb}, {KVP}
s_lshl_b32 s{s_qb}, s{s_t3}, 11
s_add_u32 s{s_qb}, s{s_qb}, {ZP}
s_mul_i32 s{s_t0}, s{s_ch}, 3
s_add_u32 s{s_t0}, s{s_t0}, s{s_us}
s_lshl_b32 s{s_t0}, s{s_t0}, 11
s_add_u32 s{s_h0}, s{s_t0}, s{s_act}
s_add_u32 s{s_h1}, s{s_h0}, 4096
s_lshr_b32 s{s_t0}, s{s_m4}, 1
s_add_u32 s{s_t0}, s{s_t0}, {MISC + 4096}
v_add_u32 v{VA0}, s{s_t0}, v{VL16}
v_lshrrev_b32 v{VA1}, 5, v{VL}
v_lshlrev_b32 v{VA1}, 10, v{VA1}
v_bfe_u32 v{VA2}, v{VL}, 2, 2
v_lshl_add_u32 v{VA1}, v{VA2}, 7, v{VA1}
v_bfe_u32 v{VA2}, v{VL}, 4, 1
v_lshl_add_u32 v{VA1}, v{VA2}, 5, v{VA1}
v_and_b32 v{VA2}, 3, v{VL}
v_lshl_add_u32 v{VA1}, v{VA2}, 3, v{VA1}
v_add_u32 v{VA1}, s{s_t0}, v{VA1}
s_lshr_b32 s{s_t1}, s{s_m4}, 2
s_add_u32 s{s_t1}, s{s_t1}, {MISC + 12288}
v_add_u32 v{VA3}, s{s_t1}, v{VL16}
v_and_b32 v{VA2}, 0xfffffbff, v{VA3}
s_lshl_b32 s{s_t2}, s{s_j}, 1
s_add_u32 s{s_t2}, s{s_t2}, s{s_ch}
s_lshl_b32 s{s_t2}, s{s_t2}, 12
s_add_u32 s{s_t2}, s{s_t2}, {86 * 2048}
s_add_u32 s{s_ob}, s{s_t2}, s{s_act}""")
    g.loads(8)
    g.stamp()
    g.wait(vm_tag="K0")
    S("s_barrier")
    g.stamp()

    def reads(ks):
        j, kk = ks // 4, ks % 4
        buf = ks % 2
        fx, fw = VFR + 8 * buf, VFR + 16 + 16 * buf
        o = WR[j % 3] - WR[0] + kk * 8192
        st = 4 if o >= 65536 else 0
        o %= 65536
        xr = [f"ds_read_b128 {vr(fx + 4 * s, 4)}, v{VXA + kk} offset:{XR[j % 3] + 4096 * s}" for s in range(2)]
        wr = [[f"ds_read_b64_tr_b16 {vr(fw + 4 * b + 2 * t, 2)}, v{VWA + st + b} offset:{o + t * (512 if b == 0 else 768)}" for t in range(2)] for b in range(4)]
        return [xr[0], xr[1]] + wr[0] + wr[1] + wr[2] + wr[3]

    for r in reads(0):
        S(r)
    g.w2cand = lambda: [16384 * i for i in range(9)]
    for n in range(15):
        add_w2(g, n)
    PA = 192
    ZR = VFR + 40
    for ks in range(32):
        j, kk = ks // 4, ks % 4
        buf = ks % 2
        fx, fw = VFR + 8 * buf, VFR + 16 + 16 * buf
        mf = [mfma(ACC + (2 * b + s) * 16, vr(fw + 4 * b, 4), vr(fx + 4 * s, 4), ks > 0) for b in range(4) for s in range(2)]
        bar = None
        if kk == 3:
            bar = ([f"X{j + 1}", f"K{j + 1}"] if j < 7 else None, [(XR[j % 3], XR[j % 3] + 16384), (WR[j % 3], WR[j % 3] + 32768)])
        ex = []
        if ks == 10:
            ex = g.poll_issue(VPK, sDBG, "0")
        if ks == 18:
            ex = g.poll_check(VPK, sDBG, "0", 0xf, 1, 16) + lines(f"""v_lshlrev_b32 v{VPK}, 9, v{VL}
v_cmp_gt_u32 vcc, 16, v{VL}
v_cndmask_b32 v{VPK}, v{VPOLL}, v{VPK}, vcc""")
        if ks == 18:
            g.puts(ex)
            ex = []
        if ks in (4, 5, 6):
            ex = phi_read(g)[5 * (ks - 4):5 * (ks - 3)]
        if ks == 32 + int(OPT["kvp"]):
            ex = g.poll_issue(VPK, sWS, "s15")
        nmv = {29: 1, 30: 1, 31: 4}.get(ks, 0)
        kstep(g, mf, reads(ks + 1) if ks < 31 else [], 3, barrier=bar, extra=ex, late_reads=lambda: stage_moves(g, nmv, force=True))
    g.stamp()
    def add_partials():
        rest = lq.q
        k = 0
        while k < len(rest) and rest[k][0] is not None:
            k += 1
        lq.q = rest[:k]
        for i in range(2):
            lq.add([], f"buffer_load_dwordx4 {vr(ZR + 4 * i, 4)}, v{VL16}, {srd(sWS)}, s{s_qb} offen offset:{1024 * i} sc1", "zl")
        for t in range(16):
            pre = [f"s_add_u32 s{s_xb}, s{s_xb}, 4096"] if (t % 4 == 0 and t) else []
            lq.add(pre, f"buffer_load_dwordx4 {ar(PA + 4 * t, 4)}, v{VL16}, {srd(sWS)}, s{s_xb} offen offset:{1024 * (t % 4)} sc1", "pl")
        lq.q += rest[k:]
    kvp, kvc = int(OPT["kvp"]), int(OPT["kvc"])
    QB = VFR + 24
    PQ = ACC + 32
    main, pend = [], []
    for b in range(3):
        for s in range(2):
            n = 2 * b + s
            O = ACC + (2 * (b + 1) + s) * 16
            main += I(gelu_block(O, VFR, VFR + 8, O))
            if n == kvp:
                main += g.poll_issue(VPK, sWS, "s15")
            so, off = (s_h0, n * 1024) if n < 4 else (s_h1, (n - 4) * 1024)
            pend += I([f"buffer_store_dwordx4 {vr(O, 4)}, v{VL16}, {srd(sWS)}, s{so} offen offset:{off} sc1"], "hst")
            if str(n) in OPT["qst"]:
                main.append(Event(lambda p=pend: g.puts(p)))
                pend = []
            if n == 0:
                main.append(Wait(lgkm0=True))
            main += g.fs()
            if n == kvc:
                main += g.poll_check(VPK, sWS, "s15", 0xffff) + [Event(add_partials)] + g.fs()
    weave(g, main, int(OPT['qev']))
    g.stamp()
    E0, E1 = ACC + 96, ACC + 112
    PH = ACC
    M0, M1 = VT, VT + 2
    PS, ZA = VFR, VFR + 16
    KA = VFR + 32
    sm = [zipl(softmax_inst(PQ + 16 * (2 * s), E0, M0, PH + 16 * s), softmax_inst(PQ + 16 * (2 * s + 1) + 8, E1, M1, PH + 16 * s + 8)) for s in range(2)]
    ZF = VQ
    PX = PS
    ND = [[PQ, PQ + 16], [VFR + 16, E0]]
    sm0, sm1 = I(sm[0]), I(sm[1])
    r = stage_moves(g, 6, force=True) + [Wait(lgkm0=True)]
    for s2 in range(2):
        for h in range(2):
            r += I([f"v_cvt_pk_bf16_f32 v{QB + 8 * s2 + 4 * h + i}, v{ACC + 16 * s2 + 8 * h + 2 * i}, v{ACC + 16 * s2 + 8 * h + 2 * i + 1}" for i in range(4)])
            r += I([mfma(PQ + 16 * (2 * s2 + h), vr(VPHI, 4), vr(QB + 8 * s2 + 4 * h, 4), False)])
    red = [Wait("pl", wr=[("a", PA + i) for i in range(64)] + [("v", ZR + i) for i in range(8)])] + g.fs()
    red += lines(f"ds_write_b128 v{VA0}, {vr(ZR, 4)}\nds_write_b128 v{VA0}, {vr(ZR + 4, 4)} offset:1024")
    red += [Wait(lgkm0=True)]
    red += I([f"ds_read_b64_tr_b16 {vr(ZF + 4 * h + 2 * t, 2)}, v{VA1} offset:{64 * h + 512 * t}" for h in range(2) for t in range(2)])
    red += I([mfma(PS, vr(VID, 4), ar(PA + 4 * t, 4), t > 0) for t in range(16)])
    for h in range(2):
        red += I([mfma(ZA, vr(ZF + 4 * h, 4), vr(VONES, 4), False)])
        red += I([f"v_cvt_pk_bf16_f32 v{KA + 8 * h + i}, v{ZA + 2 * i}, v{ZA + 2 * i + 1}" for i in range(8)])
    red += I([f"v_cvt_pk_bf16_f32 v{PS + 8 + i}, v{PS + 2 * i}, v{PS + 2 * i + 1}" for i in range(4)])
    red += I([f"ds_write_b128 v{VA3}, {vr(PS + 8, 4)}"])
    early = OPT["redearly"]
    r += (red if early else []) + sm0
    r, t1 = sched(r, tries=200)
    acc_, cut = 0, len(r)
    for k_, it in enumerate(r):
        acc_ += cost_of(it)
        if acc_ >= int(OPT["hpub"]):
            cut = k_
            break
    r = r[:cut] + g.fs() + publish("hst", 1) + g.fs() + r[cut:]
    weave(g, r, int(OPT["qev"]))
    g.puts(g.fs())
    r = [] if early else red
    r += [Wait(lgkm0=True)] + lines(f"s_barrier\nds_read_b128 {vr(PX, 4)}, v{VA2}\nds_read_b128 {vr(PX + 4, 4)}, v{VA2} offset:1024")
    r += I([f"v_cndmask_b32 v{KA + i}, v{PX + i}, v{KA + i}, s[{s_mk0}:{s_mk0 + 1}]" for i in range(8)])
    r += I([f"v_cndmask_b32 v{KA + 8 + i}, v{KA + 8 + i}, v{PX + i}, s[{s_mk0}:{s_mk0 + 1}]" for i in range(8)])

    def out(s):
        L = []
        for h in range(2):
            for jj in range(2):
                L += I([mfma(ND[s][h], vr(KA + 8 * h + 4 * jj, 4), vr(PH + 16 * s + 8 * h + 4 * jj, 4), jj > 0)])
        for h in range(2):
            d = ND[s][h]
            num, den = (d, d + 8) if h == 0 else (d + 8, d)
            O = den + 4
            L += I([f"v_add_f32 v{den}, v{den}, v{VC + 3}", f"v_rcp_f32 v{den}, v{den}"])
            if s == 0:
                L += I([f"v_mul_f32 v{num + i}, v{num + i}, v{den}" for i in range(8)])
            else:
                L += I([f"v_pk_mul_f32 {vr(num + 2 * i, 2)}, {vr(num + 2 * i, 2)}, {vr(den, 2)} op_sel_hi:[1,0]" for i in range(4)])
            L += I([f"v_cvt_pk_bf16_f32 v{O + i}, v{num + 2 * i}, v{num + 2 * i + 1}" for i in range(4)])
            L += I([f"buffer_store_dwordx4 {vr(O, 4)}, v{VL16}, {srd(sWS)}, s{s_ob} offen offset:{2048 * h + 1024 * s} sc1"], "ost")
        return L
    o0, o1 = out(0), out(1)
    st = [x for x in o0 + o1 if x.kind == "vmem"]
    r += sm1 + [x for x in o0 + o1 if x.kind != "vmem"]
    r, t2 = sched(r, tries=200)
    print("Q sched est", t1, t2)
    acc_, cut = 0, 0
    for k_ in range(len(r) - 1, -1, -1):
        acc_ += cost_of(r[k_])
        if acc_ >= int(OPT["qhp"]):
            cut = k_
            break
    r = r[:cut] + g.poll_issue(VPOLL, sWS, "s16") + r[cut:] + st
    weave(g, r, int(OPT["qev"]))
    g.stamp()
    pub = publish("ost", 2)
    g.puts(g.poll_check(VPOLL, sWS, "s16", 0xf, first=pub[1].text))
    add_act(g, 0, 12)
    g.stamp()
    phase_b(g, pub)
    return g


def gen_kv(light):
    g = Gen("KL" if light else "KH")
    S, lq = g.S, g.lq
    head(g)
    NCH = 2 if light else 3
    FS = NCH * 8192
    WR = KWR
    mk_srds(g, [sWS, sG, sU, sPHI, sDBG, sWO, sWD, sOUT, sGW])
    if light:
        zero_flags(g)
    add_kv(g, 1)
    for j in range(2, 8):
        add_x(g, j, XR[j % 4])
        add_kv(g, j)
    unit_start(S, s_us, f"s{s_j}", False, s_t0)
    S(f"s_lshr_b32 s{s_fb}, s{s_us}, 1\ns_lshl_b32 s{s_fb}, s{s_fb}, 6\ns_mul_i32 s{s_m6}, s{s_w}, {NCH * 2048}")
    quad_parts(g)
    if light:
        voff_n2(g, VG, 2, 2752, True, s_fb)
        S(f"v_xor_b32 v{VU}, 32, v{VG}\nv_xor_b32 v{VU + 1}, 32, v{VG + 1}")
    else:
        voff_ffn3(g)
    misc_setup(g)
    VXB = VFR + 44
    S(f"s_lshl_b32 s{s_t0}, s{s_ch}, 12")
    for i in range(4):
        S(f"v_add_u32 v{VXA + i}, s{s_t0}, v{VXA + i}\nv_xor_b32 v{VXB + i}, 0x1000, v{VXA + i}")
    VKA = VWA + 9
    S(f"""v_lshl_add_u32 v{VKA}, v{VT + 2}, 11, v{VT + 6}
s_lshl_b32 s{s_t0}, s{s_ch}, 8
s_add_u32 s{s_t0}, s{s_t0}, {WR[0]}
v_add_u32 v{VKA}, s{s_t0}, v{VKA}""")
    ffn_common(g, NCH)
    S(f"s_and_b32 s{s_t3}, s{s_us}, 1\ns_lshl_b32 s{s_t0}, s{s_ch}, 1\ns_add_u32 s{s_t0}, s{s_t0}, s{s_t3}")
    for b in range(2 if light else 3):
        if b == 1:
            S(f"s_add_u32 s{s_t0}, s{s_t0}, 1")
        if b == 2:
            S(f"s_add_u32 s{s_t0}, s{s_t3}, 4")
        ffn_addr(g, VWA + b, s_t0, 0)
        S(f"v_add_u32 v{VWA + 3 + b}, 0x10000, v{VWA + b}")
        if light:
            S(f"v_add_u32 v{VWA + 6 + b}, 0x20000, v{VWA + b}")
    if light:
        S(f"v_lshlrev_b32 v{VWA + 10}, 4, v{VT + 2}")
    consts(g)
    pb_setup(g)
    act_base(g)
    own_flag(g)
    VTW = VFR + 40
    if OPT["touch"]:
        S(f"""s_and_b32 s{s_t0}, s2, 63
s_lshr_b32 s{s_t1}, s2, 7
s_lshl_b32 s{s_t1}, s{s_t1}, 6
s_add_u32 s{s_t0}, s{s_t0}, s{s_t1}
s_lshl_b32 s{s_t0}, s{s_t0}, 2
s_add_u32 s{s_t0}, s{s_t0}, s{s_w}
s_mul_i32 s{s_t1}, s{s_t0}, {22 * 128}
s_lshl_b32 s{s_t0}, s{s_t0}, 10
v_mov_b32 v{VT}, {OOB}
v_lshl_add_u32 v{VT + 1}, v{VL}, 7, s{s_t1}
s_mov_b64 s[18:19], 0x3fffff
s_mov_b64 s[20:21], 0xff
v_lshl_add_u32 v{VT + 2}, v{VL}, 7, s{s_t0}
v_cndmask_b32 v{VTW}, v{VT}, v{VT + 1}, s[18:19]
v_cndmask_b32 v{VTW + 1}, v{VT}, v{VT + 2}, s[20:21]""")
        lq.add([], f"buffer_load_dword v{VTW + 2}, v{VTW + 1}, {srd(sWO)}, 0 offen", "touch")
        lq.add([], f"buffer_load_dword v{VTW + 3}, v{VTW}, {srd(sWD)}, 0 offen", "touch")
    if OPT["diag"] and "skew" in OPT["diag"] and not light:
        S(f"s_or_b32 s{s_t0}, s2, s{s_w}\ns_cbranch_scc1 L_nsk\nv_mov_b32 v{VT}, s3")
        S(f"buffer_store_dword v{VT}, v{VFLAG}, {srd(sDBG)}, 0 offen offset:64 sc1", count=False)
        S("L_nsk:")
    g.stamp()
    g.force("X1")
    phi_load(g)
    if light:
        S(f"s_lshr_b32 s{s_t1}, s{s_m4}, 2\ns_add_u32 m0, s{s_t1}, {MISC + 12288}\ns_mov_b32 s{s_t0}, 0")
        S(dma(VL16, sGW, s_t0, 0), tag="gw")
        S(f"s_add_u32 s15, s{s_t1}, {MISC + 12288}\nv_add_u32 v{VWA + 10}, s15, v{VWA + 10}")
    g.loads(4)
    g.wait(vm_tag=["X0", "K0"])
    S("s_barrier")
    g.stamp()

    xa = lambda ks, s: 8 * ks + 4 * s

    def reads1(ks):
        j, kk = ks // 4, ks % 4
        fw = VFR + 8 * (ks % 2)
        o = WR[j % 4] - WR[0] + kk * 4096
        xr = [f"ds_read_b128 {ar(xa(ks, s), 4)}, v{(VXA, VXB)[s] + kk} offset:{XR[j % 4]}" for s in range(2)]
        wr = [[f"ds_read_b64_tr_b16 {vr(fw + 4 * b + 2 * t, 2)}, v{VKA} offset:{o + 512 * b + 1024 * t}" for t in range(2)] for b in range(2)]
        return wr[0] + [xr[0], xr[1]] + wr[1]

    K = 1024
    if light:
        FR = [128 * K, 0, 64 * K, 16 * K, 80 * K, 32 * K, 96 * K, 48 * K]
        order = [("F", j) for j in range(8)] + [("W", i) for i in range(15)]
        g.w2cand = lambda: [16 * K * i for i in range(9)]
    else:
        FR = [0, 64 * K, 24 * K, 88 * K] * 2
        order = [("W", 0), ("F", 0), ("F", 1), ("F", 2), ("F", 3), ("W", 1), ("W", 2), ("F", 4), ("W", 3), ("F", 5), ("F", 6), ("F", 7)] + [("W", i) for i in range(4, 15)]
        g.w2cand = lambda: [128 * K, 48 * K, 112 * K] + ([16 * K * i for i in range(9)] if lq.issued("F7") else [])
    for what, j in order:
        if what == "W":
            add_w2(g, j)
            continue
        f = FR[j]
        add_rows(g, f"F{j}", VG, NCH, sG, 2752, s_o2, s_m6, f, (f, f + FS), newkb=j, kreg=s_kb)
        add_rows(g, f"F{j}", VU, NCH, sU, 2752, s_o2, s_m6, f + NCH * 1024, None, newso=False)
    for r in reads1(0):
        S(r)
    KA_, VA_ = ACC, ACC + 32
    XCH = MISC + 4096
    VA0, VA1, VA2, VA3 = VX, VX + 1, VX + 2, VX + 3
    late = phi_read(g) + lines(f"""s_lshl_b32 s{s_t3}, s{s_j}, 2
s_add_u32 s{s_t3}, s{s_t3}, s{s_w}
s_lshl_b32 s{s_o0}, s{s_t3}, 4
s_add_u32 s{s_o0}, s{s_o0}, s{s_tb}
s_lshl_b32 s{s_xb}, s{s_o0}, 7
s_add_u32 s{s_xb}, s{s_xb}, {ZP}
s_lshl_b32 s{s_o0}, s{s_o0}, 10
s_add_u32 s{s_o0}, s{s_o0}, {KVP}
s_sub_u32 s{s_mk1}, 0, s{s_th}
s_mov_b32 s{s_mk1 + 1}, s{s_mk1}
s_lshr_b32 s{s_t0}, s{s_m4}, 1
s_add_u32 s{s_t0}, s{s_t0}, {XCH}
v_add_u32 v{VA0}, s{s_t0}, v{VL16}
v_xor_b32 v{VA1}, 0x800, v{VA0}
s_lshl_b32 s{s_t1}, s{s_w}, 8
s_add_u32 s{s_t1}, s{s_t1}, {MISC}
v_lshl_add_u32 v{VA2}, v{VL}, 2, s{s_t1}
v_xor_b32 v{VA3}, 0x100, v{VA2}""")
    for ks in range(32):
        j, kk = ks // 4, ks % 4
        fw = VFR + 8 * (ks % 2)
        mf = [mfma(KA_ + 16 * s, vr(fw, 4), ar(xa(ks, s), 4), ks > 0) for s in range(2)] + \
             [mfma(VA_ + 16 * s, ar(xa(ks, s), 4), vr(fw + 4, 4), ks > 0) for s in range(2)]
        bar = None
        if kk == 3:
            bar = ([f"X{j + 1}", f"K{j + 1}"] if j < 7 else None, [(XR[j % 4], XR[j % 4] + 16384), (WR[j % 4], WR[j % 4] + 16384)])
        nl = 4 if ks < 4 else 0 if ks >= int(OPT['s1stop']) else 2
        if ks == 4 and light:
            set_ready(g)
        ex = []
        if ks >= 26:
            assert lq.issued("K7")
            ex, late = late[:6], late[6:]
        kstep(g, mf, reads1(ks + 1) if ks < 31 else [], nl, barrier=bar, wait0=OPT['w0'], extra=ex)
    assert not late
    g.stamp()
    KB = VFR
    VB = VFR + 16
    PH = VFR + 32
    PK = ACC + 64
    E0, E1 = ACC, ACC + 16
    TR0, TR1 = ACC + 32, ACC + 48
    M0, M1 = VT, VT + 2
    main = []
    for s in range(2):
        for h in range(2):
            for i in range(4):
                main.append(f"v_cvt_pk_bf16_f32 v{KB + 8 * s + 4 * h + i}, v{KA_ + 16 * s + 8 * h + 2 * i}, v{KA_ + 16 * s + 8 * h + 2 * i + 1}")
            main.append(mfma(PK + 16 * (2 * s + h), vr(VPHI, 4), vr(KB + 8 * s + 4 * h, 4), False))
    for s in range(2):
        for i in range(8):
            main.append(f"v_cvt_pk_bf16_f32 v{VB + 8 * s + i}, v{VA_ + 16 * s + 2 * i}, v{VA_ + 16 * s + 2 * i + 1}")
    PT = KB
    D0, D1 = PK, PK + 16
    ZA = [VT + 4, VT + 6]
    for s in range(2):
        main += zipl(softmax_inst(PK + 16 * (2 * s), E0, M0, PH), softmax_inst(PK + 16 * (2 * s + 1) + 8, E1, M1, PH + 8))
        for h, TR in enumerate((TR0, TR1)):
            for jj in range(2):
                main.append(mfma(TR, vr(PH + 8 * h + 4 * jj, 4), vr(VID + 4 * jj, 4), jj > 0))
        for h, TR in enumerate((TR0, TR1)):
            for i in range(8):
                main.append(f"v_cvt_pk_bf16_f32 v{PT + 8 * h + i}, v{TR + 2 * i}, v{TR + 2 * i + 1}")
            for jj in range(2):
                main.append(mfma((D0, D1)[h], vr(PT + 8 * h + 4 * jj, 4), vr(VB + 8 * s + 4 * jj, 4), s > 0 or jj > 0))
            for i in range(8):
                if s == 0 and i == 0:
                    continue
                a = vr(TR, 2) if (s == 0 and i == 1) else vr(ZA[h], 2)
                main.append(f"v_pk_add_f32 {vr(ZA[h], 2)}, {a}, {vr(TR + 2 * i, 2)}")
    main += f"""v_add_f32 v{ZA[0]}, v{ZA[0]}, v{ZA[0] + 1}
v_add_f32 v{ZA[1]}, v{ZA[1]}, v{ZA[1] + 1}
v_permlane32_swap_b32 v{ZA[0]}, v{ZA[1]}
v_add_f32 v{ZA[0]}, v{ZA[0]}, v{ZA[1]}""".split("\n")
    SN, KP = E0, E0 + 8
    main += [f"v_cndmask_b32 v{D0 + i}, v{D0 + i}, v{D1 + i}, s[{s_mk0}:{s_mk0 + 1}]" for i in range(16)]
    main += [f"v_cndmask_b32 v{SN + i}, v{D0 + 8 + i}, v{D0 + i}, s[{s_mk1}:{s_mk1 + 1}]" for i in range(8)]
    main += [f"ds_write_b32 v{VA2}, v{ZA[0]}", f"ds_write_b128 v{VA0}, {vr(SN, 4)}", f"ds_write_b128 v{VA0}, {vr(SN + 4, 4)} offset:1024"]
    KPR = VFR + 24
    main += [f"v_cndmask_b32 v{KPR + i}, v{D0 + i}, v{D0 + 8 + i}, s[{s_mk1}:{s_mk1 + 1}]" for i in range(8)]
    main, t1 = sched(I(main))
    print(g.kind, "kv sched est", t1)
    d0 = int(OPT["kvdelay"])
    g.puts(main[:d0])
    weave(g, main[d0:], int(OPT["kvev"]))
    g.puts(g.poll_issue(VPK, sDBG, "0"))
    g.wait(vm_tag="F0", lgkm0=True)
    S("s_barrier")

    NB = 2 if light else 3

    def reads2(ks):
        j, kk = ks // 4, ks % 4
        fw = VFR + 12 * (ks % 2)
        a = FR[j] + kk * NCH * 2048
        st = a // 65536
        o = a - st * 65536
        L = [f"ds_read_b64_tr_b16 {vr(fw + 4 * b + 2 * t, 2)}, v{VWA + 3 * st + b} offset:{o + t * NCH * 256}" for b in range(NB) for t in range(2)]
        if light:
            L.append(f"ds_read_b128 {vr(fw + 8, 4)}, v{VWA + 11} offset:{32 * kk}")
        return L

    def gw_addr(j):
        if light:
            S("\n".join(kb_pre(j, s_t0) + [f"v_add_u32 v{VWA + 11}, s{s_t0}, v{VWA + 10}"]))

    gw_addr(0)
    for r in reads2(0):
        S(r)
    RCV, O = VFR + 32, VFR + 40
    S(f"ds_read_b128 {vr(RCV, 4)}, v{VA1}\nds_read_b128 {vr(RCV + 4, 4)}, v{VA1} offset:1024\nds_read_b32 v{ZA[1]}, v{VA3}")
    fin = I([f"v_add_f32 v{KPR + i}, v{KPR + i}, v{RCV + i}" for i in range(8)])
    fin += I([f"v_add_f32 v{ZA[0]}, v{ZA[0]}, v{ZA[1]}", f"v_lshlrev_b32 v{O + 5}, 1, v{VL}"])
    fin += I([f"v_cvt_pk_bf16_f32 v{O + i}, v{KPR + 2 * i}, v{KPR + 2 * i + 1}" for i in range(4)])
    fin += I([f"v_cvt_pk_bf16_f32 v{O + 4}, v{ZA[0]}, v{ZA[0]}"])
    fin += I([f"buffer_store_dwordx4 {vr(O, 4)}, v{VL16}, {srd(sWS)}, s{s_o0} offen sc1",
              f"buffer_store_short v{O + 4}, v{O + 5}, {srd(sWS)}, s{s_xb} offen sc1"], "kst")
    g.stamp()
    seen = {}
    for ks in range(32):
        j, kk = ks // 4, ks % 4
        fw = VFR + 12 * (ks % 2)
        mf = [mfma(ACC + (2 * b + s) * 16, vr(fw + 4 * b, 4), ar(xa(ks, s), 4), ks > 0) for b in range(2) for s in range(2)]
        mf.append(mfma(ACC + 64, vr(fw + 8, 4), ar(xa(ks, 0), 4), ks > 0))
        bar = None
        if kk == 3:
            bar = (f"F{j + 1}" if j < 7 else None, [(FR[j], FR[j] + FS)])
            if j < 7:
                gw_addr(j + 1)
        ex = []
        if ks < 2:
            ex = fin[9 * ks:9 * ks + 9]
        if ks == int(OPT['kvpub']):
            g.puts(g.poll_check(VPK, sDBG, "0", 0xf, 1, 16))
            ex = publish("kst", 1)
        rd = reads2(ks + 1) if ks < 31 else []
        for n in range(NSTAGE):
            if n not in seen and lq.issued(f"W{W2_ORDER[n]}"):
                seen[n] = ks
        old = g.staged < 2 * NSTAGE and ks - seen.get(g.staged // 2, 99) >= int(OPT["stage_age"])
        kstep(g, mf, rd, 0 if ks < 2 else 2, barrier=bar, extra=ex, late_reads=lambda: stage_moves(g, 1, dead=8 * ks, force=old))
    g.stamp()
    print(g.kind, "staged in seg2:", g.staged, "queue left", len(lq.q))
    S(f"""s_lshl_b32 s{s_t0}, s{s_ch}, 1
s_add_u32 s{s_t0}, s{s_t0}, s{s_us}
s_lshl_b32 s{s_t0}, s{s_t0}, 11
s_add_u32 s{s_t0}, s{s_t0}, s{s_act}
s_lshl_b32 s{s_t1}, s{s_ch}, 10
s_add_u32 s{s_o0}, s{s_t0}, s{s_t1}
s_xor_b32 s{s_kb}, s{s_o0}, 1024
s_add_u32 s{s_t0}, s{s_us}, 4
s_lshl_b32 s{s_t0}, s{s_t0}, 11
s_add_u32 s{s_t0}, s{s_t0}, s{s_act}
s_add_u32 s{s_fb}, s{s_t0}, s{s_t1}""")
    main = []
    if light:
        S(f"""s_lshl_b32 s{s_t0}, s{s_tb}, 1
s_add_u32 s{s_t0}, s{s_t0}, s{s_th}
s_lshl_b32 s{s_t1}, s{s_t0}, 1
s_add_u32 s{s_t1}, s{s_t1}, s{s_ch}
s_lshl_b32 s{s_t1}, s{s_t1}, 7
s_add_u32 s{s_fb}, s{s_t1}, {GATE}
s_xor_b32 s{s_t1}, s{s_j}, s{s_th}
s_bitcmp1_b32 s{s_t1}, 0
s_cselect_b32 s{s_t1}, {OOB}, 0
v_mov_b32 v{VT}, {OOB}
v_lshl_add_u32 v{VT + 1}, v{VL}, 2, s{s_t1}
v_cmp_gt_u32 vcc, 32, v{VL}
v_cndmask_b32 v{VT + 2}, v{VT}, v{VT + 1}, vcc""")
        main += I([f"buffer_store_dword v{ACC + 64}, v{VT + 2}, {srd(sWS)}, s{s_fb} offen sc1"], "hst")
    blocks = [(ACC + (2 * b + s) * 16, s_o0 if s == 0 else s_kb, 2048 * b) for b in range(2) for s in range(2)]
    if not light:
        blocks.append((ACC + 64, s_fb, 0))
    pend, main = main, []
    for n, (acc, so, off) in enumerate(blocks):
        main += I(gelu_block(acc, VFR, VFR + 8, acc))
        pend += I([f"buffer_store_dwordx4 {vr(acc, 4)}, v{VL16}, {srd(sWS)}, s{so} offen offset:{off} sc1"], "hst")
        if str(n) in OPT["kst"] or n == len(blocks) - 1:
            main.append(Event(lambda p=pend: g.puts(p)))
            pend = []
        main += g.fs()
        main.append(stage_event(g, 4))
    weave(g, main, 64)
    g.wait(lgkm0=True)
    g.loads(8)
    g.puts(g.fs() + publish("hst", 2) + g.fs())
    g.force("W10")
    g.puts(g.fs())
    g.puts(g.poll_issue(VPOLL, sWS, "s16"))
    g.puts(g.poll_check(VPOLL, sWS, "s16", 0xf))
    add_act(g, 0, 12)
    g.stamp()
    phase_b(g, [])
    return g


CODE_SZ = 20480


def build(path, **opt):
    OPT.update(opt)
    gens = [gen_kv(False), gen_kv(True), gen_q()]
    parts = {}
    for g in gens:
        if OPT["drop"]:
            d = OPT["drop"]
            keep = []
            for it in g.S.items:
                if isinstance(it, Wait):
                    if "vm" in d and it.vm_tag is not None:
                        it = Wait(None, it.lgkm0, False)
                    keep.append(it)
                    continue
                if "vm" in d and it.kind == "vmem" and f"v{VST}," not in it.text:
                    continue
                if ("vm" in d or "poll" in d) and "L_slow" in it.text:
                    it = Ins(it.text.split("\n")[1])
                if "st" in d.split(",") and it.kind == "vmem" and "store" in it.op and f"v{VST}," not in it.text:
                    it = Ins(f"buffer_load_dword v{VPD}, v{VFLAG}, {srd(sDBG)}, 0 offen", it.tag, True) if it.tag else None
                    if it is None:
                        continue
                if "plain" in d and it.kind == "vmem" and "store" in it.op and it.tag in ("hst", "ost"):
                    it = Ins(it.text.replace(" sc1", ""), it.tag)
                if "nt" in d.split(",") and it.kind == "vmem" and "store" in it.op and it.tag in ("hst", "ost"):
                    it = Ins(it.text.replace(" sc1", " sc1 nt"), it.tag)
                if "nopl" in d and it.tag in ("pl", "zl"):
                    it = Ins(it.text.replace(f"v{VL16},", f"v{VFLAG},"), it.tag)
                if "now2" in d and it.tag and it.tag[0] == "W" and it.kind == "vmem":
                    it = Ins("buffer_load_dwordx4 v%d, %s" % (VFLAG, it.text.split(",", 1)[1]), it.tag)
                if "mf" in d and it.kind == "mfma":
                    continue
                if "ds" in d and it.kind == "ds":
                    continue
                if "va" in d and (it.kind in ("trans", "perm") or it.op.startswith("v_pk_") or it.op.startswith("v_cvt_pk") or it.op.startswith("v_max")):
                    continue
                keep.append(it)
            g.S.items = keep
        t = finalize(g.S, g.kind)
        h, rest = t.split("L_m1:\n")
        blk, body = rest.split("L_m2:\n")
        parts[g.kind] = (h, blk, body + "\n" + "\n".join(g.slow) + "\n.p2align 6")
    assert parts["KH"][0] == parts["KL"][0] == parts["Q"][0] and parts["KH"][1] == parts["KL"][1]
    txt = [parts["Q"][0], parts["Q"][1], parts["KH"][1], parts["KH"][2], parts["KL"][2], parts["Q"][2]]
    hdr = open("gated_mix__linear_kernel_hedgehog__glu_gated_geglu__prompt.s.ref").read().split("; Override launch")[0]
    out = hdr + "; @launch grid=(256,1,1) block=(256,1,1) lds=163840\n"
    out += f""".amdgcn_target "amdgcn-amd-amdhsa--gfx950"
.text
.globl {KN}
.p2align 8
.type {KN},@function
{KN}:
"""
    out += "\n".join(txt)
    out += "\nL_end:\ns_endpgm\n"
    out += ".fill 8192, 4, 0xbf810000\n"
    out += f""".section .rodata,"a"
.p2align 6
.amdhsa_kernel {KN}
  .amdhsa_next_free_vgpr 512
  .amdhsa_next_free_sgpr 102
  .amdhsa_accum_offset 256
  .amdhsa_group_segment_fixed_size 0
  .amdhsa_kernarg_size 96
  .amdhsa_user_sgpr_count 2
  .amdhsa_user_sgpr_kernarg_segment_ptr 1
  .amdhsa_system_sgpr_workgroup_id_x 1
.end_amdhsa_kernel
"""
    open(path, "w").write(out)
    print("wrote", path, len(out), "bytes")


if __name__ == "__main__":
    kw = {}
    path = sys.argv[1] if len(sys.argv) > 1 else "k.s"
    for a in sys.argv[2:]:
        k, v = a.split("=")
        kw[k] = {"0": False, "1": True}.get(v, v) if isinstance(OPT[k], bool) else v
    build(path, **kw)
```

```python
import sys
import struct
from ab import Stream, Ins, Wait, finalize, sched, cost_of

KN = "gated_mix__linear_kernel_hedgehog__glu_gated_geglu__prompt_kernel"
OPT = dict(stamps=False, span=False, fine=False, rot="tb", codepf=True, diag=None, drop=None, touch=True, mix=True, kc1=4, kc2=13, outfl="", pubk=0, zfull=False, w0=True, first=6, kvp=0, kvc=3, redearly=False, drole='', wsoff=0, qst='5', kst='x', hpub=700, qhp=600, kvpub=7, qev=52, stage_age=7, s1stop=26, kvdelay=80, kvev=80)

ACT = 0
KVP = 0x780000
ZP = 0x800000
GATE = 0x810000
FLG = 0x820000
STAMP = 0x840000
WS_SIZE = 0x860000
OOB = 0x7ff00000

sX, sQKV, sG, sU, sWO, sWD, sWS, sOUT, sPHI, sGW, sDBG = [28 + 4 * i for i in range(11)]
s_tb, s_j, s_w, s_th, s_ch, s_tt, s_ct, s_rot = range(72, 80)
s_xb, s_qb, s_fb, s_kb = 80, 81, 82, 83
s_o0, s_o1, s_o2 = 84, 85, 86
s_m4, s_m8, s_m6 = 87, 88, 89
s_t0, s_t1, s_t2, s_t3 = 90, 91, 92, 93
s_act, s_us, s_spin, s_pt = 94, 95, 96, 97
s_mk0, s_mk1 = 98, 100
s_pb = 4
s_stamp = 26


def srd(r):
    return f"s[{r}:{r + 3}]"


def vr(a, n=1):
    return f"v{a}" if n == 1 else f"v[{a}:{a + n - 1}]"


def ar(a, n=1):
    return f"a{a}" if n == 1 else f"a[{a}:{a + n - 1}]"


def f32(x):
    return "0x%08x" % struct.unpack("<I", struct.pack("<f", x))[0]


def mfma(d, a, b, c):
    return f"v_mfma_f32_32x32x16_bf16 {vr(d, 16)}, {a}, {b}, {vr(d, 16) if c else 0}"


class LDS:
    def __init__(self):
        self.busy = [None] * 160

    def free(self, lo, hi):
        return all(self.busy[k] is None for k in range(lo // 1024, (hi + 1023) // 1024))

    def claim(self, lo, hi, tag):
        assert self.free(lo, hi), (lo, hi, tag, self.busy)
        for k in range(lo // 1024, (hi + 1023) // 1024):
            self.busy[k] = tag

    def release(self, lo, hi):
        for k in range(lo // 1024, (hi + 1023) // 1024):
            assert self.busy[k] is not None
            self.busy[k] = None


class Event(Wait):
    def __init__(self, fn, rd=(), wr=()):
        super().__init__(rd=rd, wr=wr)
        self.fn = fn


class LoadQ:
    def __init__(self, lds):
        self.q = []
        self.lds = lds

    def add(self, pre, ins, tag, claim=None, cond=None):
        self.q.append((pre, ins, tag, claim, cond))

    def take(self, n=1):
        out = []
        while n > 0 and self.q:
            pre, ins, tag, claim, cond = self.q[0]
            if cond is not None and not cond():
                break
            if callable(claim):
                got = claim()
                if got is None:
                    break
                pre = got
            elif claim is not None:
                if not self.lds.free(*claim):
                    break
                self.lds.claim(claim[0], claim[1], tag)
            self.q.pop(0)
            out.append([Ins(p) for p in pre] + [Ins(ins, tag)])
            n -= 1
        return out

    def issued(self, tag):
        tags = tag if isinstance(tag, (list, tuple)) else [tag]
        return all(u[2] not in tags for u in self.q)


def scc_live(items):
    live, out = False, [False] * len(items)
    for k in range(len(items) - 1, -1, -1):
        out[k] = live
        i = items[k]
        if isinstance(i, Wait):
            continue
        if i.op.startswith("s_cselect") or i.op.startswith("s_cbranch_scc") or i.op.startswith("s_addc"):
            live = True
        elif i.kind == "salu" and not (i.op.startswith("s_mov") or i.op.startswith("s_mul")):
            live = False
    return out


def weave(g, main, every):
    acc = 0
    live = scc_live(main)
    for it, lv in zip(main, live):
        g.put(it)
        acc += cost_of(it)
        if acc >= every and not lv:
            if g.loads(1):
                acc = 0


DIAG_NAMES = {"Q": ["pro", "a0", "loop", "gelu", "o", "pub", "b0", "b1", "end"],
              "KH": ["pro", "a0", "seg1", "kv", "loop", "pub", "b0", "b1", "end"],
              "KL": ["pro", "a0", "seg1", "kv", "loop", "pub", "b0", "b1", "end"]}


class Gen:
    def __init__(self, kind):
        self.kind = kind
        self.S = Stream()
        self.slow = []
        self.lds = LDS()
        self.lq = LoadQ(self.lds)
        self.nstamp = 0
        self.npoll = 0
        self.w2addr = {}
        self.w2cand = []
        self.staged = 0
        self.pend_rel = []
        self.bdone = -1

    def vm_tags(self):
        return [i.tag for i in self.S.items if isinstance(i, Ins) and i.kind == "vmem" and i.count]

    def complete(self, tag):
        if not self.lq.issued(tag):
            return False
        n, last, done = 0, {}, -1
        for i in self.S.items:
            if isinstance(i, Wait):
                if i.vm_tag is not None:
                    tags = i.vm_tag if isinstance(i.vm_tag, (list, tuple)) else [i.vm_tag]
                    done = max(done, max(last[t] for t in tags))
            elif i.kind == "vmem" and i.count:
                last[i.tag] = n
                n += 1
        return tag in last and last[tag] <= done

    def loads(self, n):
        u = self.lq.take(n)
        for x in u:
            self.S.extend(x)
        return len(u)

    def force(self, tag):
        while not self.lq.issued(tag):
            assert self.loads(1), ("cannot issue", tag, self.lq.q[0], self.lds.busy)

    def put(self, it):
        if isinstance(it, Event):
            it.fn()
            return
        if isinstance(it, Wait):
            if it.vm_tag is not None:
                self.force(it.vm_tag)
            self.S.items.append(it)
            if it.lgkm0:
                for lo, hi in self.pend_rel:
                    self.lds.release(lo, hi)
                self.pend_rel = []
            return
        self.S.items.append(it)

    def wait(self, vm_tag=None, lgkm0=False):
        self.put(Wait(vm_tag, lgkm0))

    def stamp(self, final=False):
        if OPT["diag"]:
            a, b, mult, unit = OPT["diag"].split(":")
            ins = "s_memrealtime" if unit == "r" else "s_memtime"
            names = DIAG_NAMES[self.kind]
            nm = names[self.nstamp]
            self.nstamp += 1
            if nm == a:
                self.S(f"{ins} s[18:19]\ns_waitcnt lgkmcnt(0)")
            if nm == b:
                self.S(f"{ins} s[20:21]\ns_waitcnt lgkmcnt(0)")
        if OPT["stamps"] and (not OPT.get("span") or final):
            S = self.S
            S(f"s_memtime s[{s_stamp}:{s_stamp + 1}]")
            S("s_waitcnt lgkmcnt(0)")
            S(f"v_writelane_b32 v{VST}, s{s_stamp}, {self.nstamp}")
            self.nstamp += 1

    def poll_issue(self, vaddr, srdr, soff):
        return [Ins(f"buffer_load_dword v{VPD}, v{vaddr}, {srd(srdr)}, {soff} offen sc1", "poll")]

    def poll_check(self, vaddr, srdr, soff, mask, stage=1, sleep=6, first=None):
        k = f"{self.kind}{self.npoll}"
        self.npoll += 1
        pre = f"s_waitcnt vmcnt(0)\n{first}\n" if first else ""
        self.slow.append(f"""L_slow_{k}:
{pre}s_mov_b32 s{s_spin}, 0
L_spin_{k}:
s_sleep {sleep}
buffer_load_dword v{VPD}, v{vaddr}, {srd(srdr)}, {soff} offen sc1
s_add_u32 s{s_spin}, s{s_spin}, 1
s_cmp_ge_u32 s{s_spin}, 0x4000
s_cbranch_scc1 L_back_{k}
s_waitcnt vmcnt(0)
v_cmp_le_u32 vcc, {stage}, v{VPD}
s_nop 1
s_andn2_b32 s{s_pt}, {mask}, vcc_lo
s_cbranch_scc1 L_spin_{k}
s_branch L_back_{k}""")
        br = Ins(f"s_cbranch_scc1 L_slow_{k}")
        br.text += f"\nL_back_{k}:"
        return [Wait("poll", wr=[("v", VPD)])] + I([f"v_cmp_le_u32 vcc, {stage}, v{VPD}", f"s_andn2_b32 s{s_pt}, {mask}, vcc_lo"]) + [br]

    def fs(self):
        return [Event(self.stamp)] if OPT["fine"] == "2" else []

    def puts(self, items):
        for i in items:
            self.put(i)


VL = 1
VX = 2
VQ = 6
VG = 10
VU = 13
VXA = 16
VWA = 20
VW2 = 32
VW2D = 36
VL16 = 38
VL16D = 39
VW2A = 40
VPB = 43
VPOLL = 44
VPD = 45
VFLAG = 46
VONE = 47
VC = 48
VID = 52
VONES = 60
VPHI = 64
VT = 68
VTWO = 77
VPK = 78
VST = 79
VFR = 80
ACC = 128

MISC = 144 * 1024
LOG2E = 1.4426950408889634
GC = 0.7978845608028654


XR = [0, 16384, 32768, 49152]
KWR = [65536, 81920, 98304, 114688]
QWR = [49152, 81920, 114688]


def head(g):
    S = g.S
    if OPT["stamps"]:
        S("s_memrealtime s[98:99]\ns_memtime s[94:95]")
    if OPT["diag"]:
        S(("s_memrealtime" if OPT["diag"].endswith("r") else "s_memtime") + " s[98:99]")
    S(f"""s_cmp_ge_u32 s2, 256
s_cbranch_scc1 L_end
s_load_dwordx16 s[4:19], s[0:1], 0
s_load_dwordx8 s[20:27], s[0:1], 64
v_lshrrev_b32 v{VT}, 6, v0
v_and_b32 v{VL}, 63, v0
s_and_b32 s{s_t0}, s2, 7
s_lshr_b32 s{s_t1}, s2, 3
v_readfirstlane_b32 s{s_w}, v{VT}
s_and_b32 s{s_tb}, s{s_t0}, 1
s_lshl_b32 s{s_tb}, s{s_tb}, 3
s_and_b32 s{s_ct}, s{s_t1}, 7
s_add_u32 s{s_tb}, s{s_tb}, s{s_ct}
s_lshr_b32 s{s_t2}, s{s_t1}, 3
s_and_b32 s{s_j}, s{s_t0}, 6
s_lshr_b32 s{s_t3}, s{s_t2}, 1
s_add_u32 s{s_j}, s{s_j}, s{s_t3}
s_lshl_b32 s{s_m4}, s{s_w}, 12""")
    code_prefetch(g)
    rot = OPT["rot"]
    if rot == "none":
        S(f"s_mov_b32 s{s_rot}, 0")
    elif rot == "full":
        S(f"s_lshl_b32 s{s_rot}, s{s_t2}, 1\ns_add_u32 s{s_rot}, s{s_rot}, s{s_ct}\ns_add_u32 s{s_rot}, s{s_rot}, s{s_t0}")
    elif rot in ("tb", "tbx"):
        S(f"""s_mul_i32 s{s_rot}, s{s_t3}, 3
s_add_u32 s{s_rot}, s{s_rot}, 1
s_bitcmp1_b32 s{s_t2}, 0
s_cselect_b32 s{s_rot}, s{s_rot}, 0
s_add_u32 s{s_rot}, s{s_rot}, s{s_ct}""")
        if rot == "tbx":
            S(f"s_add_u32 s{s_rot}, s{s_rot}, s{s_t0}")
    S(f"""s_lshl_b32 s{s_rot}, s{s_rot}, 7
s_lshl_b32 s{s_xb}, s{s_tb}, 7
v_lshrrev_b32 v{VT + 3}, 3, v{VL}
v_lshrrev_b32 v{VT + 2}, 4, v{VL}
v_xor_b32 v{VT + 1}, v{VT + 2}, v{VL}
v_and_b32 v{VT + 1}, 7, v{VT + 1}
v_lshl_add_u32 v{VT + 3}, v{VT}, 5, v{VT + 3}
v_add_lshl_u32 v{VT + 3}, v{VT + 3}, s{s_xb}, 10
v_lshl_add_u32 v{VX}, v{VT + 1}, 4, v{VT + 3}
v_xor_b32 v{VX + 1}, 64, v{VX}
v_add_u32 v{VX + 1}, 7168, v{VX + 1}
v_add_u32 v{VX + 2}, 14336, v{VX}
v_add_u32 v{VX + 3}, 14336, v{VX + 1}
s_lshl_b32 s{s_qb}, s{s_j}, 7
s_mov_b32 s{sX + 2}, {2048 * 1024}
s_mov_b32 s{sX + 3}, 0x20000
s_mov_b32 s{sQKV + 2}, {512 * 3072}
s_mov_b32 s{sQKV + 3}, 0x20000""")
    S(f"""v_bfe_u32 v{VT + 3}, v{VL}, 2, 2
v_lshl_add_u32 v{VT + 3}, v{VT}, 4, v{VT + 3}
v_mul_u32_u24 v{VT + 3}, 3, v{VT + 3}
v_lshrrev_b32 v{VT + 4}, 5, v{VL}
v_add3_u32 v{VT + 3}, v{VT + 3}, v{VT + 4}, 1
v_and_b32 v{VT + 4}, 1, v{VT + 2}
v_lshl_add_u32 v{VT + 3}, v{VT + 3}, 4, v{VT + 4}
v_and_b32 v{VT + 4}, 3, v{VL}
v_lshl_add_u32 v{VT + 3}, v{VT + 3}, 2, v{VT + 4}
v_lshl_add_u32 v{VQ}, v{VT + 3}, 4, s{s_qb}""")
    for i in range(1, 4):
        S(f"v_add_u32 v{VQ + i}, {i * (4 * 3072 - 1024)}, v{VQ}")
    add_x(g, 0, XR[0])
    u = g.lq.take(4)
    S.extend(u[0][:-1])
    S("s_waitcnt lgkmcnt(0)")
    S(f"s_mov_b64 s[{sX}:{sX + 1}], s[4:5]\ns_bitcmp1_b32 s{s_t2}, 0")
    S.extend(u[0][-1:] + u[1] + u[2] + u[3])
    S("s_cbranch_scc0 L_KV0\nL_m1:")
    if g.kind == "Q":
        add_x(g, 1, XR[1])
        add_x(g, 2, XR[2])
        g.loads(int(OPT["first"]))
        S("s_branch L_Q")
    else:
        S(f"L_KV0:\ns_mov_b64 s[{sQKV}:{sQKV + 1}], s[6:7]")
        add_kv(g, 0)
        add_x(g, 1, XR[1])
        g.loads(int(OPT["first"]))
        S(f"s_cmp_ge_u32 s{s_j}, 6\ns_cbranch_scc1 L_KL")
    S("L_m2:\n.p2align 3")
    if g.kind != "KH":
        S(f"L_{g.kind}:")
    if OPT["stamps"] or OPT["diag"]:
        S("s_mov_b32 s3, s98")
    if OPT["stamps"]:
        S(f"v_mov_b32 v{VST}, 0\nv_writelane_b32 v{VST}, s94, 0")
        g.nstamp = 1
        if not OPT.get("span"):
            S("s_memtime s[94:95]\ns_waitcnt lgkmcnt(0)")
            S(f"v_writelane_b32 v{VST}, s94, 1")
            g.nstamp = 2
    S(f"""s_and_b32 s{s_th}, s{s_w}, 1
s_lshr_b32 s{s_ch}, s{s_w}, 1
v_lshlrev_b32 v{VL16}, 4, v{VL}
s_and_b32 s{s_t0}, s2, 7
s_lshl_b32 s{s_tt}, s{s_t0}, 2""")
    if OPT["mix"]:
        S(f"s_and_b32 s{s_t0}, s{s_ct}, 1\ns_xor_b32 s{s_t0}, s{s_t0}, s{s_t2}\ns_add_u32 s{s_tt}, s{s_tt}, s{s_t0}")
    else:
        S(f"s_add_u32 s{s_tt}, s{s_tt}, s{s_t2}")


def add_kv(g, j):
    w = KWR[j % 4]
    add_rows(g, f"K{j}", VQ, 4, sQKV, 3072, s_o1, s_m4, w, (w, w + 16384))


def mk_srds(g, which):
    S = g.S
    tab = {sX: (4, 2048 * 1024), sQKV: (6, 512 * 3072), sPHI: (8, 32 * 512), sWO: (10, 512 * 1024), sG: (14, 512 * 2752),
           sU: (16, 512 * 2752), sWD: (18, 1376 * 1024), sGW: (20, 1024), sOUT: (22, 2048 * 1024), sDBG: (24, 256), sWS: (26, WS_SIZE)}
    for r in which:
        p, n = tab[r]
        if r == sWS and int(OPT["wsoff"]):
            S(f"s_add_u32 s{r}, s{p}, {int(OPT['wsoff']) << 20}\ns_addc_u32 s{r + 1}, s{p + 1}, 0\ns_mov_b32 s{r + 2}, {n}\ns_mov_b32 s{r + 3}, 0x20000")
            continue
        S(f"s_mov_b64 s[{r}:{r + 1}], s[{p}:{p + 1}]\ns_mov_b32 s{r + 2}, {n}\ns_mov_b32 s{r + 3}, 0x20000")


def quad_parts(g):
    g.S(f"""v_bfe_u32 v{VT}, v{VL}, 2, 2
v_and_b32 v{VT + 1}, 3, v{VL}
v_lshlrev_b32 v{VT + 1}, 4, v{VT + 1}
v_lshrrev_b32 v{VT + 2}, 4, v{VL}""")


def voff_n2(g, dst, n, stride, wave_rows, base=None):
    S = g.S
    S(f"""v_lshrrev_b32 v{VT + 3}, 5, v{VL}
v_lshl_add_u32 v{VT + 3}, v{VT + 3}, 2, v{VT}""")
    if wave_rows:
        S(f"s_lshl_b32 s{s_t0}, s{s_w}, 4\nv_add_u32 v{VT + 3}, s{s_t0}, v{VT + 3}")
    S(f"""v_mul_u32_u24 v{VT + 3}, {stride}, v{VT + 3}
v_and_b32 v{VT + 4}, 1, v{VT + 2}
v_lshl_add_u32 v{VT + 4}, v{VT + 4}, 6, v{VT + 1}
v_add3_u32 v{dst}, v{VT + 3}, v{VT + 4}, {"s%d" % base if base else 0}""")
    for i in range(1, n):
        S(f"v_add_u32 v{dst + i}, {i * (8 * stride - 1024)}, v{dst}")


def voff_ffn3(g):
    S = g.S
    S(f"""s_lshl_b32 s{s_t0}, s{s_w}, 4
v_add_u32 v{VT + 5}, s{s_t0}, v{VT}
v_mul_u32_u24 v{VT + 5}, 2752, v{VT + 5}
v_lshl_add_u32 v{VT + 6}, v{VT + 2}, 6, v{VT + 1}
s_movk_i32 s{s_t0}, 10816
v_add3_u32 v{VT + 5}, v{VT + 5}, v{VT + 6}, s{s_fb}""")
    for i in range(3):
        S(f"""v_add_u32 v{VT + 3}, {i + 1}, v{VT + 2}
v_lshrrev_b32 v{VT + 3}, 2, v{VT + 3}
v_mad_u32_u24 v{VG + i}, v{VT + 3}, s{s_t0}, v{VT + 5}""")
        if i:
            S(f"v_add_u32 v{VG + i}, {157 * 64 * i}, v{VG + i}")
        S(f"v_xor_b32 v{VU + i}, 32, v{VG + i}")


def unit_start(S, dst, jreg, isq, tmp):
    S(f"s_lshr_b32 s{dst}, {jreg}, 1\ns_mul_i32 s{dst}, s{dst}, 22\ns_and_b32 s{tmp}, {jreg}, 1")
    if isq:
        S(f"s_mul_i32 s{tmp}, s{tmp}, 6\ns_add_u32 s{dst}, s{dst}, s{tmp}\ns_cmp_ge_u32 {jreg}, 6\ns_cselect_b32 s{tmp}, 8, 10\ns_add_u32 s{dst}, s{dst}, s{tmp}")
    else:
        S(f"s_mul_i32 s{tmp}, s{tmp}, 5\ns_add_u32 s{dst}, s{dst}, s{tmp}\ns_cmp_eq_u32 {jreg}, 7\ns_cselect_b32 s{tmp}, 1, 0\ns_sub_u32 s{dst}, s{dst}, s{tmp}")


def kb_pre(j, reg):
    return [f"s_add_u32 s{reg}, s{s_rot}, {128 * j}", f"s_and_b32 s{reg}, s{reg}, 0x380"]


def dma(v, r, so, imm):
    return f"buffer_load_dwordx4 v{v}, {srd(r)}, s{so} offen" + (f" offset:{imm}" if imm else "") + " lds"


def add_x(g, j, base):
    for i in range(4):
        pre = []
        if i == 0:
            pre = [f"s_add_u32 m0, s{s_m4}, {base}"] + kb_pre(j, s_o0)
        g.lq.add(pre, dma(VX + i, sX, s_o0, 1024 * i), f"X{j}", (base, base + 16384) if i == 0 else None)


def add_rows(g, tag, v0, n, r, stride, so, mreg, mbase, claim, newkb=None, newso=True, kreg=s_o0):
    for i in range(n):
        pre = []
        if i == 0:
            if newkb is not None:
                pre += kb_pre(newkb, kreg)
            pre += [f"s_add_u32 m0, s{mreg}, {mbase}"]
            if newso:
                pre += [f"s_mul_i32 s{so}, s{kreg}, {stride // 2}"]
        g.lq.add(pre, dma(v0 + i, r, so, 1024 * i), tag, claim if i == 0 else None)


def misc_setup(g):
    S = g.S
    S(f"""v_bfe_u32 v{VT}, v{VL}, 2, 2
v_and_b32 v{VT + 1}, 3, v{VL}
v_lshlrev_b32 v{VT + 1}, 3, v{VT + 1}
v_lshl_add_u32 v{VPB}, v{VT}, 6, v{VT + 1}
v_lshrrev_b32 v{VT + 2}, 5, v{VL}
v_bfe_u32 v{VT + 3}, v{VL}, 4, 1
v_and_b32 v{VT + 4}, 31, v{VL}
v_bfe_u32 v{VT + 5}, v{VL}, 1, 3
v_xor_b32 v{VT + 5}, v{VT + 5}, v{VT + 2}
v_lshlrev_b32 v{VT + 5}, 4, v{VT + 5}
v_lshl_add_u32 v{VT + 5}, v{VT + 4}, 7, v{VT + 5}
s_lshl_b32 s{s_t0}, s{s_th}, 13
v_add_u32 v{VXA}, s{s_t0}, v{VT + 5}
v_xor_b32 v{VXA + 1}, 32, v{VXA}
v_xor_b32 v{VXA + 2}, 64, v{VXA}
v_xor_b32 v{VXA + 3}, 0x60, v{VXA}""")
    S(f"""v_lshl_add_u32 v{VT + 6}, v{VT + 3}, 5, v{VPB}
v_lshl_add_u32 v{VW2A}, v{VT + 2}, 9, v{VT + 6}
v_add_u32 v{VW2A}, s{s_m4}, v{VW2A}
v_add_u32 v{VW2A + 1}, 0x10000, v{VW2A}
v_add_u32 v{VW2A + 2}, 0x20000, v{VW2A}""")


def consts(g):
    S = g.S
    S(f"""v_mov_b32 v{VC}, {f32(-2 * LOG2E * GC * 0.044715)}
v_mov_b32 v{VC + 1}, {f32(-2 * LOG2E * GC)}
v_mov_b32 v{VC + 2}, {f32(LOG2E)}
v_mov_b32 v{VC + 3}, {f32(1e-6)}
v_mov_b32 v{VONE}, 1
v_mov_b32 v{VTWO}, 2
v_mov_b32 v{VT}, {OOB}
v_lshlrev_b32 v{VT + 1}, 2, v{VL}
s_mov_b64 s[18:19], 15
s_mov_b64 s[20:21], 1
v_cndmask_b32 v{VPK}, v{VT}, v{VT + 1}, s[18:19]
v_cndmask_b32 v{VFLAG}, v{VT}, v{VT + 1}, s[20:21]
s_mov_b32 s{s_mk0}, 0xffff0000
s_mov_b32 s{s_mk0 + 1}, 0xffff0000""")
    if g.kind == "Q":
        for i in range(4):
            S(f"v_mov_b32 v{VONES + i}, 0x3f803f80")
    S(f"""v_lshrrev_b32 v{VT}, 5, v{VL}
v_bfe_u32 v{VT + 1}, v{VL}, 1, 4
v_lshlrev_b32 v{VT}, 1, v{VT}
v_sub_u32 v{VT}, v{VT + 1}, v{VT}
v_and_b32 v{VT + 1}, 1, v{VL}
v_lshlrev_b32 v{VT + 1}, 4, v{VT + 1}
v_mov_b32 v{VT + 2}, 0x3f80
v_lshlrev_b32 v{VT + 2}, v{VT + 1}, v{VT + 2}""")
    for jj in range(2):
        for d in range(4):
            S(f"v_cmp_eq_u32 s[{18 + 2 * d}:{19 + 2 * d}], {8 * jj + 4 * (d >> 1) + (d & 1)}, v{VT}")
        for d in range(4):
            S(f"v_cndmask_b32 v{VID + 4 * jj + d}, 0, v{VT + 2}, s[{18 + 2 * d}:{19 + 2 * d}]")


def phi_load(g):
    S = g.S
    S(f"""s_lshl_b32 s{s_t0}, s{s_j}, 1
s_add_u32 s{s_t0}, s{s_t0}, s{s_ch}
s_lshl_b32 s{s_t0}, s{s_t0}, 10
s_lshr_b32 s{s_t1}, s{s_m4}, 2
s_add_u32 m0, s{s_t1}, {MISC}""")
    S(dma(VL16, sPHI, s_t0, 0), tag="phi")


def phi_read(g):
    return lines(f"""v_lshrrev_b32 v{VT}, 5, v{VL}
v_bfe_u32 v{VT + 1}, v{VL}, 2, 2
v_lshl_add_u32 v{VT}, v{VT}, 2, v{VT + 1}
v_lshlrev_b32 v{VT}, 5, v{VT}
v_and_b32 v{VT + 1}, 3, v{VL}
v_lshl_add_u32 v{VT}, v{VT + 1}, 3, v{VT}
v_bfe_u32 v{VT + 1}, v{VL}, 4, 1
v_lshl_add_u32 v{VT}, v{VT + 1}, 9, v{VT}
s_lshr_b32 s{s_t1}, s{s_m4}, 2
s_add_u32 s{s_t1}, s{s_t1}, {MISC}
v_add_u32 v{VT}, s{s_t1}, v{VT}""") + [Wait("phi")] + lines(f"ds_read_b64_tr_b16 {vr(VPHI, 2)}, v{VT}\nds_read_b64_tr_b16 {vr(VPHI + 2, 2)}, v{VT} offset:256")


def zero_flags(g):
    S = g.S
    S(f"""s_cmp_lg_u32 s{s_ct}, 0
s_cbranch_scc1 L_nz_{g.kind}
s_and_b32 s{s_t0}, s2, 1
s_lshr_b32 s{s_t1}, s2, 6
s_add_u32 s{s_t0}, s{s_t0}, s{s_t1}
s_lshl_b32 s{s_t0}, s{s_t0}, 2
s_add_u32 s{s_t0}, s{s_t0}, s{s_w}
s_lshl_b32 s{s_t0}, s{s_t0}, 13
s_add_u32 s{s_t0}, s{s_t0}, {FLG}
s_add_u32 s{s_t1}, s{s_t0}, 4096
v_mov_b32 v{VFR}, 0
v_mov_b32 v{VFR + 1}, 0
v_mov_b32 v{VFR + 2}, 0
v_mov_b32 v{VFR + 3}, 0""")
    if OPT["zfull"]:
        for i in range(8):
            S(f"buffer_store_dwordx4 {vr(VFR, 4)}, v{VL16}, {srd(sWS)}, s{(s_t0, s_t1)[i // 4]} offen offset:{1024 * (i % 4)} sc1", count=False)
    else:
        S(f"v_lshrrev_b32 v{VT}, 2, v{VL}\nv_lshlrev_b32 v{VT}, 6, v{VT}\nv_add_u32 v{VT}, v{VT}, v{VL16}")
        for i in range(4):
            S(f"buffer_store_dwordx4 {vr(VFR, 4)}, v{VT}, {srd(sWS)}, s{(s_t0, s_t1)[i // 2]} offen offset:{2048 * (i % 2)} sc1", count=False)
    S(f"L_nz_{g.kind}:")


def set_ready(g):
    S = g.S
    S(f"""s_or_b32 s{s_t0}, s{s_ct}, s{s_w}
s_cbranch_scc1 L_nr_{g.kind}
s_and_b32 s{s_t0}, s2, 1
s_lshr_b32 s{s_t1}, s2, 6
s_add_u32 s{s_t0}, s{s_t0}, s{s_t1}
s_lshl_b32 s{s_t0}, s{s_t0}, 2""")
    S(f"buffer_store_dword v{VONE}, v{VFLAG}, {srd(sDBG)}, s{s_t0} offen sc1", count=False)
    S(f"L_nr_{g.kind}:")


def code_prefetch(g):
    if not OPT["codepf"]:
        return
    lines_ = CODE_SZ // 128 // 32
    g.S(f"""s_getpc_b64 s[{s_mk1}:{s_mk1 + 1}]
L_pc:
s_lshl_b32 s{s_kb}, s{s_ct}, 2
s_add_u32 s{s_kb}, s{s_kb}, s{s_w}
s_mul_i32 s{s_kb}, s{s_kb}, {lines_ * 128}
s_cmp_ge_u32 s{s_j}, 6
s_cselect_b32 s{s_o0}, L_KL-L_pc, 0
s_bitcmp1_b32 s{s_t2}, 0
s_cselect_b32 s{s_o0}, L_Q-L_pc, s{s_o0}
s_add_u32 s{s_kb}, s{s_kb}, s{s_o0}
v_lshl_add_u32 v{VT + 1}, v{VL}, 7, s{s_kb}
s_mov_b64 exec, {(1 << lines_) - 1}
global_load_dword v{VPD}, v{VT + 1}, s[{s_mk1}:{s_mk1 + 1}]
s_mov_b64 exec, -1""")


def gelu_block(acc, T, Y, O):
    L = []
    P = range(4)
    p = lambda b, i: vr(b + 2 * i, 2)
    L += [f"v_pk_mul_f32 {p(T, i)}, {p(acc, i)}, {p(acc, i)}" for i in P]
    L += [f"v_pk_fma_f32 {p(T, i)}, {p(T, i)}, {vr(VC, 2)}, {vr(VC, 2)} op_sel:[0,0,1] op_sel_hi:[1,0,1]" for i in P]
    L += [f"v_pk_mul_f32 {p(T, i)}, {p(T, i)}, {p(acc, i)}" for i in P]
    for i in P:
        L += [f"v_exp_f32 v{T + 2 * i}, v{T + 2 * i}", f"v_exp_f32 v{T + 2 * i + 1}, v{T + 2 * i + 1}", f"v_pk_mul_f32 {p(Y, i)}, {p(acc, i)}, {p(acc + 8, i)}"]
    L += [f"v_pk_add_f32 {p(T, i)}, {p(T, i)}, 1.0 op_sel_hi:[1,0]" for i in P]
    L += [f"v_rcp_f32 v{T + i}, v{T + i}" for i in range(8)]
    L += [f"v_pk_mul_f32 {p(Y, i)}, {p(Y, i)}, {p(T, i)}" for i in P]
    L += [f"v_cvt_pk_bf16_f32 v{O + i}, v{Y + 2 * i}, v{Y + 2 * i + 1}" for i in P]
    return L


def softmax_inst(P, E, M, O):
    L = []
    p = lambda b, i: vr(b + 2 * i, 2)
    a, b = M, M + 1
    L += [f"v_max3_f32 v{a}, v{P}, v{P + 1}, v{P + 2}", f"v_max3_f32 v{b}, -v{P}, -v{P + 1}, -v{P + 2}",
          f"v_max3_f32 v{a}, v{a}, v{P + 3}, v{P + 4}", f"v_max3_f32 v{b}, v{b}, -v{P + 3}, -v{P + 4}",
          f"v_max3_f32 v{a}, v{a}, v{P + 5}, v{P + 6}", f"v_max3_f32 v{b}, v{b}, -v{P + 5}, -v{P + 6}",
          f"v_max_f32 v{a}, v{a}, v{P + 7}", f"v_max_f32 v{b}, v{b}, -v{P + 7}",
          f"v_permlane32_swap_b32 v{a}, v{b}",
          f"v_max_f32 v{a}, v{a}, v{b}",
          f"v_mul_f32 v{b}, -v{a}, v{VC + 2}",
          f"v_mul_f32 v{a}, -v{a}, v{VC + 2}",
          f"v_permlane32_swap_b32 v{a}, v{b}"]
    for i in range(4):
        L += [f"v_pk_fma_f32 {p(E, i)}, {p(P, i)}, {vr(VC + 2, 2)}, {vr(M, 2)} op_sel_hi:[1,0,0]"]
    for i in range(4):
        L += [f"v_pk_fma_f32 {p(E + 8, i)}, {p(P, i)}, {vr(VC + 2, 2)}, {vr(M, 2)} op_sel:[0,0,1] op_sel_hi:[1,0,1] neg_lo:[1,0,0] neg_hi:[1,0,0]"]
    L += [f"v_exp_f32 v{E + i}, v{E + i}" for i in range(16)]
    L += [f"v_pk_add_f32 {p(P, 0)}, {p(E, 0)}, {p(E, 1)}", f"v_pk_add_f32 {p(P, 1)}, {p(E, 2)}, {p(E, 3)}",
          f"v_pk_add_f32 {p(P, 2)}, {p(E + 8, 0)}, {p(E + 8, 1)}", f"v_pk_add_f32 {p(P, 3)}, {p(E + 8, 2)}, {p(E + 8, 3)}",
          f"v_pk_add_f32 {p(P, 0)}, {p(P, 0)}, {p(P, 1)}", f"v_pk_add_f32 {p(P, 2)}, {p(P, 2)}, {p(P, 3)}",
          f"v_add_f32 v{a}, v{P}, v{P + 1}", f"v_add_f32 v{b}, v{P + 4}, v{P + 5}",
          f"v_permlane32_swap_b32 v{a}, v{b}",
          f"v_add_f32 v{a}, v{a}, v{b}",
          f"v_rcp_f32 v{a}, v{a}",
          f"v_mov_b32 v{b}, v{a}",
          f"v_permlane32_swap_b32 v{a}, v{b}"]
    L += [f"v_pk_mul_f32 {p(E, i)}, {p(E, i)}, {vr(M, 2)} op_sel_hi:[1,0]" for i in range(4)]
    L += [f"v_pk_mul_f32 {p(E + 8, i)}, {p(E + 8, i)}, {vr(M, 2)} op_sel:[0,1] op_sel_hi:[1,1]" for i in range(4)]
    L += [f"v_cvt_pk_bf16_f32 v{O + i}, v{E + 2 * i}, v{E + 2 * i + 1}" for i in range(8)]
    return L


def zipl(*ls):
    out = []
    n = max(len(l) for l in ls)
    for i in range(n):
        for l in ls:
            if i < len(l):
                out.append(l[i])
    return out


def I(lines, tag=None):
    return [Ins(x, tag) if isinstance(x, str) else x for x in lines]


def gcost(i):
    if isinstance(i, Event):
        return 0
    if isinstance(i, Wait):
        return 4
    return {"ds": 8, "vmem": 16, "trans": 8, "perm": 8}.get(i.kind, 4)


def kstep(g, mf, reads, nload, barrier=None, wait0=True, extra=(), late_reads=None):
    S = g.S
    if wait0 or barrier is not None:
        g.wait(lgkm0=True)
    n = len(mf)
    fill = None
    for i, m in enumerate(mf):
        S(m)
        budget = 24
        if i == 0:
            if barrier is not None:
                tag, rel = barrier
                if tag is not None:
                    g.wait(vm_tag=tag)
                S("s_barrier")
                if OPT["fine"] is True:
                    g.stamp()
                for lo, hi in rel:
                    g.lds.release(lo, hi)
                budget = 16
            fill = I(reads)
            if late_reads is not None:
                fill += late_reads()
            for u in g.lq.take(nload):
                fill += u
            fill += list(extra)
        if i == n - 1:
            g.puts(fill)
            break
        left = sum(gcost(x) for x in fill)
        over = max(0, left - 24 * (n - i) + 4) // (n - i)
        budget += over
        while fill and gcost(fill[0]) <= budget + 3:
            budget -= gcost(fill[0])
            g.put(fill.pop(0))


W2GRP = {}


def pb_setup(g):
    S = g.S
    tab = lambda v: hex(sum(x << (8 * i) for i, x in enumerate(v)))
    S(f"""s_lshl_b32 s{s_t1}, s{s_w}, 3
s_or_b32 s{s_t1}, s{s_t1}, 0x80000
s_bfe_u32 s4, {tab([10, 16, 32, 38])}, s{s_t1}
s_bfe_u32 s5, {tab([54, 60, 74, 80])}, s{s_t1}
s_bfe_u32 s6, {tab([0, 5, 22, 27])}, s{s_t1}
s_bfe_u32 s7, {tab([44, 49, 66, 70])}, s{s_t1}""")
    S(f"s_mul_i32 s{s_t0}, s{s_tt}, 118\ns_lshl_b32 s{s_t2}, s{s_ct}, 7")
    for i in range(4):
        S(f"s_add_u32 s{8 + i}, s{4 + i}, s{s_t0}\ns_lshl_b32 s{8 + i}, s{8 + i}, 11\ns_lshl_b32 s{4 + i}, s{4 + i}, 14\ns_add_u32 s{4 + i}, s{4 + i}, s{s_t2}")
    S(f"""s_lshl_b32 s{s_t1}, s{s_w}, 2
s_add_u32 s12, s{s_t1}, s{s_t0}
s_add_u32 s12, s12, 86
s_lshl_b32 s12, s12, 11
s_lshl_b32 s13, s{s_w}, 16
s_add_u32 s13, s13, s{s_t2}
s_lshr_b32 s14, s{s_tt}, 1
s_lshl_b32 s14, s14, 2
s_and_b32 s{s_t0}, s{s_tt}, 1
s_add_u32 s14, s14, s{s_t0}
s_lshl_b32 s14, s14, 7
s_add_u32 s14, s14, {FLG}
s_add_u32 s16, s14, 0x10000
s_add_u32 s{s_t0}, s{s_t0}, 6
v_and_b32 v{VT}, 2, v{VL}
v_lshl_add_u32 v{VT}, v{VT}, 1, s{s_w}
v_mov_b32 v{VT + 1}, s{s_t0}
s_mov_b64 s[18:19], 15
s_mov_b64 s[20:21], 63
v_and_b32 v{VT + 2}, 1, v{VL}
v_lshlrev_b32 v{VT + 2}, 8, v{VT + 2}
v_cndmask_b32 v{VT}, v{VT + 1}, v{VT}, s[18:19]
v_lshl_add_u32 v{VT}, v{VT}, 13, v{VT + 2}
v_mov_b32 v{VT + 1}, {OOB}
v_cndmask_b32 v{VPOLL}, v{VT + 1}, v{VT}, s[20:21]""")
    quad_parts(g)
    voff_n2(g, VW2, 4, 1024, False)
    S(f"""s_cmp_ge_u32 s{s_w}, 2
s_cselect_b32 s{s_t0}, {OOB}, 0
v_add_u32 v{VW2D}, s{s_t0}, v{VW2 + 2}
v_add_u32 v{VW2D + 1}, s{s_t0}, v{VW2 + 3}
v_add_u32 v{VL16D}, s{s_t0}, v{VL16}""")


PB_K = [("QH", p, i) for p in range(2) for i in range(6)] + \
       [("KH", 0, 0), ("KH", 0, 1), ("KH", 0, 2), ("KH", 0, 3), ("KH", 0, 4), ("KH", 1, 4), ("KH", 1, 0), ("KH", 1, 1), ("KH", 1, 2), ("KH", 1, 3)] + \
       [("O", p, i) for p in range(2) for i in range(4)]
W2_ORDER = [11, 12, 13, 14, 0, 1] + list(range(2, 11))
NSTAGE = 6


def w2_src(k):
    part, p, i = PB_K[k]
    if part == "QH":
        return sWD, 4 + p, i * 16384
    if part == "KH":
        return sWD, 6 + p, i * 16384
    return sWO, 13, p * 262144 + i * 16384


def act_src(k):
    part, p, i = PB_K[k]
    if part == "QH":
        return 8 + p, i * 2048
    if part == "KH":
        return 10 + p, i * 2048
    return 12, p * 16 * 2048 + i * 2048


def add_w2(g, n):
    grp = W2_ORDER[n]
    k = 2 * grp
    r, sb, off = w2_src(k)
    tag = f"W{grp}"

    def claim():
        for a in g.w2cand():
            if g.lds.free(a, a + 16384):
                g.lds.claim(a, a + 16384, tag)
                g.w2addr[grp] = a
                return [f"s_add_u32 m0, s{s_m4}, {a}", f"s_add_u32 s{s_o1}, s{sb}, {off}"]
        return None
    g.lq.add(None, dma(VW2, r, s_o1, 0), tag, claim)
    g.lq.add([], dma(VW2 + 1, r, s_o1, 1024), tag)
    if PB_K[k + 1] == ("KH", 1, 4):
        r2, sb2, off2 = w2_src(k + 1)
        g.lq.add([f"s_add_u32 s{s_o1}, s{sb2}, {off2 - 16384}"], dma(VW2D, r2, s_o1, 2048), tag)
        g.lq.add([], dma(VW2D + 1, r2, s_o1, 3072), tag)
    else:
        g.lq.add([], dma(VW2 + 2, r, s_o1, 2048), tag)
        g.lq.add([], dma(VW2 + 3, r, s_o1, 3072), tag)


def w2_reads(g, k, dst):
    a = g.w2addr[k // 2] + (k % 2) * 2048
    base, off = VW2A + a // 65536, a % 65536
    return [f"ds_read_b64_tr_b16 {dst(4 * c + 2 * t)}, v{base} offset:{off + 256 * c + 1024 * t}" for c in range(2) for t in range(2)]


def stage_moves(g, nk, dead=256, force=False):
    L = []
    while nk > 0 and g.staged < 2 * NSTAGE:
        n, kk = g.staged // 2, g.staged % 2
        grp = W2_ORDER[n]
        if 8 * g.staged + 8 > dead:
            break
        if not g.complete(f"W{grp}"):
            if not force:
                break
            g.wait(vm_tag=f"W{grp}")
        b = 8 * g.staged
        L += I(w2_reads(g, 2 * grp + kk, lambda o: ar(b + o, 2)))
        if kk == 1:
            a = g.w2addr[grp]
            L.append(Event(lambda a=a: g.pend_rel.append((a, a + 16384))))
        g.staged += 1
        nk -= 1
    return L


def stage_event(g, nk):
    def fn():
        g.wait(lgkm0=True)
        g.puts(stage_moves(g, nk, force=True))
    return Event(fn)


def areg(k, sub):
    return 96 + 8 * (k % 20) + 4 * sub


def add_act(g, k0, k1, subs=None):
    def ld(k, sub, imm, pre):
        va = VL16D if PB_K[k] == ("KH", 1, 4) else VL16
        g.lq.add(pre, f"buffer_load_dwordx4 {ar(areg(k, sub), 4)}, v{va}, {srd(sWS)}, s{s_o2} offen" + (f" offset:{imm}" if imm else "") + " sc1",
                 f"act{k}_{sub}", cond=(lambda: g.bdone >= k - 20))
    k = k0
    while k < k1:
        sb, off = act_src(k)
        two = k + 1 < k1 and act_src(k + 1) == (sb, off + 2048)
        first = True
        for kk in range(2 if two else 1):
            for sub in (range(2) if subs is None else subs):
                ld(k + kk, sub, 2048 * kk + 1024 * sub, [f"s_add_u32 s{s_o2}, s{sb}, {off}"] if first else [])
                first = False
        k += 2 if two else 1


def phase_b(g, publish):
    S = g.S
    AB, AA = ACC, ACC + 64
    VGT = VT
    assert g.staged == 2 * NSTAGE
    staged = {W2_ORDER[n]: n for n in range(NSTAGE)}

    def frag(k, c):
        if k // 2 in staged:
            return ar(16 * staged[k // 2] + 8 * (k % 2) + 4 * c, 4)
        return vr(VFR + 8 * (k % 2) + 4 * c, 4)

    def reads(k):
        if k >= 22 or k // 2 in staged:
            return []
        fb = VFR + 8 * (k % 2)
        return w2_reads(g, k, lambda o: vr(fb + o, 2))

    kc1, kc2, pubk = int(OPT["kc1"]), int(OPT["kc2"]), int(OPT["pubk"])
    g.force("W10")
    g.loads(12)
    g.stamp()
    VRW, VRR, VOUT = VFR + 16, VFR + 20, VFR + 22
    setup = I(f"""v_and_b32 v{VT + 4}, 15, v{VL}
v_lshlrev_b32 v{VT + 4}, 8, v{VT + 4}
v_bfe_u32 v{VT + 5}, v{VL}, 4, 1
v_lshl_add_u32 v{VT + 4}, v{VT + 5}, 14, v{VT + 4}
v_lshrrev_b32 v{VT + 5}, 5, v{VL}
v_xor_b32 v{VT + 5}, v{VT + 5}, v{VL}
v_and_b32 v{VT + 5}, 7, v{VT + 5}
v_lshl_add_u32 v{VT + 4}, v{VT + 5}, 4, v{VT + 4}
v_add_u32 v{VRW}, s{s_m4}, v{VT + 4}
v_xor_b32 v{VRW + 1}, 32, v{VRW}
v_xor_b32 v{VRW + 2}, 64, v{VRW}
v_xor_b32 v{VRW + 3}, 0x60, v{VRW}
v_lshrrev_b32 v{VT + 4}, 3, v0
v_and_b32 v{VT + 5}, 7, v0
v_lshlrev_b32 v{VT + 6}, 10, v{VT + 4}
v_lshl_add_u32 v{VOUT}, v{VT + 5}, 4, v{VT + 6}
v_lshlrev_b32 v{VT + 5}, 1, v{VT + 5}
v_and_b32 v{VT + 6}, 7, v{VT + 4}
v_xor_b32 v{VT + 5}, v{VT + 5}, v{VT + 6}
v_and_b32 v{VT + 6}, 15, v{VT + 4}
v_lshlrev_b32 v{VT + 6}, 8, v{VT + 6}
v_lshl_add_u32 v{VT + 5}, v{VT + 5}, 4, v{VT + 6}
v_lshrrev_b32 v{VT + 4}, 4, v{VT + 4}
v_lshl_add_u32 v{VRR}, v{VT + 4}, 14, v{VT + 5}
v_xor_b32 v{VRR + 1}, 16, v{VRR}
v_and_b32 v{VT + 7}, 31, v{VL}
v_lshlrev_b32 v{VT + 7}, 2, v{VT + 7}
s_lshl_b32 s{s_t0}, s{s_tt}, 16
s_lshl_b32 s{s_t1}, s{s_ct}, 7
s_add_u32 s{s_t0}, s{s_t0}, s{s_t1}
s_add_u32 s{s_t1}, s{s_t0}, 32768
s_lshl_b32 s{s_t3}, s{s_tt}, 8
s_add_u32 s{s_t3}, s{s_t3}, {GATE}""".split("\n"))
    g.puts(setup)
    gate = I(f"""v_mul_f32 v{VGT}, -v{VGT}, v{VC + 2}
v_mul_f32 v{VGT + 1}, -v{VGT + 1}, v{VC + 2}
v_exp_f32 v{VGT}, v{VGT}
v_exp_f32 v{VGT + 1}, v{VGT + 1}
v_add_f32 v{VGT}, 1.0, v{VGT}
v_add_f32 v{VGT + 1}, 1.0, v{VGT + 1}
v_rcp_f32 v{VGT}, v{VGT}
v_rcp_f32 v{VGT + 1}, v{VGT + 1}
v_sub_f32 v{VGT + 2}, 1.0, v{VGT}
v_sub_f32 v{VGT + 3}, 1.0, v{VGT + 1}""".split("\n"))
    for k in range(22):
        if k == pubk:
            g.puts(publish)
        if k == max(kc1 - 4, pubk):
            g.puts(g.poll_issue(VPOLL, sWS, "s14"))
        if k == kc2 - 4:
            g.puts(g.poll_issue(VPOLL, sWS, "s16"))
        if k == kc1:
            g.puts(g.poll_check(VPOLL, sWS, "s14", 0x3f, 2))
            g.lq.add([], f"buffer_load_dword v{VGT}, v{VT + 7}, {srd(sWS)}, s{s_t3} offen sc1", "gate")
            g.lq.add([], f"buffer_load_dword v{VGT + 1}, v{VT + 7}, {srd(sWS)}, s{s_t3} offen offset:128 sc1", "gate")
            add_act(g, 12, 22)
        if k == kc2:
            g.puts(g.poll_check(VPOLL, sWS, "s16", 0xf, 2))
            add_act(g, 22, 30, [0])
            add_act(g, 22, 30, [1])
        if k in (1, 4, 5, 12, 14, 21):
            g.puts(g.fs())
        g.force(f"act{k}_1")
        mf = [mfma(AB + 32 * s + 16 * c, frag(k, c), ar(areg(k, s), 4), k > 0) for s in range(2) for c in range(2)]
        rd = reads(k + 1)
        if reads(k):
            g.wait(lgkm0=True)
        for i, m in enumerate(mf):
            S(m)
            if i == 0 and rd and (k + 1) % 2 == 0:
                g.wait(vm_tag=f"W{(k + 1) // 2}")
            if i < 2:
                for r in rd[2 * i:2 * i + 2]:
                    S(r)
                if not rd:
                    g.loads(1)
            else:
                if i == 3:
                    g.bdone = k
                g.loads(2 if i == 2 else 1)
                if k == 20:
                    g.puts(gate[5 * (i - 2):5 * (i - 1)])
    scale = [f"v_mul_f32 v{AB + 32 * s + i}, v{AB + 32 * s + i}, v{VGT + 2 + s}" for s in range(2) for i in range(32)]

    def comb(s):
        L = []
        for c in range(2):
            for q in range(4):
                b = 32 * s + 16 * c + 4 * q
                if s == 0:
                    u = [f"v_fmac_f32 v{AB + b + i}, v{AA + b + i}, v{VGT}" for i in range(4)]
                else:
                    u = [f"v_pk_fma_f32 {vr(AB + b + 2 * i, 2)}, {vr(AA + b + 2 * i, 2)}, {vr(VGT, 2)}, {vr(AB + b + 2 * i, 2)} op_sel:[0,1,0] op_sel_hi:[1,1,1]" for i in range(2)]
                L.append(u + [f"ds_write_b128 v{VRW + q}, {vr(AB + b, 4)} offset:{s * 32768 + c * 128}"])
        return L
    c0 = comb(0)
    for s in range(2):
        n = 0
        for k in range(22, 30):
            g.force(f"act{k}_{s}")
            for c in range(2):
                S(mfma(AA + 32 * s + 16 * c, frag(k, c), ar(areg(k, s), 4), k > 22))
                g.loads(1)
                if (s == 0 and n >= 2) or (s == 1 and n < 3):
                    for x in scale[:4]:
                        S(x)
                    scale = scale[4:]
                if s == 1 and n >= 3 and c0 and (n % 2 == 1 or n >= 12):
                    for x in c0.pop(0):
                        S(x)
                n += 1
    assert not g.lq.q and not scale and not c0
    g.stamp()
    R0, R1 = AA, AB

    def rds(h, R):
        return [f"ds_read_b128 {vr(R + 8 * wv + 4 * q, 4)}, v{VRR + q} offset:{wv * 4096 + h * 32768}" for wv in range(4) for q in range(2)]

    def fin(h, b):
        L = [f"v_pk_add_f32 {vr(b + 2 * i, 2)}, {vr(b + 2 * i, 2)}, {vr(b + 8 + 2 * i, 2)}" for i in range(4)]
        L += [f"v_pk_add_f32 {vr(b + 16 + 2 * i, 2)}, {vr(b + 16 + 2 * i, 2)}, {vr(b + 24 + 2 * i, 2)}" for i in range(4)]
        L += [f"v_pk_add_f32 {vr(b + 2 * i, 2)}, {vr(b + 2 * i, 2)}, {vr(b + 16 + 2 * i, 2)}" for i in range(4)]
        L += [f"v_cvt_pk_bf16_f32 v{b + 8 + i}, v{b + 2 * i}, v{b + 2 * i + 1}" for i in range(4)]
        L += [f"buffer_store_dwordx4 {vr(b + 8, 4)}, v{VOUT}, {srd(sOUT)}, s{s_t0 + h} offen {OPT['outfl']}".strip()]
        return L
    g.wait(lgkm0=True)
    S("s_barrier")
    for x in rds(0, R0):
        S(x)
    for u in comb(1):
        for x in u:
            S(x)
    for x in fin(0, R0):
        S(x)
    g.wait(lgkm0=True)
    S("s_barrier")
    for x in rds(1, R1) + fin(1, R1):
        S(x)
    finish(g)


def finish(g):
    S = g.S
    if OPT["diag"]:
        a, b, mult, unit = OPT["diag"].split(":")
        S.wait(vm0=True)
        g.stamp()
        if a == "entry":
            S("s_mov_b32 s18, s3")
        if b == "skew":
            S(f"""buffer_load_dword v{VPD}, v{VFLAG}, {srd(sDBG)}, 0 offen offset:64 sc1
s_waitcnt vmcnt(0)
v_readfirstlane_b32 s20, v{VPD}
s_nop 3
s_sub_u32 s21, s20, s18
s_abs_i32 s21, s21
s_add_u32 s20, s18, s21""")
        if OPT["drole"] and g.kind not in OPT["drole"].split(","):
            S("s_mov_b32 s20, s18")
        S(f"s_sub_u32 s22, s20, s18\ns_mul_i32 s22, s22, {mult}")
        if unit == "c":
            S("s_lshr_b32 s22, s22, 4")
        S(f"""s_min_u32 s22, s22, 20000
s_memrealtime s[24:25]
s_waitcnt lgkmcnt(0)
L_dg_{g.kind}:
s_memrealtime s[26:27]
s_waitcnt lgkmcnt(0)
s_sub_u32 s26, s26, s24
s_cmp_lt_u32 s26, s22
s_cbranch_scc1 L_dg_{g.kind}""")
    if OPT["stamps"]:
        S.wait(vm0=True)
        g.stamp(True)
        S(f"""s_memrealtime s[{s_stamp}:{s_stamp + 1}]
s_waitcnt lgkmcnt(0)
v_writelane_b32 v{VST}, s{s_stamp}, 30
v_writelane_b32 v{VST}, s3, 31
s_lshl_b32 s{s_t0}, s2, 2
s_add_u32 s{s_t0}, s{s_t0}, s{s_w}
s_lshl_b32 s{s_t0}, s{s_t0}, 7
s_add_u32 s{s_t0}, s{s_t0}, {STAMP}
v_lshlrev_b32 v{VT}, 2, v{VL}
s_mov_b64 exec, 0xffffffff
buffer_store_dword v{VST}, v{VT}, {srd(sWS)}, s{s_t0} offen""")
    S("s_endpgm")


def publish(tag, stage):
    return [Wait(tag), Ins(f"buffer_store_dword v{VONE if stage == 1 else VTWO}, v{VFLAG}, {srd(sWS)}, s17 offen sc1", "flag")]


def own_flag(g):
    g.S(f"""s_lshl_b32 s17, s{s_j}, 4
s_add_u32 s17, s17, s{s_tb}
s_lshl_b32 s17, s17, 2
s_add_u32 s17, s17, s{s_w}
s_lshl_b32 s17, s17, 7
s_add_u32 s17, s17, {FLG + (0x10000 if g.kind == "Q" else 0)}""")


def act_base(g):
    g.S(f"s_lshl_b32 s{s_act}, s{s_tb}, 1\ns_add_u32 s{s_act}, s{s_act}, s{s_th}\ns_mul_i32 s{s_act}, s{s_act}, {118 * 2048}")


def jct(g, dst):
    g.S(f"s_lshl_b32 s{dst}, s{s_j}, 1\ns_add_u32 s{dst}, s{dst}, s{s_ch}\ns_lshl_b32 s{dst}, s{dst}, 1\ns_add_u32 s{dst}, s{dst}, s{s_th}")


def ffn_common(g, n):
    g.S(f"""v_lshl_add_u32 v{VT + 8}, v{VT + 3}, 1, v{VT + 2}
v_mul_u32_u24 v{VT + 8}, {n * 512}, v{VT + 8}
v_add_u32 v{VT + 8}, v{VT + 8}, v{VT + 6}""")


def ffn_addr(g, dst, idx, base):
    g.S(f"""s_lshr_b32 s{s_t1}, s{idx}, 1
s_lshl_b32 s{s_t1}, s{s_t1}, 8
s_and_b32 s{s_t2}, s{idx}, 1
s_lshl_b32 s{s_t2}, s{s_t2}, 5""")
    if base:
        g.S(f"s_add_u32 s{s_t1}, s{s_t1}, {base}")
    g.S(f"v_xor_b32 v{dst}, s{s_t2}, v{VT + 8}\nv_add_u32 v{dst}, s{s_t1}, v{dst}")


def lines(txt):
    return I([x.strip() for x in txt.split("\n") if x.strip()])


def gen_q():
    g = Gen("Q")
    S, lq = g.S, g.lq
    head(g)
    WR = QWR
    unit_start(S, s_us, f"s{s_j}", True, s_t0)
    S(f"s_lshl_b32 s{s_fb}, s{s_us}, 5\ns_lshl_b32 s{s_m8}, s{s_w}, 13")
    quad_parts(g)
    voff_n2(g, VQ, 2, 3072, True, s_qb)
    voff_ffn3(g)
    mk_srds(g, [sG, sU])
    S(f"s_mov_b64 s[{sQKV}:{sQKV + 1}], s[6:7]")

    def add_w(j):
        w = WR[j % 3]
        add_rows(g, f"K{j}", VQ, 2, sQKV, 3072, s_o1, s_m8, w, (w, w + 32768), newkb=j if j < 3 else None)
        add_rows(g, f"K{j}", VG, 3, sG, 2752, s_o2, s_m8, w + 2048, None)
        add_rows(g, f"K{j}", VU, 3, sU, 2752, s_o2, s_m8, w + 5120, None, newso=False)
    for j in range(8):
        if j >= 3:
            add_x(g, j, XR[j % 3])
        add_w(j)
    g.force("K0")
    mk_srds(g, [sWS, sPHI, sDBG, sWO, sWD, sOUT])
    phi_load(g)
    misc_setup(g)
    S(f"""v_lshl_add_u32 v{VWA}, v{VT + 2}, 10, v{VT + 6}
s_lshl_b32 s{s_t0}, s{s_ch}, 8
s_add_u32 s{s_t0}, s{s_t0}, {WR[0]}
v_add_u32 v{VWA}, s{s_t0}, v{VWA}""")
    ffn_common(g, 3)
    S(f"s_mul_i32 s{s_t0}, s{s_ch}, 3")
    for b in range(3):
        if b:
            S(f"s_add_u32 s{s_t0}, s{s_t0}, 1")
        ffn_addr(g, VWA + 1 + b, s_t0, WR[0] + 2048)
    for b in range(4):
        S(f"v_add_u32 v{VWA + 4 + b}, 0x10000, v{VWA + b}")
    consts(g)
    pb_setup(g)
    act_base(g)
    own_flag(g)
    jct(g, s_t3)
    S(f"s_lshl_b32 s15, s{s_j}, 6\ns_add_u32 s15, s15, s{s_w}\ns_lshl_b32 s15, s15, 7\ns_add_u32 s15, s15, {FLG}")
    VA0, VA1, VA2, VA3 = VWA + 8, VWA + 9, VWA + 10, VWA + 11
    s_h0, s_h1, s_ob = s_m6, s_kb, s_fb
    S(f"""s_lshl_b32 s{s_xb}, s{s_t3}, 14
s_add_u32 s{s_xb}, s{s_xb}, {KVP}
s_lshl_b32 s{s_qb}, s{s_t3}, 11
s_add_u32 s{s_qb}, s{s_qb}, {ZP}
s_mul_i32 s{s_t0}, s{s_ch}, 3
s_add_u32 s{s_t0}, s{s_t0}, s{s_us}
s_lshl_b32 s{s_t0}, s{s_t0}, 11
s_add_u32 s{s_h0}, s{s_t0}, s{s_act}
s_add_u32 s{s_h1}, s{s_h0}, 4096
s_lshr_b32 s{s_t0}, s{s_m4}, 1
s_add_u32 s{s_t0}, s{s_t0}, {MISC + 4096}
v_add_u32 v{VA0}, s{s_t0}, v{VL16}
v_lshrrev_b32 v{VA1}, 5, v{VL}
v_lshlrev_b32 v{VA1}, 10, v{VA1}
v_bfe_u32 v{VA2}, v{VL}, 2, 2
v_lshl_add_u32 v{VA1}, v{VA2}, 7, v{VA1}
v_bfe_u32 v{VA2}, v{VL}, 4, 1
v_lshl_add_u32 v{VA1}, v{VA2}, 5, v{VA1}
v_and_b32 v{VA2}, 3, v{VL}
v_lshl_add_u32 v{VA1}, v{VA2}, 3, v{VA1}
v_add_u32 v{VA1}, s{s_t0}, v{VA1}
s_lshr_b32 s{s_t1}, s{s_m4}, 2
s_add_u32 s{s_t1}, s{s_t1}, {MISC + 12288}
v_add_u32 v{VA3}, s{s_t1}, v{VL16}
v_and_b32 v{VA2}, 0xfffffbff, v{VA3}
s_lshl_b32 s{s_t2}, s{s_j}, 1
s_add_u32 s{s_t2}, s{s_t2}, s{s_ch}
s_lshl_b32 s{s_t2}, s{s_t2}, 12
s_add_u32 s{s_t2}, s{s_t2}, {86 * 2048}
s_add_u32 s{s_ob}, s{s_t2}, s{s_act}""")
    g.loads(8)
    g.stamp()
    g.wait(vm_tag="K0")
    S("s_barrier")
    g.stamp()

    def reads(ks):
        j, kk = ks // 4, ks % 4
        buf = ks % 2
        fx, fw = VFR + 8 * buf, VFR + 16 + 16 * buf
        o = WR[j % 3] - WR[0] + kk * 8192
        st = 4 if o >= 65536 else 0
        o %= 65536
        xr = [f"ds_read_b128 {vr(fx + 4 * s, 4)}, v{VXA + kk} offset:{XR[j % 3] + 4096 * s}" for s in range(2)]
        wr = [[f"ds_read_b64_tr_b16 {vr(fw + 4 * b + 2 * t, 2)}, v{VWA + st + b} offset:{o + t * (512 if b == 0 else 768)}" for t in range(2)] for b in range(4)]
        return [xr[0], xr[1]] + wr[0] + wr[1] + wr[2] + wr[3]

    for r in reads(0):
        S(r)
    g.w2cand = lambda: [16384 * i for i in range(9)]
    for n in range(15):
        add_w2(g, n)
    PA = 192
    ZR = VFR + 40
    for ks in range(32):
        j, kk = ks // 4, ks % 4
        buf = ks % 2
        fx, fw = VFR + 8 * buf, VFR + 16 + 16 * buf
        mf = [mfma(ACC + (2 * b + s) * 16, vr(fw + 4 * b, 4), vr(fx + 4 * s, 4), ks > 0) for b in range(4) for s in range(2)]
        bar = None
        if kk == 3:
            bar = ([f"X{j + 1}", f"K{j + 1}"] if j < 7 else None, [(XR[j % 3], XR[j % 3] + 16384), (WR[j % 3], WR[j % 3] + 32768)])
        ex = []
        if ks == 10:
            ex = g.poll_issue(VPK, sDBG, "0")
        if ks == 18:
            ex = g.poll_check(VPK, sDBG, "0", 0xf, 1, 16) + lines(f"""v_lshlrev_b32 v{VPK}, 9, v{VL}
v_cmp_gt_u32 vcc, 16, v{VL}
v_cndmask_b32 v{VPK}, v{VPOLL}, v{VPK}, vcc""")
        if ks == 18:
            g.puts(ex)
            ex = []
        if ks in (4, 5, 6):
            ex = phi_read(g)[5 * (ks - 4):5 * (ks - 3)]
        if ks == 32 + int(OPT["kvp"]):
            ex = g.poll_issue(VPK, sWS, "s15")
        nmv = {29: 1, 30: 1, 31: 4}.get(ks, 0)
        kstep(g, mf, reads(ks + 1) if ks < 31 else [], 3, barrier=bar, extra=ex, late_reads=lambda: stage_moves(g, nmv, force=True))
    g.stamp()
    def add_partials():
        rest = lq.q
        k = 0
        while k < len(rest) and rest[k][0] is not None:
            k += 1
        lq.q = rest[:k]
        for i in range(2):
            lq.add([], f"buffer_load_dwordx4 {vr(ZR + 4 * i, 4)}, v{VL16}, {srd(sWS)}, s{s_qb} offen offset:{1024 * i} sc1", "zl")
        for t in range(16):
            pre = [f"s_add_u32 s{s_xb}, s{s_xb}, 4096"] if (t % 4 == 0 and t) else []
            lq.add(pre, f"buffer_load_dwordx4 {ar(PA + 4 * t, 4)}, v{VL16}, {srd(sWS)}, s{s_xb} offen offset:{1024 * (t % 4)} sc1", "pl")
        lq.q += rest[k:]
    kvp, kvc = int(OPT["kvp"]), int(OPT["kvc"])
    QB = VFR + 24
    PQ = ACC + 32
    main, pend = [], []
    for b in range(3):
        for s in range(2):
            n = 2 * b + s
            O = ACC + (2 * (b + 1) + s) * 16
            main += I(gelu_block(O, VFR, VFR + 8, O))
            if n == kvp:
                main += g.poll_issue(VPK, sWS, "s15")
            so, off = (s_h0, n * 1024) if n < 4 else (s_h1, (n - 4) * 1024)
            pend += I([f"buffer_store_dwordx4 {vr(O, 4)}, v{VL16}, {srd(sWS)}, s{so} offen offset:{off} sc1"], "hst")
            if str(n) in OPT["qst"]:
                main.append(Event(lambda p=pend: g.puts(p)))
                pend = []
            if n == 0:
                main.append(Wait(lgkm0=True))
            main += g.fs()
            if n == kvc:
                main += g.poll_check(VPK, sWS, "s15", 0xffff) + [Event(add_partials)] + g.fs()
    weave(g, main, int(OPT['qev']))
    g.stamp()
    E0, E1 = ACC + 96, ACC + 112
    PH = ACC
    M0, M1 = VT, VT + 2
    PS, ZA = VFR, VFR + 16
    KA = VFR + 32
    sm = [zipl(softmax_inst(PQ + 16 * (2 * s), E0, M0, PH + 16 * s), softmax_inst(PQ + 16 * (2 * s + 1) + 8, E1, M1, PH + 16 * s + 8)) for s in range(2)]
    ZF = VQ
    PX = PS
    ND = [[PQ, PQ + 16], [VFR + 16, E0]]
    sm0, sm1 = I(sm[0]), I(sm[1])
    r = stage_moves(g, 6, force=True) + [Wait(lgkm0=True)]
    for s2 in range(2):
        for h in range(2):
            r += I([f"v_cvt_pk_bf16_f32 v{QB + 8 * s2 + 4 * h + i}, v{ACC + 16 * s2 + 8 * h + 2 * i}, v{ACC + 16 * s2 + 8 * h + 2 * i + 1}" for i in range(4)])
            r += I([mfma(PQ + 16 * (2 * s2 + h), vr(VPHI, 4), vr(QB + 8 * s2 + 4 * h, 4), False)])
    red = [Wait("pl", wr=[("a", PA + i) for i in range(64)] + [("v", ZR + i) for i in range(8)])] + g.fs()
    red += lines(f"ds_write_b128 v{VA0}, {vr(ZR, 4)}\nds_write_b128 v{VA0}, {vr(ZR + 4, 4)} offset:1024")
    red += [Wait(lgkm0=True)]
    red += I([f"ds_read_b64_tr_b16 {vr(ZF + 4 * h + 2 * t, 2)}, v{VA1} offset:{64 * h + 512 * t}" for h in range(2) for t in range(2)])
    red += I([mfma(PS, vr(VID, 4), ar(PA + 4 * t, 4), t > 0) for t in range(16)])
    for h in range(2):
        red += I([mfma(ZA, vr(ZF + 4 * h, 4), vr(VONES, 4), False)])
        red += I([f"v_cvt_pk_bf16_f32 v{KA + 8 * h + i}, v{ZA + 2 * i}, v{ZA + 2 * i + 1}" for i in range(8)])
    red += I([f"v_cvt_pk_bf16_f32 v{PS + 8 + i}, v{PS + 2 * i}, v{PS + 2 * i + 1}" for i in range(4)])
    red += I([f"ds_write_b128 v{VA3}, {vr(PS + 8, 4)}"])
    early = OPT["redearly"]
    r += (red if early else []) + sm0
    r, t1 = sched(r, tries=200)
    acc_, cut = 0, len(r)
    for k_, it in enumerate(r):
        acc_ += cost_of(it)
        if acc_ >= int(OPT["hpub"]):
            cut = k_
            break
    r = r[:cut] + g.fs() + publish("hst", 1) + g.fs() + r[cut:]
    weave(g, r, int(OPT["qev"]))
    g.puts(g.fs())
    r = [] if early else red
    r += [Wait(lgkm0=True)] + lines(f"s_barrier\nds_read_b128 {vr(PX, 4)}, v{VA2}\nds_read_b128 {vr(PX + 4, 4)}, v{VA2} offset:1024")
    r += I([f"v_cndmask_b32 v{KA + i}, v{PX + i}, v{KA + i}, s[{s_mk0}:{s_mk0 + 1}]" for i in range(8)])
    r += I([f"v_cndmask_b32 v{KA + 8 + i}, v{KA + 8 + i}, v{PX + i}, s[{s_mk0}:{s_mk0 + 1}]" for i in range(8)])

    def out(s):
        L = []
        for h in range(2):
            for jj in range(2):
                L += I([mfma(ND[s][h], vr(KA + 8 * h + 4 * jj, 4), vr(PH + 16 * s + 8 * h + 4 * jj, 4), jj > 0)])
        for h in range(2):
            d = ND[s][h]
            num, den = (d, d + 8) if h == 0 else (d + 8, d)
            O = den + 4
            L += I([f"v_add_f32 v{den}, v{den}, v{VC + 3}", f"v_rcp_f32 v{den}, v{den}"])
            if s == 0:
                L += I([f"v_mul_f32 v{num + i}, v{num + i}, v{den}" for i in range(8)])
            else:
                L += I([f"v_pk_mul_f32 {vr(num + 2 * i, 2)}, {vr(num + 2 * i, 2)}, {vr(den, 2)} op_sel_hi:[1,0]" for i in range(4)])
            L += I([f"v_cvt_pk_bf16_f32 v{O + i}, v{num + 2 * i}, v{num + 2 * i + 1}" for i in range(4)])
            L += I([f"buffer_store_dwordx4 {vr(O, 4)}, v{VL16}, {srd(sWS)}, s{s_ob} offen offset:{2048 * h + 1024 * s} sc1"], "ost")
        return L
    o0, o1 = out(0), out(1)
    st = [x for x in o0 + o1 if x.kind == "vmem"]
    r += sm1 + [x for x in o0 + o1 if x.kind != "vmem"]
    r, t2 = sched(r, tries=200)
    print("Q sched est", t1, t2)
    acc_, cut = 0, 0
    for k_ in range(len(r) - 1, -1, -1):
        acc_ += cost_of(r[k_])
        if acc_ >= int(OPT["qhp"]):
            cut = k_
            break
    r = r[:cut] + g.poll_issue(VPOLL, sWS, "s16") + r[cut:] + st
    weave(g, r, int(OPT["qev"]))
    g.stamp()
    pub = publish("ost", 2)
    g.puts(g.poll_check(VPOLL, sWS, "s16", 0xf, first=pub[1].text))
    add_act(g, 0, 12)
    g.stamp()
    phase_b(g, pub)
    return g


def gen_kv(light):
    g = Gen("KL" if light else "KH")
    S, lq = g.S, g.lq
    head(g)
    NCH = 2 if light else 3
    FS = NCH * 8192
    WR = KWR
    mk_srds(g, [sWS, sG, sU, sPHI, sDBG, sWO, sWD, sOUT, sGW])
    if light:
        zero_flags(g)
    add_kv(g, 1)
    for j in range(2, 8):
        add_x(g, j, XR[j % 4])
        add_kv(g, j)
    unit_start(S, s_us, f"s{s_j}", False, s_t0)
    S(f"s_lshr_b32 s{s_fb}, s{s_us}, 1\ns_lshl_b32 s{s_fb}, s{s_fb}, 6\ns_mul_i32 s{s_m6}, s{s_w}, {NCH * 2048}")
    quad_parts(g)
    if light:
        voff_n2(g, VG, 2, 2752, True, s_fb)
        S(f"v_xor_b32 v{VU}, 32, v{VG}\nv_xor_b32 v{VU + 1}, 32, v{VG + 1}")
    else:
        voff_ffn3(g)
    misc_setup(g)
    VXB = VFR + 44
    S(f"s_lshl_b32 s{s_t0}, s{s_ch}, 12")
    for i in range(4):
        S(f"v_add_u32 v{VXA + i}, s{s_t0}, v{VXA + i}\nv_xor_b32 v{VXB + i}, 0x1000, v{VXA + i}")
    VKA = VWA + 9
    S(f"""v_lshl_add_u32 v{VKA}, v{VT + 2}, 11, v{VT + 6}
s_lshl_b32 s{s_t0}, s{s_ch}, 8
s_add_u32 s{s_t0}, s{s_t0}, {WR[0]}
v_add_u32 v{VKA}, s{s_t0}, v{VKA}""")
    ffn_common(g, NCH)
    S(f"s_and_b32 s{s_t3}, s{s_us}, 1\ns_lshl_b32 s{s_t0}, s{s_ch}, 1\ns_add_u32 s{s_t0}, s{s_t0}, s{s_t3}")
    for b in range(2 if light else 3):
        if b == 1:
            S(f"s_add_u32 s{s_t0}, s{s_t0}, 1")
        if b == 2:
            S(f"s_add_u32 s{s_t0}, s{s_t3}, 4")
        ffn_addr(g, VWA + b, s_t0, 0)
        S(f"v_add_u32 v{VWA + 3 + b}, 0x10000, v{VWA + b}")
        if light:
            S(f"v_add_u32 v{VWA + 6 + b}, 0x20000, v{VWA + b}")
    if light:
        S(f"v_lshlrev_b32 v{VWA + 10}, 4, v{VT + 2}")
    consts(g)
    pb_setup(g)
    act_base(g)
    own_flag(g)
    VTW = VFR + 40
    if OPT["touch"]:
        S(f"""s_and_b32 s{s_t0}, s2, 63
s_lshr_b32 s{s_t1}, s2, 7
s_lshl_b32 s{s_t1}, s{s_t1}, 6
s_add_u32 s{s_t0}, s{s_t0}, s{s_t1}
s_lshl_b32 s{s_t0}, s{s_t0}, 2
s_add_u32 s{s_t0}, s{s_t0}, s{s_w}
s_mul_i32 s{s_t1}, s{s_t0}, {22 * 128}
s_lshl_b32 s{s_t0}, s{s_t0}, 10
v_mov_b32 v{VT}, {OOB}
v_lshl_add_u32 v{VT + 1}, v{VL}, 7, s{s_t1}
s_mov_b64 s[18:19], 0x3fffff
s_mov_b64 s[20:21], 0xff
v_lshl_add_u32 v{VT + 2}, v{VL}, 7, s{s_t0}
v_cndmask_b32 v{VTW}, v{VT}, v{VT + 1}, s[18:19]
v_cndmask_b32 v{VTW + 1}, v{VT}, v{VT + 2}, s[20:21]""")
        lq.add([], f"buffer_load_dword v{VTW + 2}, v{VTW + 1}, {srd(sWO)}, 0 offen", "touch")
        lq.add([], f"buffer_load_dword v{VTW + 3}, v{VTW}, {srd(sWD)}, 0 offen", "touch")
    if OPT["diag"] and "skew" in OPT["diag"] and not light:
        S(f"s_or_b32 s{s_t0}, s2, s{s_w}\ns_cbranch_scc1 L_nsk\nv_mov_b32 v{VT}, s3")
        S(f"buffer_store_dword v{VT}, v{VFLAG}, {srd(sDBG)}, 0 offen offset:64 sc1", count=False)
        S("L_nsk:")
    g.stamp()
    g.force("X1")
    phi_load(g)
    if light:
        S(f"s_lshr_b32 s{s_t1}, s{s_m4}, 2\ns_add_u32 m0, s{s_t1}, {MISC + 12288}\ns_mov_b32 s{s_t0}, 0")
        S(dma(VL16, sGW, s_t0, 0), tag="gw")
        S(f"s_add_u32 s15, s{s_t1}, {MISC + 12288}\nv_add_u32 v{VWA + 10}, s15, v{VWA + 10}")
    g.loads(4)
    g.wait(vm_tag=["X0", "K0"])
    S("s_barrier")
    g.stamp()

    xa = lambda ks, s: 8 * ks + 4 * s

    def reads1(ks):
        j, kk = ks // 4, ks % 4
        fw = VFR + 8 * (ks % 2)
        o = WR[j % 4] - WR[0] + kk * 4096
        xr = [f"ds_read_b128 {ar(xa(ks, s), 4)}, v{(VXA, VXB)[s] + kk} offset:{XR[j % 4]}" for s in range(2)]
        wr = [[f"ds_read_b64_tr_b16 {vr(fw + 4 * b + 2 * t, 2)}, v{VKA} offset:{o + 512 * b + 1024 * t}" for t in range(2)] for b in range(2)]
        return wr[0] + [xr[0], xr[1]] + wr[1]

    K = 1024
    if light:
        FR = [128 * K, 0, 64 * K, 16 * K, 80 * K, 32 * K, 96 * K, 48 * K]
        order = [("F", j) for j in range(8)] + [("W", i) for i in range(15)]
        g.w2cand = lambda: [16 * K * i for i in range(9)]
    else:
        FR = [0, 64 * K, 24 * K, 88 * K] * 2
        order = [("W", 0), ("F", 0), ("F", 1), ("F", 2), ("F", 3), ("W", 1), ("W", 2), ("F", 4), ("W", 3), ("F", 5), ("F", 6), ("F", 7)] + [("W", i) for i in range(4, 15)]
        g.w2cand = lambda: [128 * K, 48 * K, 112 * K] + ([16 * K * i for i in range(9)] if lq.issued("F7") else [])
    for what, j in order:
        if what == "W":
            add_w2(g, j)
            continue
        f = FR[j]
        add_rows(g, f"F{j}", VG, NCH, sG, 2752, s_o2, s_m6, f, (f, f + FS), newkb=j, kreg=s_kb)
        add_rows(g, f"F{j}", VU, NCH, sU, 2752, s_o2, s_m6, f + NCH * 1024, None, newso=False)
    for r in reads1(0):
        S(r)
    KA_, VA_ = ACC, ACC + 32
    XCH = MISC + 4096
    VA0, VA1, VA2, VA3 = VX, VX + 1, VX + 2, VX + 3
    late = phi_read(g) + lines(f"""s_lshl_b32 s{s_t3}, s{s_j}, 2
s_add_u32 s{s_t3}, s{s_t3}, s{s_w}
s_lshl_b32 s{s_o0}, s{s_t3}, 4
s_add_u32 s{s_o0}, s{s_o0}, s{s_tb}
s_lshl_b32 s{s_xb}, s{s_o0}, 7
s_add_u32 s{s_xb}, s{s_xb}, {ZP}
s_lshl_b32 s{s_o0}, s{s_o0}, 10
s_add_u32 s{s_o0}, s{s_o0}, {KVP}
s_sub_u32 s{s_mk1}, 0, s{s_th}
s_mov_b32 s{s_mk1 + 1}, s{s_mk1}
s_lshr_b32 s{s_t0}, s{s_m4}, 1
s_add_u32 s{s_t0}, s{s_t0}, {XCH}
v_add_u32 v{VA0}, s{s_t0}, v{VL16}
v_xor_b32 v{VA1}, 0x800, v{VA0}
s_lshl_b32 s{s_t1}, s{s_w}, 8
s_add_u32 s{s_t1}, s{s_t1}, {MISC}
v_lshl_add_u32 v{VA2}, v{VL}, 2, s{s_t1}
v_xor_b32 v{VA3}, 0x100, v{VA2}""")
    for ks in range(32):
        j, kk = ks // 4, ks % 4
        fw = VFR + 8 * (ks % 2)
        mf = [mfma(KA_ + 16 * s, vr(fw, 4), ar(xa(ks, s), 4), ks > 0) for s in range(2)] + \
             [mfma(VA_ + 16 * s, ar(xa(ks, s), 4), vr(fw + 4, 4), ks > 0) for s in range(2)]
        bar = None
        if kk == 3:
            bar = ([f"X{j + 1}", f"K{j + 1}"] if j < 7 else None, [(XR[j % 4], XR[j % 4] + 16384), (WR[j % 4], WR[j % 4] + 16384)])
        nl = 4 if ks < 4 else 0 if ks >= int(OPT['s1stop']) else 2
        if ks == 4 and light:
            set_ready(g)
        ex = []
        if ks >= 26:
            assert lq.issued("K7")
            ex, late = late[:6], late[6:]
        kstep(g, mf, reads1(ks + 1) if ks < 31 else [], nl, barrier=bar, wait0=OPT['w0'], extra=ex)
    assert not late
    g.stamp()
    KB = VFR
    VB = VFR + 16
    PH = VFR + 32
    PK = ACC + 64
    E0, E1 = ACC, ACC + 16
    TR0, TR1 = ACC + 32, ACC + 48
    M0, M1 = VT, VT + 2
    main = []
    for s in range(2):
        for h in range(2):
            for i in range(4):
                main.append(f"v_cvt_pk_bf16_f32 v{KB + 8 * s + 4 * h + i}, v{KA_ + 16 * s + 8 * h + 2 * i}, v{KA_ + 16 * s + 8 * h + 2 * i + 1}")
            main.append(mfma(PK + 16 * (2 * s + h), vr(VPHI, 4), vr(KB + 8 * s + 4 * h, 4), False))
    for s in range(2):
        for i in range(8):
            main.append(f"v_cvt_pk_bf16_f32 v{VB + 8 * s + i}, v{VA_ + 16 * s + 2 * i}, v{VA_ + 16 * s + 2 * i + 1}")
    PT = KB
    D0, D1 = PK, PK + 16
    ZA = [VT + 4, VT + 6]
    for s in range(2):
        main += zipl(softmax_inst(PK + 16 * (2 * s), E0, M0, PH), softmax_inst(PK + 16 * (2 * s + 1) + 8, E1, M1, PH + 8))
        for h, TR in enumerate((TR0, TR1)):
            for jj in range(2):
                main.append(mfma(TR, vr(PH + 8 * h + 4 * jj, 4), vr(VID + 4 * jj, 4), jj > 0))
        for h, TR in enumerate((TR0, TR1)):
            for i in range(8):
                main.append(f"v_cvt_pk_bf16_f32 v{PT + 8 * h + i}, v{TR + 2 * i}, v{TR + 2 * i + 1}")
            for jj in range(2):
                main.append(mfma((D0, D1)[h], vr(PT + 8 * h + 4 * jj, 4), vr(VB + 8 * s + 4 * jj, 4), s > 0 or jj > 0))
            for i in range(8):
                if s == 0 and i == 0:
                    continue
                a = vr(TR, 2) if (s == 0 and i == 1) else vr(ZA[h], 2)
                main.append(f"v_pk_add_f32 {vr(ZA[h], 2)}, {a}, {vr(TR + 2 * i, 2)}")
    main += f"""v_add_f32 v{ZA[0]}, v{ZA[0]}, v{ZA[0] + 1}
v_add_f32 v{ZA[1]}, v{ZA[1]}, v{ZA[1] + 1}
v_permlane32_swap_b32 v{ZA[0]}, v{ZA[1]}
v_add_f32 v{ZA[0]}, v{ZA[0]}, v{ZA[1]}""".split("\n")
    SN, KP = E0, E0 + 8
    main += [f"v_cndmask_b32 v{D0 + i}, v{D0 + i}, v{D1 + i}, s[{s_mk0}:{s_mk0 + 1}]" for i in range(16)]
    main += [f"v_cndmask_b32 v{SN + i}, v{D0 + 8 + i}, v{D0 + i}, s[{s_mk1}:{s_mk1 + 1}]" for i in range(8)]
    main += [f"ds_write_b32 v{VA2}, v{ZA[0]}", f"ds_write_b128 v{VA0}, {vr(SN, 4)}", f"ds_write_b128 v{VA0}, {vr(SN + 4, 4)} offset:1024"]
    KPR = VFR + 24
    main += [f"v_cndmask_b32 v{KPR + i}, v{D0 + i}, v{D0 + 8 + i}, s[{s_mk1}:{s_mk1 + 1}]" for i in range(8)]
    main, t1 = sched(I(main))
    print(g.kind, "kv sched est", t1)
    d0 = int(OPT["kvdelay"])
    g.puts(main[:d0])
    weave(g, main[d0:], int(OPT["kvev"]))
    g.puts(g.poll_issue(VPK, sDBG, "0"))
    g.wait(vm_tag="F0", lgkm0=True)
    S("s_barrier")

    NB = 2 if light else 3

    def reads2(ks):
        j, kk = ks // 4, ks % 4
        fw = VFR + 12 * (ks % 2)
        a = FR[j] + kk * NCH * 2048
        st = a // 65536
        o = a - st * 65536
        L = [f"ds_read_b64_tr_b16 {vr(fw + 4 * b + 2 * t, 2)}, v{VWA + 3 * st + b} offset:{o + t * NCH * 256}" for b in range(NB) for t in range(2)]
        if light:
            L.append(f"ds_read_b128 {vr(fw + 8, 4)}, v{VWA + 11} offset:{32 * kk}")
        return L

    def gw_addr(j):
        if light:
            S("\n".join(kb_pre(j, s_t0) + [f"v_add_u32 v{VWA + 11}, s{s_t0}, v{VWA + 10}"]))

    gw_addr(0)
    for r in reads2(0):
        S(r)
    RCV, O = VFR + 32, VFR + 40
    S(f"ds_read_b128 {vr(RCV, 4)}, v{VA1}\nds_read_b128 {vr(RCV + 4, 4)}, v{VA1} offset:1024\nds_read_b32 v{ZA[1]}, v{VA3}")
    fin = I([f"v_add_f32 v{KPR + i}, v{KPR + i}, v{RCV + i}" for i in range(8)])
    fin += I([f"v_add_f32 v{ZA[0]}, v{ZA[0]}, v{ZA[1]}", f"v_lshlrev_b32 v{O + 5}, 1, v{VL}"])
    fin += I([f"v_cvt_pk_bf16_f32 v{O + i}, v{KPR + 2 * i}, v{KPR + 2 * i + 1}" for i in range(4)])
    fin += I([f"v_cvt_pk_bf16_f32 v{O + 4}, v{ZA[0]}, v{ZA[0]}"])
    fin += I([f"buffer_store_dwordx4 {vr(O, 4)}, v{VL16}, {srd(sWS)}, s{s_o0} offen sc1",
              f"buffer_store_short v{O + 4}, v{O + 5}, {srd(sWS)}, s{s_xb} offen sc1"], "kst")
    g.stamp()
    seen = {}
    for ks in range(32):
        j, kk = ks // 4, ks % 4
        fw = VFR + 12 * (ks % 2)
        mf = [mfma(ACC + (2 * b + s) * 16, vr(fw + 4 * b, 4), ar(xa(ks, s), 4), ks > 0) for b in range(2) for s in range(2)]
        mf.append(mfma(ACC + 64, vr(fw + 8, 4), ar(xa(ks, 0), 4), ks > 0))
        bar = None
        if kk == 3:
            bar = (f"F{j + 1}" if j < 7 else None, [(FR[j], FR[j] + FS)])
            if j < 7:
                gw_addr(j + 1)
        ex = []
        if ks < 2:
            ex = fin[9 * ks:9 * ks + 9]
        if ks == int(OPT['kvpub']):
            g.puts(g.poll_check(VPK, sDBG, "0", 0xf, 1, 16))
            ex = publish("kst", 1)
        rd = reads2(ks + 1) if ks < 31 else []
        for n in range(NSTAGE):
            if n not in seen and lq.issued(f"W{W2_ORDER[n]}"):
                seen[n] = ks
        old = g.staged < 2 * NSTAGE and ks - seen.get(g.staged // 2, 99) >= int(OPT["stage_age"])
        kstep(g, mf, rd, 0 if ks < 2 else 2, barrier=bar, extra=ex, late_reads=lambda: stage_moves(g, 1, dead=8 * ks, force=old))
    g.stamp()
    print(g.kind, "staged in seg2:", g.staged, "queue left", len(lq.q))
    S(f"""s_lshl_b32 s{s_t0}, s{s_ch}, 1
s_add_u32 s{s_t0}, s{s_t0}, s{s_us}
s_lshl_b32 s{s_t0}, s{s_t0}, 11
s_add_u32 s{s_t0}, s{s_t0}, s{s_act}
s_lshl_b32 s{s_t1}, s{s_ch}, 10
s_add_u32 s{s_o0}, s{s_t0}, s{s_t1}
s_xor_b32 s{s_kb}, s{s_o0}, 1024
s_add_u32 s{s_t0}, s{s_us}, 4
s_lshl_b32 s{s_t0}, s{s_t0}, 11
s_add_u32 s{s_t0}, s{s_t0}, s{s_act}
s_add_u32 s{s_fb}, s{s_t0}, s{s_t1}""")
    main = []
    if light:
        S(f"""s_lshl_b32 s{s_t0}, s{s_tb}, 1
s_add_u32 s{s_t0}, s{s_t0}, s{s_th}
s_lshl_b32 s{s_t1}, s{s_t0}, 1
s_add_u32 s{s_t1}, s{s_t1}, s{s_ch}
s_lshl_b32 s{s_t1}, s{s_t1}, 7
s_add_u32 s{s_fb}, s{s_t1}, {GATE}
s_xor_b32 s{s_t1}, s{s_j}, s{s_th}
s_bitcmp1_b32 s{s_t1}, 0
s_cselect_b32 s{s_t1}, {OOB}, 0
v_mov_b32 v{VT}, {OOB}
v_lshl_add_u32 v{VT + 1}, v{VL}, 2, s{s_t1}
v_cmp_gt_u32 vcc, 32, v{VL}
v_cndmask_b32 v{VT + 2}, v{VT}, v{VT + 1}, vcc""")
        main += I([f"buffer_store_dword v{ACC + 64}, v{VT + 2}, {srd(sWS)}, s{s_fb} offen sc1"], "hst")
    blocks = [(ACC + (2 * b + s) * 16, s_o0 if s == 0 else s_kb, 2048 * b) for b in range(2) for s in range(2)]
    if not light:
        blocks.append((ACC + 64, s_fb, 0))
    pend, main = main, []
    for n, (acc, so, off) in enumerate(blocks):
        main += I(gelu_block(acc, VFR, VFR + 8, acc))
        pend += I([f"buffer_store_dwordx4 {vr(acc, 4)}, v{VL16}, {srd(sWS)}, s{so} offen offset:{off} sc1"], "hst")
        if str(n) in OPT["kst"] or n == len(blocks) - 1:
            main.append(Event(lambda p=pend: g.puts(p)))
            pend = []
        main += g.fs()
        main.append(stage_event(g, 4))
    weave(g, main, 64)
    g.wait(lgkm0=True)
    g.loads(8)
    g.puts(g.fs() + publish("hst", 2) + g.fs())
    g.force("W10")
    g.puts(g.fs())
    g.puts(g.poll_issue(VPOLL, sWS, "s16"))
    g.puts(g.poll_check(VPOLL, sWS, "s16", 0xf))
    add_act(g, 0, 12)
    g.stamp()
    phase_b(g, [])
    return g


CODE_SZ = 20480


def build(path, **opt):
    OPT.update(opt)
    gens = [gen_kv(False), gen_kv(True), gen_q()]
    parts = {}
    for g in gens:
        if OPT["drop"]:
            d = OPT["drop"]
            keep = []
            for it in g.S.items:
                if isinstance(it, Wait):
                    if "vm" in d and it.vm_tag is not None:
                        it = Wait(None, it.lgkm0, False)
                    keep.append(it)
                    continue
                if "vm" in d and it.kind == "vmem" and f"v{VST}," not in it.text:
                    continue
                if ("vm" in d or "poll" in d) and "L_slow" in it.text:
                    it = Ins(it.text.split("\n")[1])
                if "st" in d.split(",") and it.kind == "vmem" and "store" in it.op and f"v{VST}," not in it.text:
                    it = Ins(f"buffer_load_dword v{VPD}, v{VFLAG}, {srd(sDBG)}, 0 offen", it.tag, True) if it.tag else None
                    if it is None:
                        continue
                if "plain" in d and it.kind == "vmem" and "store" in it.op and it.tag in ("hst", "ost"):
                    it = Ins(it.text.replace(" sc1", ""), it.tag)
                if "nt" in d.split(",") and it.kind == "vmem" and "store" in it.op and it.tag in ("hst", "ost"):
                    it = Ins(it.text.replace(" sc1", " sc1 nt"), it.tag)
                if "nopl" in d and it.tag in ("pl", "zl"):
                    it = Ins(it.text.replace(f"v{VL16},", f"v{VFLAG},"), it.tag)
                if "now2" in d and it.tag and it.tag[0] == "W" and it.kind == "vmem":
                    it = Ins("buffer_load_dwordx4 v%d, %s" % (VFLAG, it.text.split(",", 1)[1]), it.tag)
                if "mf" in d and it.kind == "mfma":
                    continue
                if "ds" in d and it.kind == "ds":
                    continue
                if "va" in d and (it.kind in ("trans", "perm") or it.op.startswith("v_pk_") or it.op.startswith("v_cvt_pk") or it.op.startswith("v_max")):
                    continue
                keep.append(it)
            g.S.items = keep
        t = finalize(g.S, g.kind)
        h, rest = t.split("L_m1:\n")
        blk, body = rest.split("L_m2:\n")
        parts[g.kind] = (h, blk, body + "\n" + "\n".join(g.slow) + "\n.p2align 6")
    assert parts["KH"][0] == parts["KL"][0] == parts["Q"][0] and parts["KH"][1] == parts["KL"][1]
    txt = [parts["Q"][0], parts["Q"][1], parts["KH"][1], parts["KH"][2], parts["KL"][2], parts["Q"][2]]
    hdr = open("gated_mix__linear_kernel_hedgehog__glu_gated_geglu__prompt.s.ref").read().split("; Override launch")[0]
    out = hdr + "; @launch grid=(256,1,1) block=(256,1,1) lds=163840\n"
    out += f""".amdgcn_target "amdgcn-amd-amdhsa--gfx950"
.text
.globl {KN}
.p2align 8
.type {KN},@function
{KN}:
"""
    out += "\n".join(txt)
    out += "\nL_end:\ns_endpgm\n"
    out += ".fill 8192, 4, 0xbf810000\n"
    out += f""".section .rodata,"a"
.p2align 6
.amdhsa_kernel {KN}
  .amdhsa_next_free_vgpr 512
  .amdhsa_next_free_sgpr 102
  .amdhsa_accum_offset 256
  .amdhsa_group_segment_fixed_size 0
  .amdhsa_kernarg_size 96
  .amdhsa_user_sgpr_count 2
  .amdhsa_user_sgpr_kernarg_segment_ptr 1
  .amdhsa_system_sgpr_workgroup_id_x 1
.end_amdhsa_kernel
"""
    open(path, "w").write(out)
    print("wrote", path, len(out), "bytes")


if __name__ == "__main__":
    kw = {}
    path = sys.argv[1] if len(sys.argv) > 1 else "k.s"
    for a in sys.argv[2:]:
        k, v = a.split("=")
        kw[k] = {"0": False, "1": True}.get(v, v) if isinstance(OPT[k], bool) else v
    build(path, **kw)
```

```python
import sys
import struct
from ab import Stream, Ins, Wait, finalize, sched, cost_of

KN = "gated_mix__linear_kernel_hedgehog__glu_gated_geglu__prompt_kernel"
OPT = dict(stamps=False, span=False, fine=False, rot="tb", codepf=True, diag=None, drop=None, touch=True, mix=True, kc1=4, kc2=13, outfl="", pubk=0, kvp=1, kvc=3, kvpub=7, qev=52, stage_age=7, s1stop=26, kvdelay=80, kvev=80)

ACT = 0
KVP = 0x780000
ZP = 0x800000
GATE = 0x810000
FLG = 0x820000
STAMP = 0x840000
WS_SIZE = 0x860000
OOB = 0x7ff00000

sX, sQKV, sG, sU, sWO, sWD, sWS, sOUT, sPHI, sGW, sDBG = [28 + 4 * i for i in range(11)]
s_tb, s_j, s_w, s_th, s_ch, s_tt, s_ct, s_rot = range(72, 80)
s_xb, s_qb, s_fb, s_kb = 80, 81, 82, 83
s_o0, s_o1, s_o2 = 84, 85, 86
s_m4, s_m8, s_m6 = 87, 88, 89
s_t0, s_t1, s_t2, s_t3 = 90, 91, 92, 93
s_act, s_us, s_spin, s_pt = 94, 95, 96, 97
s_mk0, s_mk1 = 98, 100
s_pb = 4
s_stamp = 26


def srd(r):
    return f"s[{r}:{r + 3}]"


def vr(a, n=1):
    return f"v{a}" if n == 1 else f"v[{a}:{a + n - 1}]"


def ar(a, n=1):
    return f"a{a}" if n == 1 else f"a[{a}:{a + n - 1}]"


def f32(x):
    return "0x%08x" % struct.unpack("<I", struct.pack("<f", x))[0]


def mfma(d, a, b, c):
    return f"v_mfma_f32_32x32x16_bf16 {vr(d, 16)}, {a}, {b}, {vr(d, 16) if c else 0}"


class LDS:
    def __init__(self):
        self.busy = [None] * 160

    def free(self, lo, hi):
        return all(self.busy[k] is None for k in range(lo // 1024, (hi + 1023) // 1024))

    def claim(self, lo, hi, tag):
        assert self.free(lo, hi), (lo, hi, tag, self.busy)
        for k in range(lo // 1024, (hi + 1023) // 1024):
            self.busy[k] = tag

    def release(self, lo, hi):
        for k in range(lo // 1024, (hi + 1023) // 1024):
            assert self.busy[k] is not None
            self.busy[k] = None


class Event(Wait):
    def __init__(self, fn, rd=(), wr=()):
        super().__init__(rd=rd, wr=wr)
        self.fn = fn


class LoadQ:
    def __init__(self, lds):
        self.q = []
        self.lds = lds

    def add(self, pre, ins, tag, claim=None, cond=None):
        self.q.append((pre, ins, tag, claim, cond))

    def take(self, n=1):
        out = []
        while n > 0 and self.q:
            pre, ins, tag, claim, cond = self.q[0]
            if cond is not None and not cond():
                break
            if callable(claim):
                got = claim()
                if got is None:
                    break
                pre = got
            elif claim is not None:
                if not self.lds.free(*claim):
                    break
                self.lds.claim(claim[0], claim[1], tag)
            self.q.pop(0)
            out.append([Ins(p) for p in pre] + [Ins(ins, tag)])
            n -= 1
        return out

    def issued(self, tag):
        tags = tag if isinstance(tag, (list, tuple)) else [tag]
        return all(u[2] not in tags for u in self.q)


def scc_live(items):
    live, out = False, [False] * len(items)
    for k in range(len(items) - 1, -1, -1):
        out[k] = live
        i = items[k]
        if isinstance(i, Wait):
            continue
        if i.op.startswith("s_cselect") or i.op.startswith("s_cbranch_scc") or i.op.startswith("s_addc"):
            live = True
        elif i.kind == "salu" and not (i.op.startswith("s_mov") or i.op.startswith("s_mul")):
            live = False
    return out


def weave(g, main, every):
    acc = 0
    live = scc_live(main)
    for it, lv in zip(main, live):
        g.put(it)
        acc += cost_of(it)
        if acc >= every and not lv:
            if g.loads(1):
                acc = 0


DIAG_NAMES = {"Q": ["pro", "a0", "loop", "gelu", "o", "pub", "b0", "b1", "end"],
              "KH": ["pro", "a0", "seg1", "kv", "loop", "pub", "b0", "b1", "end"],
              "KL": ["pro", "a0", "seg1", "kv", "loop", "pub", "b0", "b1", "end"]}


class Gen:
    def __init__(self, kind):
        self.kind = kind
        self.S = Stream()
        self.slow = []
        self.lds = LDS()
        self.lq = LoadQ(self.lds)
        self.nstamp = 0
        self.npoll = 0
        self.w2addr = {}
        self.w2cand = []
        self.staged = 0
        self.pend_rel = []
        self.bdone = -1

    def vm_tags(self):
        return [i.tag for i in self.S.items if isinstance(i, Ins) and i.kind == "vmem" and i.count]

    def complete(self, tag):
        if not self.lq.issued(tag):
            return False
        n, last, done = 0, {}, -1
        for i in self.S.items:
            if isinstance(i, Wait):
                if i.vm_tag is not None:
                    tags = i.vm_tag if isinstance(i.vm_tag, (list, tuple)) else [i.vm_tag]
                    done = max(done, max(last[t] for t in tags))
            elif i.kind == "vmem" and i.count:
                last[i.tag] = n
                n += 1
        return tag in last and last[tag] <= done

    def loads(self, n):
        u = self.lq.take(n)
        for x in u:
            self.S.extend(x)
        return len(u)

    def force(self, tag):
        while not self.lq.issued(tag):
            assert self.loads(1), ("cannot issue", tag, self.lq.q[0], self.lds.busy)

    def put(self, it):
        if isinstance(it, Event):
            it.fn()
            return
        if isinstance(it, Wait):
            if it.vm_tag is not None:
                self.force(it.vm_tag)
            self.S.items.append(it)
            if it.lgkm0:
                for lo, hi in self.pend_rel:
                    self.lds.release(lo, hi)
                self.pend_rel = []
            return
        self.S.items.append(it)

    def wait(self, vm_tag=None, lgkm0=False):
        self.put(Wait(vm_tag, lgkm0))

    def stamp(self, final=False):
        if OPT["diag"]:
            a, b, mult, unit = OPT["diag"].split(":")
            ins = "s_memrealtime" if unit == "r" else "s_memtime"
            names = DIAG_NAMES[self.kind]
            nm = names[self.nstamp]
            self.nstamp += 1
            if nm == a:
                self.S(f"{ins} s[18:19]\ns_waitcnt lgkmcnt(0)")
            if nm == b:
                self.S(f"{ins} s[20:21]\ns_waitcnt lgkmcnt(0)")
        if OPT["stamps"] and (not OPT.get("span") or final):
            S = self.S
            S(f"s_memtime s[{s_stamp}:{s_stamp + 1}]")
            S("s_waitcnt lgkmcnt(0)")
            S(f"v_writelane_b32 v{VST}, s{s_stamp}, {self.nstamp}")
            self.nstamp += 1

    def poll_issue(self, vaddr, srdr, soff):
        return [Ins(f"buffer_load_dword v{VPD}, v{vaddr}, {srd(srdr)}, {soff} offen sc1", "poll")]

    def poll_check(self, vaddr, srdr, soff, mask, stage=1, sleep=6, first=None):
        k = f"{self.kind}{self.npoll}"
        self.npoll += 1
        pre = f"s_waitcnt vmcnt(0)\n{first}\n" if first else ""
        self.slow.append(f"""L_slow_{k}:
{pre}s_mov_b32 s{s_spin}, 0
L_spin_{k}:
s_sleep {sleep}
buffer_load_dword v{VPD}, v{vaddr}, {srd(srdr)}, {soff} offen sc1
s_add_u32 s{s_spin}, s{s_spin}, 1
s_cmp_ge_u32 s{s_spin}, 0x4000
s_cbranch_scc1 L_back_{k}
s_waitcnt vmcnt(0)
v_cmp_le_u32 vcc, {stage}, v{VPD}
s_nop 1
s_andn2_b32 s{s_pt}, {mask}, vcc_lo
s_cbranch_scc1 L_spin_{k}
s_branch L_back_{k}""")
        br = Ins(f"s_cbranch_scc1 L_slow_{k}")
        br.text += f"\nL_back_{k}:"
        return [Wait("poll", wr=[("v", VPD)])] + I([f"v_cmp_le_u32 vcc, {stage}, v{VPD}", f"s_andn2_b32 s{s_pt}, {mask}, vcc_lo"]) + [br]

    def fs(self):
        return [Event(self.stamp)] if OPT["fine"] == "2" else []

    def puts(self, items):
        for i in items:
            self.put(i)


VL = 1
VX = 2
VQ = 6
VG = 10
VU = 13
VXA = 16
VWA = 20
VW2 = 32
VW2D = 36
VL16 = 38
VL16D = 39
VW2A = 40
VPB = 43
VPOLL = 44
VPD = 45
VFLAG = 46
VONE = 47
VC = 48
VID = 52
VONES = 60
VPHI = 64
VT = 68
VTWO = 77
VPK = 78
VST = 79
VFR = 80
ACC = 128

MISC = 144 * 1024
LOG2E = 1.4426950408889634
GC = 0.7978845608028654


XR = [0, 16384, 32768, 49152]
KWR = [65536, 81920, 98304, 114688]
QWR = [49152, 81920, 114688]


def head(g):
    S = g.S
    if OPT["stamps"]:
        S("s_memrealtime s[98:99]\ns_memtime s[94:95]")
    if OPT["diag"]:
        S(("s_memrealtime" if OPT["diag"].endswith("r") else "s_memtime") + " s[98:99]")
    S(f"""s_cmp_ge_u32 s2, 256
s_cbranch_scc1 L_end
s_load_dwordx16 s[4:19], s[0:1], 0
s_load_dwordx8 s[20:27], s[0:1], 64
v_lshrrev_b32 v{VT}, 6, v0
v_and_b32 v{VL}, 63, v0
s_and_b32 s{s_t0}, s2, 7
s_lshr_b32 s{s_t1}, s2, 3
v_readfirstlane_b32 s{s_w}, v{VT}
s_and_b32 s{s_tb}, s{s_t0}, 1
s_lshl_b32 s{s_tb}, s{s_tb}, 3
s_and_b32 s{s_ct}, s{s_t1}, 7
s_add_u32 s{s_tb}, s{s_tb}, s{s_ct}
s_lshr_b32 s{s_t2}, s{s_t1}, 3
s_and_b32 s{s_j}, s{s_t0}, 6
s_lshr_b32 s{s_t3}, s{s_t2}, 1
s_add_u32 s{s_j}, s{s_j}, s{s_t3}
s_lshl_b32 s{s_m4}, s{s_w}, 12""")
    code_prefetch(g)
    rot = OPT["rot"]
    if rot == "none":
        S(f"s_mov_b32 s{s_rot}, 0")
    elif rot == "full":
        S(f"s_lshl_b32 s{s_rot}, s{s_t2}, 1\ns_add_u32 s{s_rot}, s{s_rot}, s{s_ct}\ns_add_u32 s{s_rot}, s{s_rot}, s{s_t0}")
    elif rot in ("tb", "tbx"):
        S(f"""s_mul_i32 s{s_rot}, s{s_t3}, 3
s_add_u32 s{s_rot}, s{s_rot}, 1
s_bitcmp1_b32 s{s_t2}, 0
s_cselect_b32 s{s_rot}, s{s_rot}, 0
s_add_u32 s{s_rot}, s{s_rot}, s{s_ct}""")
        if rot == "tbx":
            S(f"s_add_u32 s{s_rot}, s{s_rot}, s{s_t0}")
    S(f"""v_lshrrev_b32 v{VT + 3}, 3, v{VL}
v_lshrrev_b32 v{VT + 2}, 4, v{VL}
v_xor_b32 v{VT + 1}, v{VT + 2}, v{VL}
v_and_b32 v{VT + 1}, 7, v{VT + 1}
v_lshl_add_u32 v{VT + 3}, v{VT}, 5, v{VT + 3}
v_lshlrev_b32 v{VT + 3}, 10, v{VT + 3}
v_lshl_add_u32 v{VX}, v{VT + 1}, 4, v{VT + 3}
v_xor_b32 v{VX + 1}, 64, v{VX}
v_add_u32 v{VX + 1}, 7168, v{VX + 1}
v_add_u32 v{VX + 2}, 14336, v{VX}
v_add_u32 v{VX + 3}, 14336, v{VX + 1}
s_lshl_b32 s{s_xb}, s{s_tb}, 17
s_lshl_b32 s{s_qb}, s{s_j}, 7
s_mov_b32 s{sX + 2}, {2048 * 1024}
s_mov_b32 s{sX + 3}, 0x20000
s_mov_b32 s{sQKV + 2}, {512 * 3072}
s_mov_b32 s{sQKV + 3}, 0x20000""")
    S(f"""v_bfe_u32 v{VT + 3}, v{VL}, 2, 2
v_lshl_add_u32 v{VT + 3}, v{VT}, 4, v{VT + 3}
v_mul_u32_u24 v{VT + 3}, 3, v{VT + 3}
v_lshrrev_b32 v{VT + 4}, 5, v{VL}
v_add3_u32 v{VT + 3}, v{VT + 3}, v{VT + 4}, 1
v_and_b32 v{VT + 4}, 1, v{VT + 2}
v_lshl_add_u32 v{VT + 3}, v{VT + 3}, 4, v{VT + 4}
v_and_b32 v{VT + 4}, 3, v{VL}
v_lshl_add_u32 v{VT + 3}, v{VT + 3}, 2, v{VT + 4}
v_lshlrev_b32 v{VQ}, 4, v{VT + 3}""")
    for i in range(1, 4):
        S(f"v_add_u32 v{VQ + i}, {i * (4 * 3072 - 1024)}, v{VQ}")
    add_x(g, 0, XR[0])
    u = g.lq.take(4)
    S.extend(u[0][:-1])
    S("s_waitcnt lgkmcnt(0)")
    S(f"s_mov_b64 s[{sX}:{sX + 1}], s[4:5]\ns_bitcmp1_b32 s{s_t2}, 0")
    S.extend(u[0][-1:] + u[1] + u[2] + u[3])
    S("s_cbranch_scc0 L_KV0\nL_m1:")
    if g.kind == "Q":
        add_x(g, 1, XR[1])
        add_x(g, 2, XR[2])
        g.loads(8)
        S("s_branch L_Q")
    else:
        S(f"L_KV0:\ns_mov_b64 s[{sQKV}:{sQKV + 1}], s[6:7]")
        add_kv(g, 0)
        add_x(g, 1, XR[1])
        g.loads(8)
        S(f"s_cmp_ge_u32 s{s_j}, 6\ns_cbranch_scc1 L_KL")
    S("L_m2:\n.p2align 3")
    if g.kind != "KH":
        S(f"L_{g.kind}:")
    if OPT["stamps"] or OPT["diag"]:
        S("s_mov_b32 s3, s98")
    if OPT["stamps"]:
        S(f"v_mov_b32 v{VST}, 0\nv_writelane_b32 v{VST}, s94, 0")
        g.nstamp = 1
        if not OPT.get("span"):
            S("s_memtime s[94:95]\ns_waitcnt lgkmcnt(0)")
            S(f"v_writelane_b32 v{VST}, s94, 1")
            g.nstamp = 2
    S(f"""s_and_b32 s{s_th}, s{s_w}, 1
s_lshr_b32 s{s_ch}, s{s_w}, 1
v_lshlrev_b32 v{VL16}, 4, v{VL}
s_and_b32 s{s_t0}, s2, 7
s_lshl_b32 s{s_tt}, s{s_t0}, 2""")
    if OPT["mix"]:
        S(f"s_and_b32 s{s_t0}, s{s_ct}, 1\ns_xor_b32 s{s_t0}, s{s_t0}, s{s_t2}\ns_add_u32 s{s_tt}, s{s_tt}, s{s_t0}")
    else:
        S(f"s_add_u32 s{s_tt}, s{s_tt}, s{s_t2}")


def add_kv(g, j):
    w = KWR[j % 4]
    add_rows(g, f"K{j}", VQ, 4, sQKV, 3072, s_qb, s_o1, s_m4, w, (w, w + 16384), newkb=j)


def mk_srds(g, which):
    S = g.S
    tab = {sX: (4, 2048 * 1024), sQKV: (6, 512 * 3072), sPHI: (8, 32 * 512), sWO: (10, 512 * 1024), sG: (14, 512 * 2752),
           sU: (16, 512 * 2752), sWD: (18, 1376 * 1024), sGW: (20, 1024), sOUT: (22, 2048 * 1024), sDBG: (24, 256), sWS: (26, WS_SIZE)}
    for r in which:
        p, n = tab[r]
        S(f"s_mov_b64 s[{r}:{r + 1}], s[{p}:{p + 1}]\ns_mov_b32 s{r + 2}, {n}\ns_mov_b32 s{r + 3}, 0x20000")


def quad_parts(g):
    g.S(f"""v_bfe_u32 v{VT}, v{VL}, 2, 2
v_and_b32 v{VT + 1}, 3, v{VL}
v_lshlrev_b32 v{VT + 1}, 4, v{VT + 1}
v_lshrrev_b32 v{VT + 2}, 4, v{VL}""")


def voff_n2(g, dst, n, stride, wave_rows):
    S = g.S
    S(f"""v_lshrrev_b32 v{VT + 3}, 5, v{VL}
v_lshl_add_u32 v{VT + 3}, v{VT + 3}, 2, v{VT}""")
    if wave_rows:
        S(f"s_lshl_b32 s{s_t0}, s{s_w}, 4\nv_add_u32 v{VT + 3}, s{s_t0}, v{VT + 3}")
    S(f"""v_mul_u32_u24 v{VT + 3}, {stride}, v{VT + 3}
v_and_b32 v{VT + 4}, 1, v{VT + 2}
v_lshl_add_u32 v{VT + 4}, v{VT + 4}, 6, v{VT + 1}
v_add_u32 v{dst}, v{VT + 3}, v{VT + 4}""")
    for i in range(1, n):
        S(f"v_add_u32 v{dst + i}, {i * (8 * stride - 1024)}, v{dst}")


def voff_ffn3(g):
    S = g.S
    S(f"""s_lshl_b32 s{s_t0}, s{s_w}, 4
v_add_u32 v{VT + 5}, s{s_t0}, v{VT}
v_mul_u32_u24 v{VT + 5}, 2752, v{VT + 5}
v_lshl_add_u32 v{VT + 6}, v{VT + 2}, 6, v{VT + 1}
s_movk_i32 s{s_t0}, 10816
v_add_u32 v{VT + 5}, v{VT + 5}, v{VT + 6}""")
    for i in range(3):
        S(f"""v_add_u32 v{VT + 3}, {i + 1}, v{VT + 2}
v_lshrrev_b32 v{VT + 3}, 2, v{VT + 3}
v_mad_u32_u24 v{VG + i}, v{VT + 3}, s{s_t0}, v{VT + 5}""")
        if i:
            S(f"v_add_u32 v{VG + i}, {157 * 64 * i}, v{VG + i}")
        S(f"v_xor_b32 v{VU + i}, 32, v{VG + i}")


def unit_start(S, dst, jreg, isq, tmp):
    S(f"s_lshr_b32 s{dst}, {jreg}, 1\ns_mul_i32 s{dst}, s{dst}, 22\ns_and_b32 s{tmp}, {jreg}, 1")
    if isq:
        S(f"s_mul_i32 s{tmp}, s{tmp}, 6\ns_add_u32 s{dst}, s{dst}, s{tmp}\ns_cmp_ge_u32 {jreg}, 6\ns_cselect_b32 s{tmp}, 8, 10\ns_add_u32 s{dst}, s{dst}, s{tmp}")
    else:
        S(f"s_mul_i32 s{tmp}, s{tmp}, 5\ns_add_u32 s{dst}, s{dst}, s{tmp}\ns_cmp_eq_u32 {jreg}, 7\ns_cselect_b32 s{tmp}, 1, 0\ns_sub_u32 s{dst}, s{dst}, s{tmp}")


def kb_pre(j):
    return [f"s_add_u32 s{s_kb}, s{s_rot}, {j}", f"s_and_b32 s{s_kb}, s{s_kb}, 7"]


def dma(v, r, so, imm):
    return f"buffer_load_dwordx4 v{v}, {srd(r)}, s{so} offen" + (f" offset:{imm}" if imm else "") + " lds"


def add_x(g, j, base):
    for i in range(4):
        pre = []
        if i == 0:
            pre = kb_pre(j) + [f"s_lshl_b32 s{s_o0}, s{s_kb}, 7", f"s_add_u32 m0, s{s_m4}, {base}", f"s_add_u32 s{s_o0}, s{s_o0}, s{s_xb}"]
        g.lq.add(pre, dma(VX + i, sX, s_o0, 1024 * i), f"X{j}", (base, base + 16384) if i == 0 else None)


def add_rows(g, tag, v0, n, r, stride, sbase, so, mreg, mbase, claim, newkb=None, newso=True):
    for i in range(n):
        pre = []
        if i == 0:
            if newkb is not None:
                pre += kb_pre(newkb)
            if newso:
                pre += [f"s_mul_i32 s{so}, s{s_kb}, {64 * stride}", f"s_add_u32 m0, s{mreg}, {mbase}", f"s_add_u32 s{so}, s{so}, s{sbase}"]
            else:
                pre += [f"s_add_u32 m0, s{mreg}, {mbase}"]
        g.lq.add(pre, dma(v0 + i, r, so, 1024 * i), tag, claim if i == 0 else None)


def misc_setup(g):
    S = g.S
    S(f"""v_bfe_u32 v{VT}, v{VL}, 2, 2
v_and_b32 v{VT + 1}, 3, v{VL}
v_lshlrev_b32 v{VT + 1}, 3, v{VT + 1}
v_lshl_add_u32 v{VPB}, v{VT}, 6, v{VT + 1}
v_lshrrev_b32 v{VT + 2}, 5, v{VL}
v_bfe_u32 v{VT + 3}, v{VL}, 4, 1
v_and_b32 v{VT + 4}, 31, v{VL}
v_bfe_u32 v{VT + 5}, v{VL}, 1, 3
v_xor_b32 v{VT + 5}, v{VT + 5}, v{VT + 2}
v_lshlrev_b32 v{VT + 5}, 4, v{VT + 5}
v_lshl_add_u32 v{VT + 5}, v{VT + 4}, 7, v{VT + 5}
s_lshl_b32 s{s_t0}, s{s_th}, 13
v_add_u32 v{VXA}, s{s_t0}, v{VT + 5}
v_xor_b32 v{VXA + 1}, 32, v{VXA}
v_xor_b32 v{VXA + 2}, 64, v{VXA}
v_xor_b32 v{VXA + 3}, 0x60, v{VXA}""")
    S(f"""v_lshl_add_u32 v{VT + 6}, v{VT + 3}, 5, v{VPB}
v_lshl_add_u32 v{VW2A}, v{VT + 2}, 9, v{VT + 6}
v_add_u32 v{VW2A}, s{s_m4}, v{VW2A}
v_add_u32 v{VW2A + 1}, 0x10000, v{VW2A}
v_add_u32 v{VW2A + 2}, 0x20000, v{VW2A}""")


def consts(g):
    S = g.S
    S(f"""v_mov_b32 v{VC}, {f32(-2 * LOG2E * GC * 0.044715)}
v_mov_b32 v{VC + 1}, {f32(-2 * LOG2E * GC)}
v_mov_b32 v{VC + 2}, {f32(LOG2E)}
v_mov_b32 v{VC + 3}, {f32(1e-6)}
v_mov_b32 v{VONE}, 1
v_mov_b32 v{VTWO}, 2
v_mov_b32 v{VT}, {OOB}
v_lshlrev_b32 v{VT + 1}, 2, v{VL}
s_mov_b64 s[18:19], 15
s_mov_b64 s[20:21], 1
v_cndmask_b32 v{VPK}, v{VT}, v{VT + 1}, s[18:19]
v_cndmask_b32 v{VFLAG}, v{VT}, v{VT + 1}, s[20:21]
s_mov_b32 s{s_mk0}, 0xffff0000
s_mov_b32 s{s_mk0 + 1}, 0xffff0000""")
    if g.kind == "Q":
        for i in range(4):
            S(f"v_mov_b32 v{VONES + i}, 0x3f803f80")
    S(f"""v_lshrrev_b32 v{VT}, 5, v{VL}
v_bfe_u32 v{VT + 1}, v{VL}, 1, 4
v_lshlrev_b32 v{VT}, 1, v{VT}
v_sub_u32 v{VT}, v{VT + 1}, v{VT}
v_and_b32 v{VT + 1}, 1, v{VL}
v_lshlrev_b32 v{VT + 1}, 4, v{VT + 1}
v_mov_b32 v{VT + 2}, 0x3f80
v_lshlrev_b32 v{VT + 2}, v{VT + 1}, v{VT + 2}""")
    for jj in range(2):
        for d in range(4):
            S(f"v_cmp_eq_u32 s[{18 + 2 * d}:{19 + 2 * d}], {8 * jj + 4 * (d >> 1) + (d & 1)}, v{VT}")
        for d in range(4):
            S(f"v_cndmask_b32 v{VID + 4 * jj + d}, 0, v{VT + 2}, s[{18 + 2 * d}:{19 + 2 * d}]")


def phi_load(g):
    S = g.S
    S(f"""s_lshl_b32 s{s_t0}, s{s_j}, 1
s_add_u32 s{s_t0}, s{s_t0}, s{s_ch}
s_lshl_b32 s{s_t0}, s{s_t0}, 10
s_lshr_b32 s{s_t1}, s{s_m4}, 2
s_add_u32 m0, s{s_t1}, {MISC}""")
    S(dma(VL16, sPHI, s_t0, 0), tag="phi")


def phi_read(g):
    return lines(f"""v_lshrrev_b32 v{VT}, 5, v{VL}
v_bfe_u32 v{VT + 1}, v{VL}, 2, 2
v_lshl_add_u32 v{VT}, v{VT}, 2, v{VT + 1}
v_lshlrev_b32 v{VT}, 5, v{VT}
v_and_b32 v{VT + 1}, 3, v{VL}
v_lshl_add_u32 v{VT}, v{VT + 1}, 3, v{VT}
v_bfe_u32 v{VT + 1}, v{VL}, 4, 1
v_lshl_add_u32 v{VT}, v{VT + 1}, 9, v{VT}
s_lshr_b32 s{s_t1}, s{s_m4}, 2
s_add_u32 s{s_t1}, s{s_t1}, {MISC}
v_add_u32 v{VT}, s{s_t1}, v{VT}""") + [Wait("phi")] + lines(f"ds_read_b64_tr_b16 {vr(VPHI, 2)}, v{VT}\nds_read_b64_tr_b16 {vr(VPHI + 2, 2)}, v{VT} offset:256")


def zero_flags(g):
    S = g.S
    S(f"""s_cmp_lg_u32 s{s_ct}, 0
s_cbranch_scc1 L_nz_{g.kind}
s_and_b32 s{s_t0}, s2, 1
s_lshr_b32 s{s_t1}, s2, 6
s_add_u32 s{s_t0}, s{s_t0}, s{s_t1}
s_lshl_b32 s{s_t0}, s{s_t0}, 2
s_add_u32 s{s_t0}, s{s_t0}, s{s_w}
s_lshl_b32 s{s_t0}, s{s_t0}, 13
s_add_u32 s{s_t0}, s{s_t0}, {FLG}
v_mov_b32 v{VT}, 0
v_lshlrev_b32 v{VT + 1}, 7, v{VL}""")
    S(f"buffer_store_dword v{VT}, v{VT + 1}, {srd(sWS)}, s{s_t0} offen sc1", count=False)
    S(f"L_nz_{g.kind}:")


def set_ready(g):
    S = g.S
    S(f"""s_or_b32 s{s_t0}, s{s_ct}, s{s_w}
s_cbranch_scc1 L_nr_{g.kind}
s_and_b32 s{s_t0}, s2, 1
s_lshr_b32 s{s_t1}, s2, 6
s_add_u32 s{s_t0}, s{s_t0}, s{s_t1}
s_lshl_b32 s{s_t0}, s{s_t0}, 2""")
    S(f"buffer_store_dword v{VONE}, v{VFLAG}, {srd(sDBG)}, s{s_t0} offen sc1", count=False)
    S(f"L_nr_{g.kind}:")


def code_prefetch(g):
    if not OPT["codepf"]:
        return
    lines_ = CODE_SZ // 128 // 32
    g.S(f"""s_getpc_b64 s[{s_mk1}:{s_mk1 + 1}]
L_pc:
s_lshl_b32 s{s_kb}, s{s_ct}, 2
s_add_u32 s{s_kb}, s{s_kb}, s{s_w}
s_mul_i32 s{s_kb}, s{s_kb}, {lines_ * 128}
s_cmp_ge_u32 s{s_j}, 6
s_cselect_b32 s{s_o0}, L_KL-L_pc, 0
s_bitcmp1_b32 s{s_t2}, 0
s_cselect_b32 s{s_o0}, L_Q-L_pc, s{s_o0}
s_add_u32 s{s_kb}, s{s_kb}, s{s_o0}
v_lshl_add_u32 v{VT + 1}, v{VL}, 7, s{s_kb}
s_mov_b64 exec, {(1 << lines_) - 1}
global_load_dword v{VPD}, v{VT + 1}, s[{s_mk1}:{s_mk1 + 1}]
s_mov_b64 exec, -1""")


def gelu_block(acc, T, Y, O):
    L = []
    P = range(4)
    p = lambda b, i: vr(b + 2 * i, 2)
    L += [f"v_pk_mul_f32 {p(T, i)}, {p(acc, i)}, {p(acc, i)}" for i in P]
    L += [f"v_pk_fma_f32 {p(T, i)}, {p(T, i)}, {vr(VC, 2)}, {vr(VC, 2)} op_sel:[0,0,1] op_sel_hi:[1,0,1]" for i in P]
    L += [f"v_pk_mul_f32 {p(T, i)}, {p(T, i)}, {p(acc, i)}" for i in P]
    for i in P:
        L += [f"v_exp_f32 v{T + 2 * i}, v{T + 2 * i}", f"v_exp_f32 v{T + 2 * i + 1}, v{T + 2 * i + 1}", f"v_pk_mul_f32 {p(Y, i)}, {p(acc, i)}, {p(acc + 8, i)}"]
    L += [f"v_pk_add_f32 {p(T, i)}, {p(T, i)}, 1.0 op_sel_hi:[1,0]" for i in P]
    L += [f"v_rcp_f32 v{T + i}, v{T + i}" for i in range(8)]
    L += [f"v_pk_mul_f32 {p(Y, i)}, {p(Y, i)}, {p(T, i)}" for i in P]
    L += [f"v_cvt_pk_bf16_f32 v{O + i}, v{Y + 2 * i}, v{Y + 2 * i + 1}" for i in P]
    return L


def softmax_inst(P, E, M, O):
    L = []
    p = lambda b, i: vr(b + 2 * i, 2)
    a, b = M, M + 1
    L += [f"v_max3_f32 v{a}, v{P}, v{P + 1}, v{P + 2}", f"v_max3_f32 v{b}, -v{P}, -v{P + 1}, -v{P + 2}",
          f"v_max3_f32 v{a}, v{a}, v{P + 3}, v{P + 4}", f"v_max3_f32 v{b}, v{b}, -v{P + 3}, -v{P + 4}",
          f"v_max3_f32 v{a}, v{a}, v{P + 5}, v{P + 6}", f"v_max3_f32 v{b}, v{b}, -v{P + 5}, -v{P + 6}",
          f"v_max_f32 v{a}, v{a}, v{P + 7}", f"v_max_f32 v{b}, v{b}, -v{P + 7}",
          f"v_permlane32_swap_b32 v{a}, v{b}",
          f"v_max_f32 v{a}, v{a}, v{b}",
          f"v_mul_f32 v{b}, -v{a}, v{VC + 2}",
          f"v_mul_f32 v{a}, -v{a}, v{VC + 2}",
          f"v_permlane32_swap_b32 v{a}, v{b}"]
    for i in range(4):
        L += [f"v_pk_fma_f32 {p(E, i)}, {p(P, i)}, {vr(VC + 2, 2)}, {vr(M, 2)} op_sel_hi:[1,0,0]"]
    for i in range(4):
        L += [f"v_pk_fma_f32 {p(E + 8, i)}, {p(P, i)}, {vr(VC + 2, 2)}, {vr(M, 2)} op_sel:[0,0,1] op_sel_hi:[1,0,1] neg_lo:[1,0,0] neg_hi:[1,0,0]"]
    L += [f"v_exp_f32 v{E + i}, v{E + i}" for i in range(16)]
    L += [f"v_pk_add_f32 {p(P, 0)}, {p(E, 0)}, {p(E, 1)}", f"v_pk_add_f32 {p(P, 1)}, {p(E, 2)}, {p(E, 3)}",
          f"v_pk_add_f32 {p(P, 2)}, {p(E + 8, 0)}, {p(E + 8, 1)}", f"v_pk_add_f32 {p(P, 3)}, {p(E + 8, 2)}, {p(E + 8, 3)}",
          f"v_pk_add_f32 {p(P, 0)}, {p(P, 0)}, {p(P, 1)}", f"v_pk_add_f32 {p(P, 2)}, {p(P, 2)}, {p(P, 3)}",
          f"v_add_f32 v{a}, v{P}, v{P + 1}", f"v_add_f32 v{b}, v{P + 4}, v{P + 5}",
          f"v_permlane32_swap_b32 v{a}, v{b}",
          f"v_add_f32 v{a}, v{a}, v{b}",
          f"v_rcp_f32 v{a}, v{a}",
          f"v_mov_b32 v{b}, v{a}",
          f"v_permlane32_swap_b32 v{a}, v{b}"]
    L += [f"v_pk_mul_f32 {p(E, i)}, {p(E, i)}, {vr(M, 2)} op_sel_hi:[1,0]" for i in range(4)]
    L += [f"v_pk_mul_f32 {p(E + 8, i)}, {p(E + 8, i)}, {vr(M, 2)} op_sel:[0,1] op_sel_hi:[1,1]" for i in range(4)]
    L += [f"v_cvt_pk_bf16_f32 v{O + i}, v{E + 2 * i}, v{E + 2 * i + 1}" for i in range(8)]
    return L


def zipl(*ls):
    out = []
    n = max(len(l) for l in ls)
    for i in range(n):
        for l in ls:
            if i < len(l):
                out.append(l[i])
    return out


def I(lines, tag=None):
    return [Ins(x, tag) if isinstance(x, str) else x for x in lines]


def kstep(g, mf, reads, nload, rd_per_gap=2, barrier=None, wait0=True, extra=()):
    S = g.S
    reads = list(reads)
    extra = list(extra)
    if wait0 or barrier is not None:
        g.wait(lgkm0=True)
    n = len(mf)
    first_ld = min((len(reads) + rd_per_gap - 1) // rd_per_gap, n - 1)
    left = nload
    for i, m in enumerate(mf):
        S(m)
        if i == 0 and barrier is not None:
            tag, rel = barrier
            if tag is not None:
                g.wait(vm_tag=tag)
            S("s_barrier")
            if OPT["fine"] is True:
                g.stamp()
            for lo, hi in rel:
                g.lds.release(lo, hi)
        k = rd_per_gap if i < n - 1 else len(reads)
        for r in reads[:k]:
            S(r)
        reads = reads[k:]
        if i >= first_ld:
            gaps = n - i
            if left > 0:
                t = (left + gaps - 1) // gaps
                g.loads(t)
                left -= t
            t = (len(extra) + gaps - 1) // gaps
            g.puts(extra[:t])
            extra = extra[t:]


W2GRP = {}


def pb_setup(g):
    S = g.S
    tab = lambda v: hex(sum(x << (8 * i) for i, x in enumerate(v)))
    S(f"""s_lshl_b32 s{s_t1}, s{s_w}, 3
s_or_b32 s{s_t1}, s{s_t1}, 0x80000
s_bfe_u32 s4, {tab([10, 16, 32, 38])}, s{s_t1}
s_bfe_u32 s5, {tab([54, 60, 74, 80])}, s{s_t1}
s_bfe_u32 s6, {tab([0, 5, 22, 27])}, s{s_t1}
s_bfe_u32 s7, {tab([44, 49, 66, 70])}, s{s_t1}""")
    S(f"s_mul_i32 s{s_t0}, s{s_tt}, 118\ns_lshl_b32 s{s_t2}, s{s_ct}, 7")
    for i in range(4):
        S(f"s_add_u32 s{8 + i}, s{4 + i}, s{s_t0}\ns_lshl_b32 s{8 + i}, s{8 + i}, 11\ns_lshl_b32 s{4 + i}, s{4 + i}, 14\ns_add_u32 s{4 + i}, s{4 + i}, s{s_t2}")
    S(f"""s_lshl_b32 s{s_t1}, s{s_w}, 2
s_add_u32 s12, s{s_t1}, s{s_t0}
s_add_u32 s12, s12, 86
s_lshl_b32 s12, s12, 11
s_lshl_b32 s13, s{s_w}, 16
s_add_u32 s13, s13, s{s_t2}
s_lshr_b32 s14, s{s_tt}, 1
s_lshl_b32 s14, s14, 2
s_and_b32 s{s_t0}, s{s_tt}, 1
s_add_u32 s14, s14, s{s_t0}
s_lshl_b32 s14, s14, 7
s_add_u32 s14, s14, {FLG}
s_add_u32 s16, s14, 0x10000
s_add_u32 s{s_t0}, s{s_t0}, 6
v_and_b32 v{VT}, 2, v{VL}
v_lshl_add_u32 v{VT}, v{VT}, 1, s{s_w}
v_mov_b32 v{VT + 1}, s{s_t0}
s_mov_b64 s[18:19], 15
s_mov_b64 s[20:21], 63
v_and_b32 v{VT + 2}, 1, v{VL}
v_lshlrev_b32 v{VT + 2}, 8, v{VT + 2}
v_cndmask_b32 v{VT}, v{VT + 1}, v{VT}, s[18:19]
v_lshl_add_u32 v{VT}, v{VT}, 13, v{VT + 2}
v_mov_b32 v{VT + 1}, {OOB}
v_cndmask_b32 v{VPOLL}, v{VT + 1}, v{VT}, s[20:21]""")
    quad_parts(g)
    voff_n2(g, VW2, 4, 1024, False)
    S(f"""s_cmp_ge_u32 s{s_w}, 2
s_cselect_b32 s{s_t0}, {OOB}, 0
v_add_u32 v{VW2D}, s{s_t0}, v{VW2 + 2}
v_add_u32 v{VW2D + 1}, s{s_t0}, v{VW2 + 3}
v_add_u32 v{VL16D}, s{s_t0}, v{VL16}""")


PB_K = [("QH", p, i) for p in range(2) for i in range(6)] + \
       [("KH", 0, 0), ("KH", 0, 1), ("KH", 0, 2), ("KH", 0, 3), ("KH", 0, 4), ("KH", 1, 4), ("KH", 1, 0), ("KH", 1, 1), ("KH", 1, 2), ("KH", 1, 3)] + \
       [("O", p, i) for p in range(2) for i in range(4)]
W2_ORDER = [11, 12, 13, 14, 0, 1] + list(range(2, 11))
NSTAGE = 6


def w2_src(k):
    part, p, i = PB_K[k]
    if part == "QH":
        return sWD, 4 + p, i * 16384
    if part == "KH":
        return sWD, 6 + p, i * 16384
    return sWO, 13, p * 262144 + i * 16384


def act_src(k):
    part, p, i = PB_K[k]
    if part == "QH":
        return 8 + p, i * 2048
    if part == "KH":
        return 10 + p, i * 2048
    return 12, p * 16 * 2048 + i * 2048


def add_w2(g, n):
    grp = W2_ORDER[n]
    k = 2 * grp
    r, sb, off = w2_src(k)
    tag = f"W{grp}"

    def claim():
        for a in g.w2cand():
            if g.lds.free(a, a + 16384):
                g.lds.claim(a, a + 16384, tag)
                g.w2addr[grp] = a
                return [f"s_add_u32 m0, s{s_m4}, {a}", f"s_add_u32 s{s_o1}, s{sb}, {off}"]
        return None
    g.lq.add(None, dma(VW2, r, s_o1, 0), tag, claim)
    g.lq.add([], dma(VW2 + 1, r, s_o1, 1024), tag)
    if PB_K[k + 1] == ("KH", 1, 4):
        r2, sb2, off2 = w2_src(k + 1)
        g.lq.add([f"s_add_u32 s{s_o1}, s{sb2}, {off2 - 16384}"], dma(VW2D, r2, s_o1, 2048), tag)
        g.lq.add([], dma(VW2D + 1, r2, s_o1, 3072), tag)
    else:
        g.lq.add([], dma(VW2 + 2, r, s_o1, 2048), tag)
        g.lq.add([], dma(VW2 + 3, r, s_o1, 3072), tag)


def w2_reads(g, k, dst):
    a = g.w2addr[k // 2] + (k % 2) * 2048
    base, off = VW2A + a // 65536, a % 65536
    return [f"ds_read_b64_tr_b16 {dst(4 * c + 2 * t)}, v{base} offset:{off + 256 * c + 1024 * t}" for c in range(2) for t in range(2)]


def stage_moves(g, nk, dead=256, force=False):
    L = []
    while nk > 0 and g.staged < 2 * NSTAGE:
        n, kk = g.staged // 2, g.staged % 2
        grp = W2_ORDER[n]
        if 8 * g.staged + 8 > dead:
            break
        if not g.complete(f"W{grp}"):
            if not force:
                break
            g.wait(vm_tag=f"W{grp}")
        b = 8 * g.staged
        L += I(w2_reads(g, 2 * grp + kk, lambda o: ar(b + o, 2)))
        if kk == 1:
            a = g.w2addr[grp]
            L.append(Event(lambda a=a: g.pend_rel.append((a, a + 16384))))
        g.staged += 1
        nk -= 1
    return L


def stage_event(g, nk):
    def fn():
        g.wait(lgkm0=True)
        g.puts(stage_moves(g, nk, force=True))
    return Event(fn)


def areg(k, sub):
    return 96 + 8 * (k % 20) + 4 * sub


def add_act(g, k0, k1, subs=None):
    def ld(k, sub, imm, pre):
        va = VL16D if PB_K[k] == ("KH", 1, 4) else VL16
        g.lq.add(pre, f"buffer_load_dwordx4 {ar(areg(k, sub), 4)}, v{va}, {srd(sWS)}, s{s_o2} offen" + (f" offset:{imm}" if imm else "") + " sc1",
                 f"act{k}_{sub}", cond=(lambda: g.bdone >= k - 20))
    k = k0
    while k < k1:
        sb, off = act_src(k)
        two = k + 1 < k1 and act_src(k + 1) == (sb, off + 2048)
        first = True
        for kk in range(2 if two else 1):
            for sub in (range(2) if subs is None else subs):
                ld(k + kk, sub, 2048 * kk + 1024 * sub, [f"s_add_u32 s{s_o2}, s{sb}, {off}"] if first else [])
                first = False
        k += 2 if two else 1


def phase_b(g, publish):
    S = g.S
    AB, AA = ACC, ACC + 64
    VGT = VT
    assert g.staged == 2 * NSTAGE
    staged = {W2_ORDER[n]: n for n in range(NSTAGE)}

    def frag(k, c):
        if k // 2 in staged:
            return ar(16 * staged[k // 2] + 8 * (k % 2) + 4 * c, 4)
        return vr(VFR + 8 * (k % 2) + 4 * c, 4)

    def reads(k):
        if k >= 22 or k // 2 in staged:
            return []
        fb = VFR + 8 * (k % 2)
        return w2_reads(g, k, lambda o: vr(fb + o, 2))

    kc1, kc2, pubk = int(OPT["kc1"]), int(OPT["kc2"]), int(OPT["pubk"])
    g.force("W10")
    g.loads(12)
    g.stamp()
    VRW, VRR, VOUT = VFR + 16, VFR + 20, VFR + 22
    setup = I(f"""v_and_b32 v{VT + 4}, 15, v{VL}
v_lshlrev_b32 v{VT + 4}, 8, v{VT + 4}
v_bfe_u32 v{VT + 5}, v{VL}, 4, 1
v_lshl_add_u32 v{VT + 4}, v{VT + 5}, 14, v{VT + 4}
v_lshrrev_b32 v{VT + 5}, 5, v{VL}
v_xor_b32 v{VT + 5}, v{VT + 5}, v{VL}
v_and_b32 v{VT + 5}, 7, v{VT + 5}
v_lshl_add_u32 v{VT + 4}, v{VT + 5}, 4, v{VT + 4}
v_add_u32 v{VRW}, s{s_m4}, v{VT + 4}
v_xor_b32 v{VRW + 1}, 32, v{VRW}
v_xor_b32 v{VRW + 2}, 64, v{VRW}
v_xor_b32 v{VRW + 3}, 0x60, v{VRW}
v_lshrrev_b32 v{VT + 4}, 3, v0
v_and_b32 v{VT + 5}, 7, v0
v_lshlrev_b32 v{VT + 6}, 10, v{VT + 4}
v_lshl_add_u32 v{VOUT}, v{VT + 5}, 4, v{VT + 6}
v_lshlrev_b32 v{VT + 5}, 1, v{VT + 5}
v_and_b32 v{VT + 6}, 7, v{VT + 4}
v_xor_b32 v{VT + 5}, v{VT + 5}, v{VT + 6}
v_and_b32 v{VT + 6}, 15, v{VT + 4}
v_lshlrev_b32 v{VT + 6}, 8, v{VT + 6}
v_lshl_add_u32 v{VT + 5}, v{VT + 5}, 4, v{VT + 6}
v_lshrrev_b32 v{VT + 4}, 4, v{VT + 4}
v_lshl_add_u32 v{VRR}, v{VT + 4}, 14, v{VT + 5}
v_xor_b32 v{VRR + 1}, 16, v{VRR}
v_and_b32 v{VT + 7}, 31, v{VL}
v_lshlrev_b32 v{VT + 7}, 2, v{VT + 7}
s_lshl_b32 s{s_t0}, s{s_tt}, 16
s_lshl_b32 s{s_t1}, s{s_ct}, 7
s_add_u32 s{s_t0}, s{s_t0}, s{s_t1}
s_add_u32 s{s_t1}, s{s_t0}, 32768
s_lshl_b32 s{s_t3}, s{s_tt}, 8
s_add_u32 s{s_t3}, s{s_t3}, {GATE}""".split("\n"))
    g.puts(setup)
    gate = I(f"""v_mul_f32 v{VGT}, -v{VGT}, v{VC + 2}
v_mul_f32 v{VGT + 1}, -v{VGT + 1}, v{VC + 2}
v_exp_f32 v{VGT}, v{VGT}
v_exp_f32 v{VGT + 1}, v{VGT + 1}
v_add_f32 v{VGT}, 1.0, v{VGT}
v_add_f32 v{VGT + 1}, 1.0, v{VGT + 1}
v_rcp_f32 v{VGT}, v{VGT}
v_rcp_f32 v{VGT + 1}, v{VGT + 1}
v_sub_f32 v{VGT + 2}, 1.0, v{VGT}
v_sub_f32 v{VGT + 3}, 1.0, v{VGT + 1}""".split("\n"))
    for k in range(22):
        if k == pubk:
            g.puts(publish)
        if k == max(kc1 - 4, pubk):
            g.puts(g.poll_issue(VPOLL, sWS, "s14"))
        if k == kc2 - 4:
            g.puts(g.poll_issue(VPOLL, sWS, "s16"))
        if k == kc1:
            g.puts(g.poll_check(VPOLL, sWS, "s14", 0x3f, 2))
            g.lq.add([], f"buffer_load_dword v{VGT}, v{VT + 7}, {srd(sWS)}, s{s_t3} offen sc1", "gate")
            g.lq.add([], f"buffer_load_dword v{VGT + 1}, v{VT + 7}, {srd(sWS)}, s{s_t3} offen offset:128 sc1", "gate")
            add_act(g, 12, 22)
        if k == kc2:
            g.puts(g.poll_check(VPOLL, sWS, "s16", 0xf, 2))
            add_act(g, 22, 30, [0])
            add_act(g, 22, 30, [1])
        if k in (1, 4, 5, 12, 14, 21):
            g.puts(g.fs())
        g.force(f"act{k}_1")
        mf = [mfma(AB + 32 * s + 16 * c, frag(k, c), ar(areg(k, s), 4), k > 0) for s in range(2) for c in range(2)]
        rd = reads(k + 1)
        if reads(k):
            g.wait(lgkm0=True)
        for i, m in enumerate(mf):
            S(m)
            if i == 0 and rd and (k + 1) % 2 == 0:
                g.wait(vm_tag=f"W{(k + 1) // 2}")
            if i < 2:
                for r in rd[2 * i:2 * i + 2]:
                    S(r)
                if not rd:
                    g.loads(1)
            else:
                if i == 3:
                    g.bdone = k
                g.loads(2 if i == 2 else 1)
                if k == 20:
                    g.puts(gate[5 * (i - 2):5 * (i - 1)])
    scale = [f"v_mul_f32 v{AB + 32 * s + i}, v{AB + 32 * s + i}, v{VGT + 2 + s}" for s in range(2) for i in range(32)]

    def comb(s):
        L = []
        for c in range(2):
            for q in range(4):
                b = 32 * s + 16 * c + 4 * q
                if s == 0:
                    u = [f"v_fmac_f32 v{AB + b + i}, v{AA + b + i}, v{VGT}" for i in range(4)]
                else:
                    u = [f"v_pk_fma_f32 {vr(AB + b + 2 * i, 2)}, {vr(AA + b + 2 * i, 2)}, {vr(VGT, 2)}, {vr(AB + b + 2 * i, 2)} op_sel:[0,1,0] op_sel_hi:[1,1,1]" for i in range(2)]
                L.append(u + [f"ds_write_b128 v{VRW + q}, {vr(AB + b, 4)} offset:{s * 32768 + c * 128}"])
        return L
    c0 = comb(0)
    for s in range(2):
        n = 0
        for k in range(22, 30):
            g.force(f"act{k}_{s}")
            for c in range(2):
                S(mfma(AA + 32 * s + 16 * c, frag(k, c), ar(areg(k, s), 4), k > 22))
                g.loads(1)
                if (s == 0 and n >= 2) or (s == 1 and n < 3):
                    for x in scale[:4]:
                        S(x)
                    scale = scale[4:]
                if s == 1 and n >= 3 and c0 and (n % 2 == 1 or n >= 12):
                    for x in c0.pop(0):
                        S(x)
                n += 1
    assert not g.lq.q and not scale and not c0
    g.stamp()
    R0, R1 = AA, AB

    def rds(h, R):
        return [f"ds_read_b128 {vr(R + 8 * wv + 4 * q, 4)}, v{VRR + q} offset:{wv * 4096 + h * 32768}" for wv in range(4) for q in range(2)]

    def fin(h, b):
        L = [f"v_pk_add_f32 {vr(b + 2 * i, 2)}, {vr(b + 2 * i, 2)}, {vr(b + 8 + 2 * i, 2)}" for i in range(4)]
        L += [f"v_pk_add_f32 {vr(b + 16 + 2 * i, 2)}, {vr(b + 16 + 2 * i, 2)}, {vr(b + 24 + 2 * i, 2)}" for i in range(4)]
        L += [f"v_pk_add_f32 {vr(b + 2 * i, 2)}, {vr(b + 2 * i, 2)}, {vr(b + 16 + 2 * i, 2)}" for i in range(4)]
        L += [f"v_cvt_pk_bf16_f32 v{b + 8 + i}, v{b + 2 * i}, v{b + 2 * i + 1}" for i in range(4)]
        L += [f"buffer_store_dwordx4 {vr(b + 8, 4)}, v{VOUT}, {srd(sOUT)}, s{s_t0 + h} offen {OPT['outfl']}".strip()]
        return L
    g.wait(lgkm0=True)
    S("s_barrier")
    for x in rds(0, R0):
        S(x)
    for u in comb(1):
        for x in u:
            S(x)
    for x in fin(0, R0):
        S(x)
    g.wait(lgkm0=True)
    S("s_barrier")
    for x in rds(1, R1) + fin(1, R1):
        S(x)
    finish(g)


def finish(g):
    S = g.S
    if OPT["diag"]:
        a, b, mult, unit = OPT["diag"].split(":")
        S.wait(vm0=True)
        g.stamp()
        if a == "entry":
            S("s_mov_b32 s18, s3")
        if b == "karg":
            S("s_mov_b32 s20, s23")
        S(f"s_sub_u32 s22, s20, s18\ns_mul_i32 s22, s22, {mult}")
        if unit == "c":
            S("s_lshr_b32 s22, s22, 4")
        S(f"""s_min_u32 s22, s22, 20000
s_memrealtime s[24:25]
s_waitcnt lgkmcnt(0)
L_dg_{g.kind}:
s_memrealtime s[26:27]
s_waitcnt lgkmcnt(0)
s_sub_u32 s26, s26, s24
s_cmp_lt_u32 s26, s22
s_cbranch_scc1 L_dg_{g.kind}""")
    if OPT["stamps"]:
        S.wait(vm0=True)
        g.stamp(True)
        S(f"""s_memrealtime s[{s_stamp}:{s_stamp + 1}]
s_waitcnt lgkmcnt(0)
v_writelane_b32 v{VST}, s{s_stamp}, 30
v_writelane_b32 v{VST}, s3, 31
s_lshl_b32 s{s_t0}, s2, 2
s_add_u32 s{s_t0}, s{s_t0}, s{s_w}
s_lshl_b32 s{s_t0}, s{s_t0}, 7
s_add_u32 s{s_t0}, s{s_t0}, {STAMP}
v_lshlrev_b32 v{VT}, 2, v{VL}
s_mov_b64 exec, 0xffffffff
buffer_store_dword v{VST}, v{VT}, {srd(sWS)}, s{s_t0} offen""")
    S("s_endpgm")


def publish(tag, stage):
    return [Wait(tag), Ins(f"buffer_store_dword v{VONE if stage == 1 else VTWO}, v{VFLAG}, {srd(sWS)}, s17 offen sc1", "flag")]


def own_flag(g):
    g.S(f"""s_lshl_b32 s17, s{s_j}, 4
s_add_u32 s17, s17, s{s_tb}
s_lshl_b32 s17, s17, 2
s_add_u32 s17, s17, s{s_w}
s_lshl_b32 s17, s17, 7
s_add_u32 s17, s17, {FLG + (0x10000 if g.kind == "Q" else 0)}""")


def act_base(g):
    g.S(f"s_lshl_b32 s{s_act}, s{s_tb}, 1\ns_add_u32 s{s_act}, s{s_act}, s{s_th}\ns_mul_i32 s{s_act}, s{s_act}, {118 * 2048}")


def jct(g, dst):
    g.S(f"s_lshl_b32 s{dst}, s{s_j}, 1\ns_add_u32 s{dst}, s{dst}, s{s_ch}\ns_lshl_b32 s{dst}, s{dst}, 1\ns_add_u32 s{dst}, s{dst}, s{s_th}")


def ffn_common(g, n):
    g.S(f"""v_lshl_add_u32 v{VT + 8}, v{VT + 3}, 1, v{VT + 2}
v_mul_u32_u24 v{VT + 8}, {n * 512}, v{VT + 8}
v_add_u32 v{VT + 8}, v{VT + 8}, v{VT + 6}""")


def ffn_addr(g, dst, idx, base):
    g.S(f"""s_lshr_b32 s{s_t1}, s{idx}, 1
s_lshl_b32 s{s_t1}, s{s_t1}, 8
s_and_b32 s{s_t2}, s{idx}, 1
s_lshl_b32 s{s_t2}, s{s_t2}, 5""")
    if base:
        g.S(f"s_add_u32 s{s_t1}, s{s_t1}, {base}")
    g.S(f"v_xor_b32 v{dst}, s{s_t2}, v{VT + 8}\nv_add_u32 v{dst}, s{s_t1}, v{dst}")


def lines(txt):
    return I([x.strip() for x in txt.split("\n") if x.strip()])


def gen_q():
    g = Gen("Q")
    S, lq = g.S, g.lq
    head(g)
    WR = QWR
    quad_parts(g)
    voff_n2(g, VQ, 2, 3072, True)
    voff_ffn3(g)
    unit_start(S, s_us, f"s{s_j}", True, s_t0)
    S(f"s_lshl_b32 s{s_fb}, s{s_us}, 5\ns_lshl_b32 s{s_m8}, s{s_w}, 13")
    mk_srds(g, [sG, sU])
    S(f"s_mov_b64 s[{sQKV}:{sQKV + 1}], s[6:7]")

    def add_w(j):
        w = WR[j % 3]
        add_rows(g, f"K{j}", VQ, 2, sQKV, 3072, s_qb, s_o1, s_m8, w, (w, w + 32768), newkb=j if j < 3 else None)
        add_rows(g, f"K{j}", VG, 3, sG, 2752, s_fb, s_o2, s_m8, w + 2048, None)
        add_rows(g, f"K{j}", VU, 3, sU, 2752, s_fb, s_o2, s_m8, w + 5120, None, newso=False)
    for j in range(8):
        if j >= 3:
            add_x(g, j, XR[j % 3])
        add_w(j)
    g.loads(8)
    mk_srds(g, [sWS, sPHI, sDBG, sWO, sWD, sOUT])
    phi_load(g)
    misc_setup(g)
    S(f"""v_lshl_add_u32 v{VWA}, v{VT + 2}, 10, v{VT + 6}
s_lshl_b32 s{s_t0}, s{s_ch}, 8
s_add_u32 s{s_t0}, s{s_t0}, {WR[0]}
v_add_u32 v{VWA}, s{s_t0}, v{VWA}""")
    ffn_common(g, 3)
    S(f"s_mul_i32 s{s_t0}, s{s_ch}, 3")
    for b in range(3):
        if b:
            S(f"s_add_u32 s{s_t0}, s{s_t0}, 1")
        ffn_addr(g, VWA + 1 + b, s_t0, WR[0] + 2048)
    for b in range(4):
        S(f"v_add_u32 v{VWA + 4 + b}, 0x10000, v{VWA + b}")
    consts(g)
    pb_setup(g)
    act_base(g)
    own_flag(g)
    jct(g, s_t3)
    S(f"s_lshl_b32 s15, s{s_j}, 6\ns_add_u32 s15, s15, s{s_w}\ns_lshl_b32 s15, s15, 7\ns_add_u32 s15, s15, {FLG}")
    g.loads(8)
    g.stamp()
    g.wait(vm_tag="K0")
    S("s_barrier")
    g.stamp()

    def reads(ks):
        j, kk = ks // 4, ks % 4
        buf = ks % 2
        fx, fw = VFR + 8 * buf, VFR + 16 + 16 * buf
        o = WR[j % 3] - WR[0] + kk * 8192
        st = 4 if o >= 65536 else 0
        o %= 65536
        xr = [f"ds_read_b128 {vr(fx + 4 * s, 4)}, v{VXA + kk} offset:{XR[j % 3] + 4096 * s}" for s in range(2)]
        wr = [[f"ds_read_b64_tr_b16 {vr(fw + 4 * b + 2 * t, 2)}, v{VWA + st + b} offset:{o + t * (512 if b == 0 else 768)}" for t in range(2)] for b in range(4)]
        return [xr[0], xr[1]] + wr[0] + wr[1] + wr[2] + wr[3]

    for r in reads(0):
        S(r)
    g.w2cand = lambda: [16384 * i for i in range(9)]
    for n in range(6):
        add_w2(g, n)
    PA = 192
    ZR = VFR + 40
    for ks in range(32):
        j, kk = ks // 4, ks % 4
        buf = ks % 2
        fx, fw = VFR + 8 * buf, VFR + 16 + 16 * buf
        mf = [mfma(ACC + (2 * b + s) * 16, vr(fw + 4 * b, 4), vr(fx + 4 * s, 4), ks > 0) for b in range(4) for s in range(2)]
        bar = None
        if kk == 3:
            bar = ([f"X{j + 1}", f"K{j + 1}"] if j < 7 else None, [(XR[j % 3], XR[j % 3] + 16384), (WR[j % 3], WR[j % 3] + 32768)])
        ex = []
        if ks == 10:
            ex = g.poll_issue(VPK, sDBG, "0")
        if ks == 18:
            ex = g.poll_check(VPK, sDBG, "0", 0xf, 1, 16) + lines(f"""v_lshlrev_b32 v{VPK}, 9, v{VL}
v_cmp_gt_u32 vcc, 16, v{VL}
v_cndmask_b32 v{VPK}, v{VPOLL}, v{VPK}, vcc""")
        if ks == 31:
            ex = [Event(lambda: g.puts(stage_moves(g, 3, force=True)))]
        if ks == 18:
            g.puts(ex)
            ex = []
        if ks in (4, 5, 6):
            ex = phi_read(g)[5 * (ks - 4):5 * (ks - 3)]
        kstep(g, mf, reads(ks + 1) if ks < 31 else [], 3, barrier=bar, extra=ex)
    g.stamp()
    S(f"s_lshl_b32 s{s_xb}, s{s_t3}, 14\ns_add_u32 s{s_xb}, s{s_xb}, {KVP}\ns_lshl_b32 s{s_qb}, s{s_t3}, 11\ns_add_u32 s{s_qb}, s{s_qb}, {ZP}")
    def add_partials():
        rest = lq.q
        k = 0
        while k < len(rest) and rest[k][0] is not None:
            k += 1
        lq.q = rest[:k]
        for i in range(2):
            lq.add([], f"buffer_load_dwordx4 {vr(ZR + 4 * i, 4)}, v{VL16}, {srd(sWS)}, s{s_qb} offen offset:{1024 * i} sc1", "zl")
        for t in range(16):
            pre = [f"s_add_u32 s{s_xb}, s{s_xb}, 4096"] if (t % 4 == 0 and t) else []
            lq.add(pre, f"buffer_load_dwordx4 {ar(PA + 4 * t, 4)}, v{VL16}, {srd(sWS)}, s{s_xb} offen offset:{1024 * (t % 4)} sc1", "pl")
        lq.q += rest[k:]
    for n in range(6, 15):
        add_w2(g, n)
    kvp, kvc = int(OPT["kvp"]), int(OPT["kvc"])
    if kvp < 0:
        g.puts(g.poll_issue(VPK, sWS, "s15"))
    S(f"""s_mul_i32 s{s_t0}, s{s_ch}, 3
s_add_u32 s{s_t0}, s{s_t0}, s{s_us}
s_lshl_b32 s{s_t0}, s{s_t0}, 11
s_add_u32 s{s_o0}, s{s_t0}, s{s_act}
s_add_u32 s{s_kb}, s{s_o0}, 4096""")
    QB = VFR + 24
    PQ = ACC + 32
    main = []
    for b in range(3):
        for s in range(2):
            n = 2 * b + s
            O = VFR + 16 + 4 * (n % 2)
            main += I(gelu_block(ACC + (2 * (b + 1) + s) * 16, VFR, VFR + 8, O))
            so, off = (s_o0, n * 1024) if n < 4 else (s_kb, (n - 4) * 1024)
            main += I([f"buffer_store_dwordx4 {vr(O, 4)}, v{VL16}, {srd(sWS)}, s{so} offen offset:{off} sc1"], "hst")
            main += g.fs()
            if n in (1, 3):
                main.append(stage_event(g, 3))
                main += g.fs()
            if n == kvp:
                main += g.poll_issue(VPK, sWS, "s15")
            if n == kvc:
                main += g.poll_check(VPK, sWS, "s15", 0xffff) + [Event(add_partials)] + g.fs()
            if n == 4:
                for s2 in range(2):
                    for h in range(2):
                        for i in range(4):
                            main += I([f"v_cvt_pk_bf16_f32 v{QB + 8 * s2 + 4 * h + i}, v{ACC + 16 * s2 + 8 * h + 2 * i}, v{ACC + 16 * s2 + 8 * h + 2 * i + 1}"])
                        main += I([mfma(PQ + 16 * (2 * s2 + h), vr(VPHI, 4), vr(QB + 8 * s2 + 4 * h, 4), False)])
    weave(g, main, int(OPT['qev']))
    g.stamp()
    E0, E1 = ACC + 96, ACC + 112
    PH = ACC
    M0, M1 = VT, VT + 2
    PS, ZA = VFR, VFR + 16
    KA = VFR + 32
    PX = VT + 4
    VA0, VA1, VA2 = VX, VX + 1, VX + 2
    sm = [zipl(softmax_inst(PQ + 16 * (2 * s), E0, M0, PH + 16 * s), softmax_inst(PQ + 16 * (2 * s + 1) + 8, E1, M1, PH + 16 * s + 8)) for s in range(2)]
    ZF = VQ
    VA3 = VX + 3
    PX = PS
    ND = [[PQ, PQ + 16], [VFR + 16, E0]]
    sm0, sm1 = I(sm[0]), I(sm[1])
    mark = lambda L, k: L[k].wr[:1]
    r = [stage_event(g, 3)] + lines(f"""s_lshr_b32 s{s_t0}, s{s_m4}, 1
s_add_u32 s{s_t0}, s{s_t0}, {MISC + 4096}
v_add_u32 v{VA0}, s{s_t0}, v{VL16}
v_lshrrev_b32 v{VA1}, 5, v{VL}
v_lshlrev_b32 v{VA1}, 10, v{VA1}
v_bfe_u32 v{VA2}, v{VL}, 2, 2
v_lshl_add_u32 v{VA1}, v{VA2}, 7, v{VA1}
v_bfe_u32 v{VA2}, v{VL}, 4, 1
v_lshl_add_u32 v{VA1}, v{VA2}, 5, v{VA1}
v_and_b32 v{VA2}, 3, v{VL}
v_lshl_add_u32 v{VA1}, v{VA2}, 3, v{VA1}
v_add_u32 v{VA1}, s{s_t0}, v{VA1}
s_lshr_b32 s{s_t1}, s{s_m4}, 2
s_add_u32 s{s_t1}, s{s_t1}, {MISC + 12288}
v_add_u32 v{VA3}, s{s_t1}, v{VL16}
v_and_b32 v{VA2}, 0xfffffbff, v{VA3}
s_lshl_b32 s{s_t2}, s{s_j}, 1
s_add_u32 s{s_t2}, s{s_t2}, s{s_ch}
s_lshl_b32 s{s_t2}, s{s_t2}, 12
s_add_u32 s{s_t2}, s{s_t2}, {86 * 2048}
s_add_u32 s{s_o0}, s{s_t2}, s{s_act}""")
    r += sm0
    r, t1 = sched(r)
    weave(g, r, int(OPT["qev"]))
    g.puts(g.fs() + publish("hst", 1) + g.fs())
    r = [Wait("pl", wr=[("a", PA + i) for i in range(64)] + [("v", ZR + i) for i in range(8)])] + g.fs()
    r += lines(f"ds_write_b128 v{VA0}, {vr(ZR, 4)}\nds_write_b128 v{VA0}, {vr(ZR + 4, 4)} offset:1024")
    r += [Wait(lgkm0=True)]
    r += I([f"ds_read_b64_tr_b16 {vr(ZF + 4 * h + 2 * t, 2)}, v{VA1} offset:{64 * h + 512 * t}" for h in range(2) for t in range(2)])
    r += I([mfma(PS, vr(VID, 4), ar(PA + 4 * t, 4), t > 0) for t in range(16)])
    for h in range(2):
        r += I([mfma(ZA, vr(ZF + 4 * h, 4), vr(VONES, 4), False)])
        r += I([f"v_cvt_pk_bf16_f32 v{KA + 8 * h + i}, v{ZA + 2 * i}, v{ZA + 2 * i + 1}" for i in range(8)])
    r += I([f"v_cvt_pk_bf16_f32 v{PS + 8 + i}, v{PS + 2 * i}, v{PS + 2 * i + 1}" for i in range(4)])
    r += I([f"ds_write_b128 v{VA3}, {vr(PS + 8, 4)}"])
    r += [Event(lambda: (g.force("W10"), g.puts(g.poll_issue(VPOLL, sWS, "s16"))))]
    r += [Wait(lgkm0=True)] + lines(f"s_barrier\nds_read_b128 {vr(PX, 4)}, v{VA2}\nds_read_b128 {vr(PX + 4, 4)}, v{VA2} offset:1024")
    r += I([f"v_cndmask_b32 v{KA + i}, v{PX + i}, v{KA + i}, s[{s_mk0}:{s_mk0 + 1}]" for i in range(8)])
    r += I([f"v_cndmask_b32 v{KA + 8 + i}, v{KA + 8 + i}, v{PX + i}, s[{s_mk0}:{s_mk0 + 1}]" for i in range(8)])

    def out(s):
        L = []
        for h in range(2):
            for jj in range(2):
                L += I([mfma(ND[s][h], vr(KA + 8 * h + 4 * jj, 4), vr(PH + 16 * s + 8 * h + 4 * jj, 4), jj > 0)])
        for h in range(2):
            d = ND[s][h]
            num, den = (d, d + 8) if h == 0 else (d + 8, d)
            O = den + 4
            L += I([f"v_add_f32 v{den}, v{den}, v{VC + 3}", f"v_rcp_f32 v{den}, v{den}"])
            if s == 0:
                L += I([f"v_mul_f32 v{num + i}, v{num + i}, v{den}" for i in range(8)])
            else:
                L += I([f"v_pk_mul_f32 {vr(num + 2 * i, 2)}, {vr(num + 2 * i, 2)}, {vr(den, 2)} op_sel_hi:[1,0]" for i in range(4)])
            L += I([f"v_cvt_pk_bf16_f32 v{O + i}, v{num + 2 * i}, v{num + 2 * i + 1}" for i in range(4)])
            L += I([f"buffer_store_dwordx4 {vr(O, 4)}, v{VL16}, {srd(sWS)}, s{s_o0} offen offset:{2048 * h + 1024 * s} sc1"], "ost")
        return L
    r += sm1 + out(0) + out(1)
    r, t2 = sched(r, tries=200)
    print("Q sched est", t1, t2)
    weave(g, r, int(OPT["qev"]))
    g.stamp()
    pub = publish("ost", 2)
    g.puts(g.poll_check(VPOLL, sWS, "s16", 0xf, first=pub[1].text))
    add_act(g, 0, 12)
    g.stamp()
    phase_b(g, pub)
    return g


def gen_kv(light):
    g = Gen("KL" if light else "KH")
    S, lq = g.S, g.lq
    head(g)
    NCH = 2 if light else 3
    FS = NCH * 8192
    WR = KWR
    mk_srds(g, [sWS, sG, sU, sPHI, sDBG, sWO, sWD, sOUT, sGW])
    if light:
        zero_flags(g)
    add_kv(g, 1)
    for j in range(2, 8):
        add_x(g, j, XR[j % 4])
        add_kv(g, j)
    quad_parts(g)
    if light:
        voff_n2(g, VG, 2, 2752, True)
        S(f"v_xor_b32 v{VU}, 32, v{VG}\nv_xor_b32 v{VU + 1}, 32, v{VG + 1}")
    else:
        voff_ffn3(g)
    unit_start(S, s_us, f"s{s_j}", False, s_t0)
    S(f"s_lshr_b32 s{s_fb}, s{s_us}, 1\ns_lshl_b32 s{s_fb}, s{s_fb}, 6\ns_mul_i32 s{s_m6}, s{s_w}, {NCH * 2048}")
    misc_setup(g)
    VXB = VFR + 44
    S(f"s_lshl_b32 s{s_t0}, s{s_ch}, 12")
    for i in range(4):
        S(f"v_add_u32 v{VXA + i}, s{s_t0}, v{VXA + i}\nv_xor_b32 v{VXB + i}, 0x1000, v{VXA + i}")
    VKA = VWA + 9
    S(f"""v_lshl_add_u32 v{VKA}, v{VT + 2}, 11, v{VT + 6}
s_lshl_b32 s{s_t0}, s{s_ch}, 8
s_add_u32 s{s_t0}, s{s_t0}, {WR[0]}
v_add_u32 v{VKA}, s{s_t0}, v{VKA}""")
    ffn_common(g, NCH)
    S(f"s_and_b32 s{s_t3}, s{s_us}, 1\ns_lshl_b32 s{s_t0}, s{s_ch}, 1\ns_add_u32 s{s_t0}, s{s_t0}, s{s_t3}")
    for b in range(2 if light else 3):
        if b == 1:
            S(f"s_add_u32 s{s_t0}, s{s_t0}, 1")
        if b == 2:
            S(f"s_add_u32 s{s_t0}, s{s_t3}, 4")
        ffn_addr(g, VWA + b, s_t0, 0)
        S(f"v_add_u32 v{VWA + 3 + b}, 0x10000, v{VWA + b}")
        if light:
            S(f"v_add_u32 v{VWA + 6 + b}, 0x20000, v{VWA + b}")
    if light:
        S(f"v_lshlrev_b32 v{VWA + 10}, 4, v{VT + 2}")
    consts(g)
    pb_setup(g)
    act_base(g)
    own_flag(g)
    VTW = VFR + 40
    if OPT["touch"]:
        S(f"""s_and_b32 s{s_t0}, s2, 63
s_lshr_b32 s{s_t1}, s2, 7
s_lshl_b32 s{s_t1}, s{s_t1}, 6
s_add_u32 s{s_t0}, s{s_t0}, s{s_t1}
s_lshl_b32 s{s_t0}, s{s_t0}, 2
s_add_u32 s{s_t0}, s{s_t0}, s{s_w}
s_mul_i32 s{s_t1}, s{s_t0}, {22 * 128}
s_lshl_b32 s{s_t0}, s{s_t0}, 10
v_mov_b32 v{VT}, {OOB}
v_lshl_add_u32 v{VT + 1}, v{VL}, 7, s{s_t1}
s_mov_b64 s[18:19], 0x3fffff
s_mov_b64 s[20:21], 0xff
v_lshl_add_u32 v{VT + 2}, v{VL}, 7, s{s_t0}
v_cndmask_b32 v{VTW}, v{VT}, v{VT + 1}, s[18:19]
v_cndmask_b32 v{VTW + 1}, v{VT}, v{VT + 2}, s[20:21]""")
        lq.add([], f"buffer_load_dword v{VTW + 2}, v{VTW + 1}, {srd(sWO)}, 0 offen", "touch")
        lq.add([], f"buffer_load_dword v{VTW + 3}, v{VTW}, {srd(sWD)}, 0 offen", "touch")
    g.stamp()
    phi_load(g)
    if light:
        S(f"s_lshr_b32 s{s_t1}, s{s_m4}, 2\ns_add_u32 m0, s{s_t1}, {MISC + 12288}\ns_mov_b32 s{s_t0}, 0")
        S(dma(VL16, sGW, s_t0, 0), tag="gw")
        S(f"s_add_u32 s15, s{s_t1}, {MISC + 12288}")
    g.loads(4)
    g.wait(vm_tag=["X0", "K0"])
    S("s_barrier")
    g.stamp()

    xa = lambda ks, s: 8 * ks + 4 * s

    def reads1(ks):
        j, kk = ks // 4, ks % 4
        fw = VFR + 8 * (ks % 2)
        o = WR[j % 4] - WR[0] + kk * 4096
        xr = [f"ds_read_b128 {ar(xa(ks, s), 4)}, v{(VXA, VXB)[s] + kk} offset:{XR[j % 4]}" for s in range(2)]
        wr = [[f"ds_read_b64_tr_b16 {vr(fw + 4 * b + 2 * t, 2)}, v{VKA} offset:{o + 512 * b + 1024 * t}" for t in range(2)] for b in range(2)]
        return wr[0] + [xr[0], xr[1]] + wr[1]

    K = 1024
    if light:
        FR = [128 * K, 0, 64 * K, 16 * K, 80 * K, 32 * K, 96 * K, 48 * K]
        order = [("F", j) for j in range(8)] + [("W", i) for i in range(15)]
        g.w2cand = lambda: [16 * K * i for i in range(9)]
    else:
        FR = [0, 64 * K, 24 * K, 88 * K] * 2
        order = [("W", 0), ("F", 0), ("F", 1), ("F", 2), ("F", 3), ("W", 1), ("W", 2), ("F", 4), ("W", 3), ("F", 5), ("F", 6), ("F", 7)] + [("W", i) for i in range(4, 15)]
        g.w2cand = lambda: [128 * K, 48 * K, 112 * K] + ([16 * K * i for i in range(9)] if lq.issued("F7") else [])
    for what, j in order:
        if what == "W":
            add_w2(g, j)
            continue
        f = FR[j]
        add_rows(g, f"F{j}", VG, NCH, sG, 2752, s_fb, s_o2, s_m6, f, (f, f + FS), newkb=j)
        add_rows(g, f"F{j}", VU, NCH, sU, 2752, s_fb, s_o2, s_m6, f + NCH * 1024, None, newso=False)
    for r in reads1(0):
        S(r)
    KA_, VA_ = ACC, ACC + 32
    XCH = MISC + 4096
    VA0, VA1, VA2, VA3 = VX, VX + 1, VX + 2, VX + 3
    late = phi_read(g) + lines(f"""s_lshl_b32 s{s_t3}, s{s_j}, 2
s_add_u32 s{s_t3}, s{s_t3}, s{s_w}
s_lshl_b32 s{s_o0}, s{s_t3}, 4
s_add_u32 s{s_o0}, s{s_o0}, s{s_tb}
s_lshl_b32 s{s_xb}, s{s_o0}, 7
s_add_u32 s{s_xb}, s{s_xb}, {ZP}
s_lshl_b32 s{s_o0}, s{s_o0}, 10
s_add_u32 s{s_o0}, s{s_o0}, {KVP}
s_sub_u32 s{s_mk1}, 0, s{s_th}
s_mov_b32 s{s_mk1 + 1}, s{s_mk1}
s_lshr_b32 s{s_t0}, s{s_m4}, 1
s_add_u32 s{s_t0}, s{s_t0}, {XCH}
v_add_u32 v{VA0}, s{s_t0}, v{VL16}
v_xor_b32 v{VA1}, 0x800, v{VA0}
s_lshl_b32 s{s_t1}, s{s_w}, 8
s_add_u32 s{s_t1}, s{s_t1}, {MISC}
v_lshl_add_u32 v{VA2}, v{VL}, 2, s{s_t1}
v_xor_b32 v{VA3}, 0x100, v{VA2}""")
    for ks in range(32):
        j, kk = ks // 4, ks % 4
        fw = VFR + 8 * (ks % 2)
        mf = [mfma(KA_ + 16 * s, vr(fw, 4), ar(xa(ks, s), 4), ks > 0) for s in range(2)] + \
             [mfma(VA_ + 16 * s, ar(xa(ks, s), 4), vr(fw + 4, 4), ks > 0) for s in range(2)]
        bar = None
        if kk == 3:
            bar = ([f"X{j + 1}", f"K{j + 1}"] if j < 7 else None, [(XR[j % 4], XR[j % 4] + 16384), (WR[j % 4], WR[j % 4] + 16384)])
        nl = 4 if ks < 4 else 0 if ks >= int(OPT['s1stop']) else 2
        if ks == 4 and light:
            set_ready(g)
        ex = []
        if ks >= 26:
            assert lq.issued("X7")
            ex, late = late[:6], late[6:]
        kstep(g, mf, reads1(ks + 1) if ks < 31 else [], nl, barrier=bar, wait0=False, extra=ex)
    assert not late
    g.stamp()
    KB = VFR
    VB = VFR + 16
    PH = VFR + 32
    PK = ACC + 64
    E0, E1 = ACC, ACC + 16
    TR0, TR1 = ACC + 32, ACC + 48
    M0, M1 = VT, VT + 2
    main = []
    for s in range(2):
        for h in range(2):
            for i in range(4):
                main.append(f"v_cvt_pk_bf16_f32 v{KB + 8 * s + 4 * h + i}, v{KA_ + 16 * s + 8 * h + 2 * i}, v{KA_ + 16 * s + 8 * h + 2 * i + 1}")
            main.append(mfma(PK + 16 * (2 * s + h), vr(VPHI, 4), vr(KB + 8 * s + 4 * h, 4), False))
    for s in range(2):
        for i in range(8):
            main.append(f"v_cvt_pk_bf16_f32 v{VB + 8 * s + i}, v{VA_ + 16 * s + 2 * i}, v{VA_ + 16 * s + 2 * i + 1}")
    PT = KB
    D0, D1 = PK, PK + 16
    ZA = [VT + 4, VT + 6]
    for s in range(2):
        main += zipl(softmax_inst(PK + 16 * (2 * s), E0, M0, PH), softmax_inst(PK + 16 * (2 * s + 1) + 8, E1, M1, PH + 8))
        for h, TR in enumerate((TR0, TR1)):
            for jj in range(2):
                main.append(mfma(TR, vr(PH + 8 * h + 4 * jj, 4), vr(VID + 4 * jj, 4), jj > 0))
        for h, TR in enumerate((TR0, TR1)):
            for i in range(8):
                main.append(f"v_cvt_pk_bf16_f32 v{PT + 8 * h + i}, v{TR + 2 * i}, v{TR + 2 * i + 1}")
            for jj in range(2):
                main.append(mfma((D0, D1)[h], vr(PT + 8 * h + 4 * jj, 4), vr(VB + 8 * s + 4 * jj, 4), s > 0 or jj > 0))
            for i in range(8):
                if s == 0 and i == 0:
                    continue
                a = vr(TR, 2) if (s == 0 and i == 1) else vr(ZA[h], 2)
                main.append(f"v_pk_add_f32 {vr(ZA[h], 2)}, {a}, {vr(TR + 2 * i, 2)}")
    main += f"""v_add_f32 v{ZA[0]}, v{ZA[0]}, v{ZA[0] + 1}
v_add_f32 v{ZA[1]}, v{ZA[1]}, v{ZA[1] + 1}
v_permlane32_swap_b32 v{ZA[0]}, v{ZA[1]}
v_add_f32 v{ZA[0]}, v{ZA[0]}, v{ZA[1]}""".split("\n")
    SN, KP = E0, E0 + 8
    main += [f"v_cndmask_b32 v{D0 + i}, v{D0 + i}, v{D1 + i}, s[{s_mk0}:{s_mk0 + 1}]" for i in range(16)]
    main += [f"v_cndmask_b32 v{SN + i}, v{D0 + 8 + i}, v{D0 + i}, s[{s_mk1}:{s_mk1 + 1}]" for i in range(8)]
    main += [f"ds_write_b32 v{VA2}, v{ZA[0]}", f"ds_write_b128 v{VA0}, {vr(SN, 4)}", f"ds_write_b128 v{VA0}, {vr(SN + 4, 4)} offset:1024"]
    KPR = VFR + 24
    main += [f"v_cndmask_b32 v{KPR + i}, v{D0 + i}, v{D0 + 8 + i}, s[{s_mk1}:{s_mk1 + 1}]" for i in range(8)]
    main, t1 = sched(I(main))
    print(g.kind, "kv sched est", t1)
    d0 = int(OPT["kvdelay"])
    g.puts(main[:d0])
    weave(g, main[d0:], int(OPT["kvev"]))
    g.puts(g.poll_issue(VPK, sDBG, "0"))
    g.wait(vm_tag="F0", lgkm0=True)
    S("s_barrier")

    NB = 2 if light else 3

    def reads2(ks):
        j, kk = ks // 4, ks % 4
        fw = VFR + 12 * (ks % 2)
        a = FR[j] + kk * NCH * 2048
        st = a // 65536
        o = a - st * 65536
        L = [f"ds_read_b64_tr_b16 {vr(fw + 4 * b + 2 * t, 2)}, v{VWA + 3 * st + b} offset:{o + t * NCH * 256}" for b in range(NB) for t in range(2)]
        if light:
            L.append(f"ds_read_b128 {vr(fw + 8, 4)}, v{VWA + 11} offset:{32 * kk}")
        return L

    def gw_addr(j):
        if light:
            S("\n".join([f"s_add_u32 s{s_t0}, s{s_rot}, {j}", f"s_and_b32 s{s_t0}, s{s_t0}, 7", f"s_lshl_b32 s{s_t0}, s{s_t0}, 7",
                         f"s_add_u32 s{s_t0}, s{s_t0}, s15", f"v_add_u32 v{VWA + 11}, s{s_t0}, v{VWA + 10}"]))

    gw_addr(0)
    for r in reads2(0):
        S(r)
    RCV, O = VFR + 32, VFR + 40
    S(f"ds_read_b128 {vr(RCV, 4)}, v{VA1}\nds_read_b128 {vr(RCV + 4, 4)}, v{VA1} offset:1024\nds_read_b32 v{ZA[1]}, v{VA3}")
    fin = I([f"v_add_f32 v{KPR + i}, v{KPR + i}, v{RCV + i}" for i in range(8)])
    fin += I([f"v_add_f32 v{ZA[0]}, v{ZA[0]}, v{ZA[1]}", f"v_lshlrev_b32 v{O + 5}, 1, v{VL}"])
    fin += I([f"v_cvt_pk_bf16_f32 v{O + i}, v{KPR + 2 * i}, v{KPR + 2 * i + 1}" for i in range(4)])
    fin += I([f"v_cvt_pk_bf16_f32 v{O + 4}, v{ZA[0]}, v{ZA[0]}"])
    fin += I([f"buffer_store_dwordx4 {vr(O, 4)}, v{VL16}, {srd(sWS)}, s{s_o0} offen sc1",
              f"buffer_store_short v{O + 4}, v{O + 5}, {srd(sWS)}, s{s_xb} offen sc1"], "kst")
    g.stamp()
    seen = {}
    for ks in range(32):
        j, kk = ks // 4, ks % 4
        fw = VFR + 12 * (ks % 2)
        mf = [mfma(ACC + (2 * b + s) * 16, vr(fw + 4 * b, 4), ar(xa(ks, s), 4), ks > 0) for b in range(2) for s in range(2)]
        mf.append(mfma(ACC + 64, vr(fw + 8, 4), ar(xa(ks, 0), 4), ks > 0))
        bar = None
        if kk == 3:
            bar = (f"F{j + 1}" if j < 7 else None, [(FR[j], FR[j] + FS)])
            if j < 7:
                gw_addr(j + 1)
        ex = []
        if ks < 2:
            ex = fin[9 * ks:9 * ks + 9]
        if ks == int(OPT['kvpub']):
            g.puts(g.poll_check(VPK, sDBG, "0", 0xf, 1, 16))
            ex = publish("kst", 1)
        rd = reads2(ks + 1) if ks < 31 else []
        for n in range(NSTAGE):
            if n not in seen and lq.issued(f"W{W2_ORDER[n]}"):
                seen[n] = ks
        old = g.staged < 2 * NSTAGE and ks - seen.get(g.staged // 2, 99) >= int(OPT["stage_age"])
        ex = [Event(lambda ks=ks, old=old: g.puts(stage_moves(g, 1, dead=8 * ks, force=old)))] + ex
        kstep(g, mf, rd, 0 if ks < 2 else 2, barrier=bar, extra=ex)
    g.stamp()
    print(g.kind, "staged in seg2:", g.staged, "queue left", len(lq.q))
    S(f"""s_lshl_b32 s{s_t0}, s{s_ch}, 1
s_add_u32 s{s_t0}, s{s_t0}, s{s_us}
s_lshl_b32 s{s_t0}, s{s_t0}, 11
s_add_u32 s{s_t0}, s{s_t0}, s{s_act}
s_lshl_b32 s{s_t1}, s{s_ch}, 10
s_add_u32 s{s_o0}, s{s_t0}, s{s_t1}
s_xor_b32 s{s_kb}, s{s_o0}, 1024
s_add_u32 s{s_t0}, s{s_us}, 4
s_lshl_b32 s{s_t0}, s{s_t0}, 11
s_add_u32 s{s_t0}, s{s_t0}, s{s_act}
s_add_u32 s{s_fb}, s{s_t0}, s{s_t1}""")
    main = []
    if light:
        S(f"""s_lshl_b32 s{s_t0}, s{s_tb}, 1
s_add_u32 s{s_t0}, s{s_t0}, s{s_th}
s_lshl_b32 s{s_t1}, s{s_t0}, 1
s_add_u32 s{s_t1}, s{s_t1}, s{s_ch}
s_lshl_b32 s{s_t1}, s{s_t1}, 7
s_add_u32 s{s_fb}, s{s_t1}, {GATE}
s_xor_b32 s{s_t1}, s{s_j}, s{s_th}
s_bitcmp1_b32 s{s_t1}, 0
s_cselect_b32 s{s_t1}, {OOB}, 0
v_mov_b32 v{VT}, {OOB}
v_lshl_add_u32 v{VT + 1}, v{VL}, 2, s{s_t1}
v_cmp_gt_u32 vcc, 32, v{VL}
v_cndmask_b32 v{VT + 2}, v{VT}, v{VT + 1}, vcc""")
        main += I([f"buffer_store_dword v{ACC + 64}, v{VT + 2}, {srd(sWS)}, s{s_fb} offen sc1"], "hst")
    blocks = [(ACC + (2 * b + s) * 16, s_o0 if s == 0 else s_kb, 2048 * b) for b in range(2) for s in range(2)]
    if not light:
        blocks.append((ACC + 64, s_fb, 0))
    for n, (acc, so, off) in enumerate(blocks):
        O = VFR + 16 + 4 * (n % 2)
        main += I(gelu_block(acc, VFR, VFR + 8, O))
        main += I([f"buffer_store_dwordx4 {vr(O, 4)}, v{VL16}, {srd(sWS)}, s{so} offen offset:{off} sc1"], "hst")
        main += g.fs()
        main.append(stage_event(g, 4))
    weave(g, main, 64)
    g.wait(lgkm0=True)
    g.loads(8)
    g.puts(g.fs() + publish("hst", 2) + g.fs())
    g.force("W10")
    g.puts(g.fs())
    g.puts(g.poll_issue(VPOLL, sWS, "s16"))
    g.puts(g.poll_check(VPOLL, sWS, "s16", 0xf))
    add_act(g, 0, 12)
    g.stamp()
    phase_b(g, [])
    return g


CODE_SZ = 20480


def build(path, **opt):
    OPT.update(opt)
    gens = [gen_kv(False), gen_kv(True), gen_q()]
    parts = {}
    for g in gens:
        if OPT["drop"]:
            d = OPT["drop"]
            keep = []
            for it in g.S.items:
                if isinstance(it, Wait):
                    if "vm" in d and it.vm_tag is not None:
                        it = Wait(None, it.lgkm0, False)
                    keep.append(it)
                    continue
                if "vm" in d and it.kind == "vmem" and f"v{VST}," not in it.text:
                    continue
                if ("vm" in d or "poll" in d) and "L_slow" in it.text:
                    it = Ins(it.text.split("\n")[1])
                if "st" in d.split(",") and it.kind == "vmem" and "store" in it.op and f"v{VST}," not in it.text:
                    it = Ins(f"buffer_load_dword v{VPD}, v{VFLAG}, {srd(sDBG)}, 0 offen", it.tag, True) if it.tag else None
                    if it is None:
                        continue
                if "plain" in d and it.kind == "vmem" and "store" in it.op and it.tag in ("hst", "ost"):
                    it = Ins(it.text.replace(" sc1", ""), it.tag)
                if "nt" in d.split(",") and it.kind == "vmem" and "store" in it.op and it.tag in ("hst", "ost"):
                    it = Ins(it.text.replace(" sc1", " sc1 nt"), it.tag)
                if "nopl" in d and it.tag in ("pl", "zl"):
                    it = Ins(it.text.replace(f"v{VL16},", f"v{VFLAG},"), it.tag)
                if "now2" in d and it.tag and it.tag[0] == "W" and it.kind == "vmem":
                    it = Ins("buffer_load_dwordx4 v%d, %s" % (VFLAG, it.text.split(",", 1)[1]), it.tag)
                if "mf" in d and it.kind == "mfma":
                    continue
                if "ds" in d and it.kind == "ds":
                    continue
                if "va" in d and (it.kind in ("trans", "perm") or it.op.startswith("v_pk_") or it.op.startswith("v_cvt_pk") or it.op.startswith("v_max")):
                    continue
                keep.append(it)
            g.S.items = keep
        t = finalize(g.S, g.kind)
        h, rest = t.split("L_m1:\n")
        blk, body = rest.split("L_m2:\n")
        parts[g.kind] = (h, blk, body + "\n" + "\n".join(g.slow) + "\n.p2align 6")
    assert parts["KH"][0] == parts["KL"][0] == parts["Q"][0] and parts["KH"][1] == parts["KL"][1]
    txt = [parts["Q"][0], parts["Q"][1], parts["KH"][1], parts["KH"][2], parts["KL"][2], parts["Q"][2]]
    hdr = open("gated_mix__linear_kernel_hedgehog__glu_gated_geglu__prompt.s.ref").read().split("; Override launch")[0]
    out = hdr + "; @launch grid=(256,1,1) block=(256,1,1) lds=163840\n"
    out += f""".amdgcn_target "amdgcn-amd-amdhsa--gfx950"
.text
.globl {KN}
.p2align 8
.type {KN},@function
{KN}:
"""
    out += "\n".join(txt)
    out += "\nL_end:\ns_endpgm\n"
    out += ".fill 8192, 4, 0xbf810000\n"
    out += f""".section .rodata,"a"
.p2align 6
.amdhsa_kernel {KN}
  .amdhsa_next_free_vgpr 512
  .amdhsa_next_free_sgpr 102
  .amdhsa_accum_offset 256
  .amdhsa_group_segment_fixed_size 0
  .amdhsa_kernarg_size 96
  .amdhsa_user_sgpr_count 2
  .amdhsa_user_sgpr_kernarg_segment_ptr 1
  .amdhsa_system_sgpr_workgroup_id_x 1
.end_amdhsa_kernel
"""
    open(path, "w").write(out)
    print("wrote", path, len(out), "bytes")


if __name__ == "__main__":
    kw = {}
    path = sys.argv[1] if len(sys.argv) > 1 else "k.s"
    for a in sys.argv[2:]:
        k, v = a.split("=")
        kw[k] = {"0": False, "1": True}.get(v, v)
    build(path, **kw)
```
